```python
import torch

def _softmax(x, axis=-1):
    return torch.softmax(x, dim=axis)
def _gelu(x):
    return torch.nn.functional.gelu(x, approximate="tanh")
def _silu(x):
    return torch.nn.functional.silu(x)
def _sigmoid(x):
    return torch.sigmoid(x)
def _layernorm(x, axis=-1, eps=1e-5):
    m = x.mean(dim=axis, keepdim=True)
    v = x.var(dim=axis, keepdim=True, unbiased=False)
    return (x - m) / torch.sqrt(v + eps)
def _scatter_add(tgt, idx, src, axis=0):
    return tgt.clone().index_add_(axis, idx, src)
def _segment_sum(src, seg, n):
    out = torch.zeros((n,) + src.shape[1:], dtype=src.dtype)
    return out.index_add_(0, seg, src)
def _pad(x, pw):
    flat = tuple(v for pair in reversed(pw) for v in pair)
    return torch.nn.functional.pad(x, flat)

kernel_name = 'recurrent_scan__spectral_fnet__glu_gated_geglu__prompt'

def setup_inputs():

    _w = (lambda a: (lambda t: t.to(torch.bfloat16) if t.is_floating_point() else t)(torch.as_tensor(a)))
    def _A_setup():
        B, S, D = 1, 2048, 640
        ns = torch.arange(S)[:, None] * torch.arange(S)[None, :]
        nd = torch.arange(D)[:, None] * torch.arange(D)[None, :]
        Ws_re = torch.cos(-2.0 * torch.pi * ns / S).to(float)
        Ws_im = torch.sin(-2.0 * torch.pi * ns / S).to(float)
        Wd_re = torch.cos(-2.0 * torch.pi * nd / D).to(float)
        Wd_im = torch.sin(-2.0 * torch.pi * nd / D).to(float)
        return {
            "x": _w((lambda *s: torch.randn(*s, dtype=torch.bfloat16) * 0.05)(B, S, D)),
            "dft_seq_re": _w(Ws_re),
            "dft_seq_im": _w(Ws_im),
            "dft_hid_re": _w(Wd_re),
            "dft_hid_im": _w(Wd_im),
        }
    _A_in = _A_setup()

    def _B_setup():
        B, S, Dm, Df = 1, 2048, 640, 1536
        return {
            "x": _w((lambda *s: torch.randn(*s, dtype=torch.bfloat16) * 0.05)(B, S, Dm)),
            "w_gate": _w((lambda *s: torch.randn(*s, dtype=torch.bfloat16) * 0.05)(Dm, Df) * (Dm ** -0.5)),
            "w_up": _w((lambda *s: torch.randn(*s, dtype=torch.bfloat16) * 0.05)(Dm, Df) * (Dm ** -0.5)),
            "w_down": _w((lambda *s: torch.randn(*s, dtype=torch.bfloat16) * 0.05)(Df, Dm) * (Df ** -0.5)),
        }
    _B_in = _B_setup()

    return {
        "A_x": _A_in["x"],
        "A_dft_seq_re": _A_in["dft_seq_re"],
        "A_dft_seq_im": _A_in["dft_seq_im"],
        "A_dft_hid_re": _A_in["dft_hid_re"],
        "A_dft_hid_im": _A_in["dft_hid_im"],
        "B_x": _B_in["x"],
        "B_w_gate": _B_in["w_gate"],
        "B_w_up": _B_in["w_up"],
        "B_w_down": _B_in["w_down"],
    }

def reference(A_x, A_dft_seq_re, A_dft_seq_im, A_dft_hid_re, A_dft_hid_im, B_x, B_w_gate, B_w_up, B_w_down):
    def _A_ref(x, dft_seq_re, dft_seq_im, dft_hid_re, dft_hid_im):
        a = torch.einsum("bsd,ed->bse", x, dft_hid_re)
        b = torch.einsum("bsd,ed->bse", x, dft_hid_im)
        y = torch.einsum("ts,bse->bte", dft_seq_re, a) - torch.einsum("ts,bse->bte", dft_seq_im, b)
        return y

    def _B_ref(x, w_gate, w_up, w_down):
        g = torch.einsum("bsd,df->bsf", x, w_gate)
        u = torch.einsum("bsd,df->bsf", x, w_up)
        h = _gelu(g) * u
        return torch.einsum("bsf,fd->bsd", h, w_down)

    x = A_x
    xn = _layernorm(x, axis=-1)
    s = _A_ref(xn, A_dft_seq_re, A_dft_seq_im, A_dft_hid_re, A_dft_hid_im)
    g = _silu(_B_ref(xn, B_w_gate, B_w_up, B_w_down))
    return x + s * g
```

```python
import re

TRANS = ("v_exp_f32", "v_log_f32", "v_rcp_f32", "v_rsq_f32", "v_sqrt_f32", "v_sin_f32", "v_cos_f32")


class Tok:
    __slots__ = ("cls", "seq", "name")

    def __init__(self, cls, name=""):
        self.cls = cls
        self.seq = None
        self.name = name


class I:
    __slots__ = ("text", "kind", "tok", "need", "wr", "rd", "srcc", "flags")

    def __init__(self, text, need=(), tok=None, flags=()):
        self.text = text.strip()
        self.need = [t for t in need if t is not None]
        self.flags = set(flags)
        self.kind = classify(self.text)
        self.tok = tok
        if self.kind == "vm" and tok is None:
            self.tok = Tok("vm")
        if self.kind == "ds" and tok is None:
            self.tok = Tok("lgkm")
        self.wr, self.rd, self.srcc = regs_of(self.text, self.kind)


def classify(t):
    op = t.split()[0]
    if op.endswith(":"):
        return "label"
    if op.startswith(";") or op.startswith("."):
        return "meta"
    if op.startswith("v_mfma"):
        return "mfma"
    if op.startswith("v_"):
        base = op.replace("_e32", "").replace("_e64", "")
        return "trans" if base in TRANS else "valu"
    if op.startswith("ds_"):
        return "ds"
    if op.startswith("buffer_") or op.startswith("global_"):
        if op.startswith("buffer_inv") or op.startswith("buffer_wbl2"):
            return "vm"
        return "vm"
    if op.startswith("s_load") or op.startswith("s_memtime") or op.startswith("s_memrealtime"):
        return "smem"
    if op.startswith("s_"):
        return "salu"
    raise ValueError("unknown instr " + t)


_R = re.compile(r"^(-|\|)?(neg\()?([vas])(\d+)$|^([vas])\[(\d+):(\d+)\]$")


def parse_reg(o):
    o = o.strip()
    o = o.lstrip("-").strip("|")
    m = re.match(r"^([vas])(\d+)$", o)
    if m:
        return {(m.group(1), int(m.group(2)))}
    m = re.match(r"^([vas])\[(\d+):(\d+)\]$", o)
    if m:
        return {(m.group(1), i) for i in range(int(m.group(2)), int(m.group(3)) + 1)}
    if o in ("vcc", "vcc_lo", "vcc_hi"):
        return {("x", "vcc")}
    if o in ("exec", "exec_lo", "exec_hi"):
        return {("x", "exec")}
    if o == "m0":
        return {("x", "m0")}
    return set()


def regs_of(t, kind):
    if kind in ("label", "meta"):
        return set(), set(), set()
    t = t.split(";")[0]
    parts = t.split(None, 1)
    op = parts[0]
    ops = []
    if len(parts) > 1:
        for o in parts[1].split(","):
            o = o.strip()
            if o:
                ops.append(o.split()[0])
    R = [parse_reg(o) for o in ops]
    wr, rd, srcc = set(), set(), set()
    U = lambda l: set().union(*l) if l else set()
    if kind == "mfma":
        wr = R[0]
        rd = R[1] | R[2] | R[3]
        srcc = R[3]
    elif kind in ("valu", "trans"):
        if "swap" in op:
            wr = R[0] | R[1]
            rd = R[0] | R[1]
        elif op.startswith("v_cmp"):
            wr = R[0]
            rd = U(R[1:])
        else:
            wr = R[0]
            rd = U(R[1:])
            if op.startswith(("v_fmac", "v_mac", "v_dot2c", "v_pk_fmac")) or "dpp" in t or "row_" in t or "quad_perm" in t:
                rd = rd | R[0]
            if op.startswith("v_cndmask") and len(R) == 3:
                rd = rd | {("x", "vcc")}
    elif kind == "ds":
        if op.startswith("ds_read") or op.startswith("ds_bpermute") or op.startswith("ds_swizzle"):
            wr = R[0]
            rd = U(R[1:])
        else:
            rd = U(R)
    elif kind == "vm":
        is_lds = bool(re.search(r"\blds\b", t))
        if op.startswith(("buffer_load", "global_load")) and not is_lds:
            wr = R[0]
            rd = U(R[1:])
        elif "atomic" in op and re.search(r"\bsc0\b", t):
            wr = R[0]
            rd = U(R)
        else:
            rd = U(R)
            if is_lds:
                rd = rd | {("x", "m0")}
    elif kind == "smem":
        wr = R[0]
        rd = U(R[1:])
    elif kind == "salu":
        if op.startswith(("s_cmp", "s_waitcnt", "s_barrier", "s_branch", "s_cbranch", "s_nop", "s_endpgm", "s_setprio",
                          "s_sleep", "s_bitcmp")):
            rd = U(R)
        else:
            wr = R[0] if R else set()
            rd = U(R[1:])
            if "saveexec" in op:
                wr = wr | {("x", "exec")}
    return wr, rd, srcc


def interleave(main, side, start=0, end=None, per_gap=None):
    idx = [i for i, ins in enumerate(main) if ins.kind == "mfma"]
    if end is None:
        end = len(idx)
    n = end - start
    assert n > 0
    out = []
    si = 0
    mi = 0
    for i, ins in enumerate(main):
        out.append(ins)
        if ins.kind == "mfma":
            if start <= mi < end:
                target = ((mi - start + 1) * len(side) + n - 1) // n if per_gap is None else min(len(side), (mi - start + 1) * per_gap)
                while si < min(target, len(side)):
                    out.append(side[si])
                    si += 1
                if mi == end - 1:
                    while si < len(side):
                        out.append(side[si])
                        si += 1
            mi += 1
    assert si == len(side)
    return out


def states(ins):
    if ins.kind in ("label", "meta"):
        return 0
    if ins.text.startswith("s_nop"):
        return int(ins.text.split()[1]) + 1
    return 1


def is_wide_store(ins):
    op = ins.text.split()[0]
    return ins.kind == "vm" and op in ("buffer_store_dwordx4", "buffer_store_dwordx3", "global_store_dwordx4", "global_store_dwordx3")


def need_states(p, c):
    n = 0
    pv = p.kind in ("valu", "trans")
    cv = c.kind in ("valu", "trans")
    cop = c.text.split()[0]
    if p.kind == "mfma":
        passes = 4 if "16x16x32" in p.text else 8
        big = {4: 8, 8: 12}[passes]
        if c.kind == "mfma":
            ab = c.rd - c.srcc if c.srcc else c.rd
            t = c.text.split(None, 1)[1].split(",")
            abr = parse_reg(t[1].split()[0]) | parse_reg(t[2].split()[0])
            if p.wr & abr:
                n = max(n, big)
            if p.wr & c.srcc and p.wr != c.srcc:
                n = max(n, {4: 6, 8: 10}[passes])
            if p.wr & c.wr and not (p.wr & c.srcc):
                n = max(n, {4: 6, 8: 10}[passes])
        elif c.kind in ("valu", "trans", "vm", "ds"):
            if p.wr & (c.rd | c.wr):
                n = max(n, big)
            if cv and (p.srcc & c.wr):
                n = max(n, {4: 3, 8: 7}[passes])
    if pv:
        vw = {r for r in p.wr if r[0] in "va"}
        sw = {r for r in p.wr if r[0] == "s" or r == ("x", "vcc")}
        if c.kind == "mfma" and vw & c.rd:
            n = max(n, 2)
        if c.kind == "mfma" and ("x", "exec") in p.wr:
            n = max(n, 4)
        if cv and vw & c.rd:
            if "permlane" in cop or "dpp" in c.text or "row_" in c.text or "quad_perm" in c.text:
                n = max(n, 2)
            if cop.startswith(("v_readfirstlane", "v_readlane")):
                n = max(n, 1)
            if p.kind == "trans" and c.kind != "trans":
                n = max(n, 1)
            if p.kind == "trans":
                n = max(n, 1)
            if "op_sel" in p.text or "sdwa" in p.text:
                n = max(n, 1)
        if sw & c.rd:
            if c.kind == "vm":
                n = max(n, 5)
            elif cv:
                n = max(n, 4 if cop.startswith(("v_readlane", "v_writelane")) else 2)
    if p.kind == "salu" and ("x", "m0") in p.wr and ("x", "m0") in c.rd and c.kind in ("vm", "ds"):
        n = max(n, 1)
    if is_wide_store(p):
        data = parse_reg(p.text.split(None, 1)[1].split(",")[0].split()[0])
        if data & c.wr:
            n = max(n, 2)
    return n


def finalize(instrs, hazard_window=14):
    out = []
    cnt = {"vm": 0, "lgkm": 0}
    done = {"vm": 0, "lgkm": 0}
    mx = {"vm": 63, "lgkm": 15}
    for ins in instrs:
        req = {}
        for t in ins.need:
            assert t.seq is not None, f"token {t.name} needed before issue by: {ins.text}"
            if t.seq + 1 > done[t.cls]:
                req[t.cls] = max(req.get(t.cls, 0), t.seq + 1)
        if req:
            parts = []
            for c in ("vm", "lgkm"):
                if c in req:
                    n = min(cnt[c] - req[c], mx[c])
                    parts.append(f"{'vmcnt' if c == 'vm' else 'lgkmcnt'}({n})")
                    done[c] = max(done[c], cnt[c] - n)
            out.append(I("s_waitcnt " + " ".join(parts)))
        if ins.text.startswith("s_waitcnt") and "raw" not in ins.flags:
            m = re.search(r"vmcnt\((\d+)\)", ins.text)
            if m:
                done["vm"] = max(done["vm"], cnt["vm"] - int(m.group(1)))
            m = re.search(r"lgkmcnt\((\d+)\)", ins.text)
            if m:
                done["lgkm"] = max(done["lgkm"], cnt["lgkm"] - int(m.group(1)))
        if ins.tok is not None and ins.tok.cls != "none":
            ins.tok.seq = cnt[ins.tok.cls]
            cnt[ins.tok.cls] += 1
        if ins.text != "; nop-need":
            out.append(ins)
    res = []
    for ins in out:
        if ins.kind in ("label", "meta"):
            res.append(ins)
            continue
        dist = 0
        pad = 0
        for p in reversed(res):
            if dist >= hazard_window:
                break
            n = need_states(p, ins)
            if n > dist:
                pad = max(pad, n - dist)
            dist += states(p)
        while pad > 0:
            k = min(pad, 16)
            res.append(I(f"s_nop {k - 1}"))
            pad -= k
        res.append(ins)
    return res


def text(instrs):
    L = []
    for i in instrs:
        if i.kind == "label":
            L.append(i.text)
        else:
            L.append("  " + i.text)
    return "\n".join(L) + "\n"


def vr(b, n=1, f="v"):
    return f"{f}{b}" if n == 1 else f"{f}[{b}:{b + n - 1}]"


def ar(b, n=1):
    return vr(b, n, "a")


def sr(b, n=1):
    return vr(b, n, "s")


def wait_for(*toks):
    return I("; nop-need", need=toks)
```

```python
import sys
sys.path.insert(0, "work")
from asmlib import *

NAME = "recurrent_scan__spectral_fnet__glu_gated_geglu__prompt"
XN, W1, WD, ABT, HH, YP, FLG, WS_SIZE = 0, 0x280000, 0x800000, 0xA00000, 0xF00000, 0x1500000, 0x2A00000, 0x3000000
KA = dict(x=0, ws_re=8, ws_im=16, wd_re=24, wd_im=32, wg=48, wu=56, wdn=64, out=72, dbg=80, ws=88)
OOB = 0x7ff00000


def srd(P, dst, lo, nbytes):
    P(f"s_mov_b32 s{dst}, s{lo}")
    P(f"s_and_b32 s{dst+1}, s{lo+1}, 0xffff")
    P(f"s_mov_b32 s{dst+2}, {hex(nbytes)}")
    P(f"s_mov_b32 s{dst+3}, 0x20000")


class K:
    def __init__(self):
        self.L = []

    def __call__(self, t, need=(), **kw):
        i = I(t, need=need, **kw)
        self.L.append(i)
        return i.tok

    def ext(self, l):
        self.L.extend(l)


def check_div(mul, sh, d, n):
    for r in range(n):
        assert (r * mul) >> sh == r // d, (mul, sh, d, r)


def gen_k0():
    check_div(2731, 16, 24, 480); check_div(43, 7, 3, 48); check_div(205, 11, 10, 480); check_div(13, 6, 5, 40)
    check_div(3277, 16, 20, 800)
    out = []
    P = K()
    P("s_load_dwordx2 s[4:5], s[0:1], 88")
    P("s_load_dwordx2 s[6:7], s[0:1], 0")
    P("s_load_dwordx4 s[24:27], s[0:1], 24")
    P("s_load_dwordx4 s[28:31], s[0:1], 48")
    P("s_load_dwordx2 s[32:33], s[0:1], 64")
    P("v_lshrrev_b32 v1, 6, v0")
    P("v_and_b32 v2, 63, v0")
    P("v_readfirstlane_b32 s3, v1")
    P("s_waitcnt lgkmcnt(0)")
    srd(P, 8, 4, WS_SIZE)
    P("s_cmp_ge_u32 s2, 1016")
    P("s_cbranch_scc1 K0_end")
    P("s_cmp_ge_u32 s2, 616")
    P("s_cbranch_scc1 K0_wd")
    P("s_cmp_ge_u32 s2, 256")
    P("s_cbranch_scc1 K0_tr")
    out += finalize(P.L)
    P = K()
    srd(P, 12, 6, 2048 * 1280)
    P("s_lshr_b32 s16, s2, 2")
    P("s_and_b32 s17, s2, 1")
    P("s_bfe_u32 s18, s2, 0x10001")
    P("s_lshl_b32 s19, s16, 5")
    P("s_lshl_b32 s20, s18, 4")
    P("s_add_u32 s19, s19, s20")
    P("s_lshr_b32 s20, s3, 1")
    P("s_lshl_b32 s20, s20, 3")
    P("s_add_u32 s19, s19, s20")
    P("s_lshl_b32 s20, s17, 2")
    P("s_add_u32 s19, s19, s20")
    P("s_and_b32 s20, s3, 1")
    P("s_lshl_b32 s20, s20, 1")
    P("s_add_u32 s19, s19, s20")
    P("s_mul_i32 s19, s19, 1280")
    P("v_lshrrev_b32 v3, 5, v2")
    P("v_and_b32 v4, 31, v2")
    P("v_mul_u32_u24 v5, 1280, v3")
    P("v_lshl_add_u32 v5, v4, 4, v5")
    P(f"v_mov_b32 v6, {hex(OOB)}")
    P("v_cmp_gt_u32 vcc, 16, v4")
    P("v_cndmask_b32 v6, v6, v5, vcc")
    t0 = P("buffer_load_dwordx4 v[8:11], v5, s[12:15], s19 offen")
    t1 = P("buffer_load_dwordx4 v[12:15], v5, s[12:15], s19 offen offset:512")
    t2 = P("buffer_load_dwordx4 v[16:19], v6, s[12:15], s19 offen offset:1024")
    P("v_lshlrev_b32 v7, 2, v4")
    P("s_lshl_b32 s20, s2, 7")
    P(f"s_add_u32 s20, s20, {hex(FLG)}")
    P("v_mov_b32 v50, 0")
    P("buffer_store_dword v50, v7, s[8:11], s20 offen")
    P("v_lshrrev_b32 v7, 2, v4")
    P("v_lshlrev_b32 v7, 11, v7")
    P("v_and_b32 v51, 3, v4")
    P("v_lshl_add_u32 v7, v51, 8, v7")
    P("v_lshl_add_u32 v7, v3, 4, v7")
    P("s_mul_i32 s21, s16, 40960")
    P("s_lshl_b32 s20, s17, 10")
    P("s_add_u32 s21, s21, s20")
    P("s_lshl_b32 s20, s18, 7")
    P("s_add_u32 s21, s21, s20")
    P("s_lshl_b32 s20, s3, 5")
    P("s_add_u32 s21, s21, s20")
    P("s_add_u32 s22, s21, 16384")
    P("s_add_u32 s23, s21, 32768")
    for j in range(12):
        P(f"v_lshlrev_b32 v{20+2*j}, 16, v{8+j}", need=[[t0, t1, t2][j // 4]])
        P(f"v_and_b32 v{21+2*j}, 0xffff0000, v{8+j}")
    P("v_add_f32 v44, v20, v21")
    P("v_add_f32 v45, v22, v23")
    for j in range(4, 24, 2):
        P(f"v_add_f32 v44, v44, v{20+j}")
        P(f"v_add_f32 v45, v45, v{21+j}")
    P("v_add_f32 v44, v44, v45")

    def reduce32(r, t):
        for m in ["quad_perm:[1,0,3,2]", "quad_perm:[2,3,0,1]", "row_half_mirror", "row_mirror"]:
            P(f"v_add_f32_dpp v{r}, v{r}, v{r} {m} row_mask:0xf bank_mask:0xf")
        P(f"v_mov_b32 v{t}, v{r}")
        P(f"v_permlane16_swap_b32 v{r}, v{t}")
        P(f"v_add_f32 v{r}, v{r}, v{t}")
    reduce32(44, 45)
    import struct
    f2h = lambda f: hex(struct.unpack("<I", struct.pack("<f", f))[0])
    P(f"v_mul_f32 v44, {f2h(1.0/640)}, v44")
    P("v_mov_b32 v46, 0")
    P("v_mov_b32 v47, 0")
    for j in range(24):
        if j == 16:
            P("s_mov_b32 exec_lo, 0xffff")
            P("s_mov_b32 exec_hi, 0xffff")
        P(f"v_sub_f32 v48, v{20+j}, v44")
        P(f"v_fmac_f32 v{46 + (j & 1)}, v48, v48")
    P("s_mov_b64 exec, -1")
    P("v_add_f32 v46, v46, v47")
    reduce32(46, 47)
    P(f"v_mul_f32 v46, {f2h(1.0/640)}, v46")
    P("v_cvt_pk_bf16_f32 v44, v44, v46")
    P("v_and_b32 v46, 0xffff0000, v44")
    P("v_lshlrev_b32 v44, 16, v44")
    P(f"v_add_f32 v46, {f2h(1e-5)}, v46")
    P("v_cvt_pk_bf16_f32 v46, v46, v46")
    P("v_lshlrev_b32 v46, 16, v46")
    P("v_sqrt_f32 v46, v46")
    P("v_cvt_pk_bf16_f32 v46, v46, v46")
    P("v_lshlrev_b32 v46, 16, v46")
    P("v_rcp_f32 v46, v46")
    for j in range(12):
        a, b = 20 + 2 * j, 21 + 2 * j
        P(f"v_sub_f32 v{a}, v{a}, v44")
        P(f"v_sub_f32 v{b}, v{b}, v44")
        P(f"v_cvt_pk_bf16_f32 v{8+j}, v{a}, v{b}")
        P(f"v_lshlrev_b32 v{a}, 16, v{8+j}")
        P(f"v_and_b32 v{b}, 0xffff0000, v{8+j}")
        P(f"v_mul_f32 v{a}, v{a}, v46")
        P(f"v_mul_f32 v{b}, v{b}, v46")
        P(f"v_cvt_pk_bf16_f32 v{8+j}, v{a}, v{b}")
    P("buffer_store_dwordx4 v[8:11], v7, s[8:11], s21 offen")
    P("buffer_store_dwordx4 v[12:15], v7, s[8:11], s22 offen")
    P("s_mov_b32 exec_lo, 0xffff")
    P("s_mov_b32 exec_hi, 0xffff")
    P("buffer_store_dwordx4 v[16:19], v7, s[8:11], s23 offen")
    P("s_endpgm")
    out += finalize(P.L)
    P = K()
    P("K0_tr:")
    P("v_lshrrev_b32 v3, 3, v2")
    P("v_and_b32 v4, 7, v2")
    P("v_lshlrev_b32 v4, 4, v4")
    P("v_lshrrev_b32 v6, 4, v2")
    P("v_bfe_u32 v7, v2, 2, 2")
    P("v_lshl_add_u32 v6, v6, 3, v7")
    P("v_lshlrev_b32 v6, 7, v6")
    P("s_lshl_b32 s16, s3, 12")
    P("v_add_u32 v6, s16, v6")
    P("v_and_b32 v7, 3, v2")
    P("v_lshlrev_b32 v1, 4, v2")
    P("s_cmp_ge_u32 s2, 496")
    P("s_cbranch_scc1 K0_wdn")
    out += finalize(P.L)
    P = K()
    P("s_sub_u32 s17, s2, 256")
    P("s_lshl_b32 s17, s17, 2")
    P("s_add_u32 s17, s17, s3")
    P("s_cmp_ge_u32 s17, 480")
    P("s_cselect_b32 s18, 1, 0")
    P("s_cselect_b32 s34, s30, s28")
    P("s_cselect_b32 s35, s31, s29")
    P("s_cselect_b32 s19, 480, 0")
    P("s_sub_u32 s17, s17, s19")
    srd(P, 12, 34, 640 * 3072)
    P("s_mul_i32 s19, s17, 2731")
    P("s_lshr_b32 s19, s19, 16")
    P("s_mul_i32 s20, s19, 24")
    P("s_sub_u32 s20, s17, s20")
    P(f"s_mul_i32 s21, s19, {32*3072}")
    P("s_lshl_b32 s22, s20, 7")
    P("s_add_u32 s21, s21, s22")
    P("v_mul_u32_u24 v5, 3072, v3")
    P("v_add_u32 v5, v5, v4")
    toks = []
    for p in range(4):
        P(f"s_add_u32 m0, s16, {1024*p}")
        P(f"s_add_u32 s22, s21, {8*p*3072}")
        toks.append(P("buffer_load_dwordx4 v5, s[12:15], s22 offen lds"))
    P("v_lshl_add_u32 v6, v7, 4, v6")
    for h in range(2):
        P(f"s_lshl_b32 s22, s20, 1")
        P(f"s_add_u32 s22, s22, {h}")
        P("s_mul_i32 s23, s22, 43")
        P("s_lshr_b32 s23, s23, 7")
        P("s_mul_i32 s38, s23, 3")
        P("s_sub_u32 s38, s22, s38")
        P("s_mul_i32 s39, s38, 80")
        P("s_lshl_b32 s40, s19, 2")
        P("s_add_u32 s39, s39, s40")
        P("s_add_u32 s39, s39, 100")
        P("s_mul_i32 s40, s19, 9")
        P("s_add_u32 s40, s40, 5")
        P("s_cmp_eq_u32 s38, 0")
        P("s_cselect_b32 s39, s40, s39")
        P("s_lshl_b32 s40, s18, 1")
        P("s_add_u32 s39, s39, s40")
        P("s_mul_i32 s23, s23, 340")
        P("s_add_u32 s39, s39, s23")
        P("s_lshl_b32 s39, s39, 10")
        P(f"s_add_u32 s{36+h}, s39, {hex(W1)}")
    rt = {}
    for h in range(2):
        for F in range(2):
            for hh in range(2):
                r = 8 + 8 * h + 4 * F + 2 * hh
                rt[h, F, hh] = P(f"ds_read_b64_tr_b16 v[{r}:{r+1}], v6 offset:{hh*512 + h*64 + F*8}", need=toks)
    for h in range(2):
        for F in range(2):
            r = 8 + 8 * h + 4 * F
            P(f"buffer_store_dwordx4 v[{r}:{r+3}], v1, s[8:11], s{36+h} offen offset:{1024*F}", need=[rt[h, F, 1]])
    P("s_endpgm")
    out += finalize(P.L)
    P = K()
    P("K0_wdn:")
    P("s_sub_u32 s17, s2, 496")
    P("s_lshl_b32 s17, s17, 2")
    P("s_add_u32 s17, s17, s3")
    srd(P, 12, 32, 1536 * 1280)
    P("s_mul_i32 s19, s17, 205")
    P("s_lshr_b32 s19, s19, 11")
    P("s_mul_i32 s20, s19, 10")
    P("s_sub_u32 s20, s17, s20")
    P(f"s_mul_i32 s21, s19, {32*1280}")
    P("s_lshl_b32 s22, s20, 7")
    P("s_add_u32 s21, s21, s22")
    P("v_mul_u32_u24 v5, 1280, v3")
    P("v_add_u32 v5, v5, v4")
    toks = []
    for p in range(4):
        P(f"s_add_u32 m0, s16, {1024*p}")
        P(f"s_add_u32 s22, s21, {8*p*1280}")
        toks.append(P("buffer_load_dwordx4 v5, s[12:15], s22 offen lds"))
    P("v_lshl_add_u32 v6, v7, 3, v6")
    for tI in range(4):
        P("s_lshl_b32 s22, s20, 2")
        P(f"s_add_u32 s22, s22, {tI}")
        P("s_mul_i32 s23, s22, 13")
        P("s_lshr_b32 s23, s23, 6")
        P("s_mul_i32 s40, s23, 5")
        P("s_sub_u32 s40, s22, s40")
        P("s_mul_i32 s23, s23, 48")
        P("s_add_u32 s23, s23, s19")
        P("s_mul_i32 s23, s23, 5")
        P("s_add_u32 s23, s23, s40")
        P("s_lshl_b32 s23, s23, 10")
        P(f"s_add_u32 s{36+tI}, s23, {hex(WD)}")
    rt = {}
    for tI in range(4):
        for hh in range(2):
            r = 8 + 4 * tI + 2 * hh
            rt[tI, hh] = P(f"ds_read_b64_tr_b16 v[{r}:{r+1}], v6 offset:{hh*512 + tI*32}", need=toks)
    for tI in range(4):
        r = 8 + 4 * tI
        P(f"buffer_store_dwordx4 v[{r}:{r+3}], v1, s[8:11], s{36+tI} offen", need=[rt[tI, 1]])
    P("s_endpgm")
    out += finalize(P.L)
    P = K()
    P("K0_wd:")
    P("s_sub_u32 s17, s2, 616")
    P("s_lshl_b32 s17, s17, 2")
    P("s_add_u32 s17, s17, s3")
    P("s_cmp_ge_u32 s17, 800")
    P("s_cselect_b32 s18, 8, 0")
    P("s_cselect_b32 s34, s26, s24")
    P("s_cselect_b32 s35, s27, s25")
    P("s_cselect_b32 s19, 800, 0")
    P("s_cselect_b32 s41, 0x80008000, 0")
    P("s_sub_u32 s17, s17, s19")
    srd(P, 12, 34, 640 * 1280)
    P("s_mul_i32 s19, s17, 3277")
    P("s_lshr_b32 s19, s19, 16")
    P("s_mul_i32 s20, s19, 20")
    P("s_sub_u32 s20, s17, s20")
    P(f"s_mul_i32 s21, s19, {16*1280}")
    P("s_lshl_b32 s22, s20, 6")
    P("s_add_u32 s21, s21, s22")
    P("v_and_b32 v3, 15, v2")
    P("v_mul_u32_u24 v3, 1280, v3")
    P("v_lshrrev_b32 v4, 4, v2")
    P("v_lshl_add_u32 v3, v4, 4, v3")
    t = P("buffer_load_dwordx4 v[8:11], v3, s[12:15], s21 offen")
    P("v_lshlrev_b32 v1, 4, v2")
    P("s_mul_i32 s23, s19, 13")
    P("s_lshr_b32 s23, s23, 6")
    P("s_mul_i32 s40, s23, 5")
    P("s_sub_u32 s40, s19, s40")
    P("s_add_u32 s23, s23, s18")
    P("s_mul_i32 s23, s23, 340")
    P("s_mul_i32 s22, s20, 9")
    P("s_add_u32 s23, s23, s22")
    P("s_add_u32 s23, s23, s40")
    P("s_lshl_b32 s23, s23, 10")
    P(f"s_add_u32 s23, s23, {hex(W1)}")
    for j in range(4):
        P(f"v_xor_b32 v{8+j}, s41, v{8+j}", need=[t])
    P("buffer_store_dwordx4 v[8:11], v1, s[8:11], s23 offen")
    P("K0_end:")
    P("s_endpgm")
    out += finalize(P.L)
    return out


C1 = -2.0 * 0.7978845608028654 * 1.4426950408889634
C2 = C1 * 0.044715


def f2h(f):
    import struct
    return hex(struct.unpack("<I", struct.pack("<f", f))[0])


def gen_k1(PD=6, NP=8):
    P = K()
    P("s_load_dwordx2 s[4:5], s[0:1], 88")
    P("v_lshrrev_b32 v1, 6, v0")
    P("v_and_b32 v2, 63, v0")
    P("v_readfirstlane_b32 s3, v1")
    P("s_cmp_ge_u32 s2, 256")
    P("s_cbranch_scc1 K1_end")
    P("s_and_b32 s16, s2, 1")
    P("s_lshl_b32 s16, s16, 3")
    P("s_bfe_u32 s17, s2, 0x30003")
    P("s_add_u32 s16, s16, s17")
    P("s_bfe_u32 s17, s2, 0x20001")
    P("s_lshl_b32 s17, s17, 2")
    P("s_lshr_b32 s18, s2, 6")
    P("s_add_u32 s17, s17, s18")
    P("v_lshlrev_b32 v1, 4, v2")
    P("v_add_u32 v3, 0x1000, v1")
    P("v_add_u32 v4, 0x10000, v1")
    P("v_add_u32 v5, 0x20000, v1")
    P("s_lshl_b32 s19, s16, 2")
    P("s_add_u32 s19, s19, s3")
    P("s_mul_i32 s20, s19, 40960")
    P(f"s_mul_i32 s21, s17, {340*1024}")
    P("s_mul_i32 s22, s3, 5120")
    P("s_add_u32 s21, s21, s22")
    P(f"s_add_u32 s21, s21, {hex(W1)}")
    P("s_lshr_b32 s23, s17, 3")
    P("s_lshl_b32 s23, s23, 6")
    P("s_add_u32 s23, s23, s19")
    P("s_mul_i32 s23, s23, 40")
    P("s_and_b32 s24, s17, 7")
    P("s_mul_i32 s24, s24, 5")
    P("s_add_u32 s23, s23, s24")
    P("s_lshl_b32 s23, s23, 10")
    P(f"s_add_u32 s23, s23, {hex(ABT)}")
    P("s_lshr_b32 s24, s19, 1")
    P("s_mul_i32 s24, s24, 48")
    P("s_mul_i32 s25, s17, 3")
    P("s_add_u32 s24, s24, s25")
    P("s_lshl_b32 s24, s24, 2")
    P("s_and_b32 s25, s3, 1")
    P("s_lshl_b32 s25, s25, 1")
    P("s_add_u32 s24, s24, s25")
    P("s_lshl_b32 s24, s24, 10")
    P(f"s_add_u32 s24, s24, {hex(HH)}")
    P("s_add_u32 s25, s24, 4096")
    P("s_add_u32 s26, s24, 8192")
    P(f"v_mov_b32 v6, {f2h(C1)}")
    P(f"s_mov_b32 s27, {f2h(C2)}")
    P("s_waitcnt lgkmcnt(0)")
    srd(P, 8, 4, WS_SIZE)

    ACC_AB, ACC_GU, POOL, TMP = 16, [56, 88], 120, 160
    NCH, NR = 17, 8
    dma_tok = {}
    xtok = {}

    def dma_chunk(c):
        L = []
        slot = (c % NR) * 20480
        L.append(I(f"s_add_u32 m0, s22, {slot}"))
        for j in range(4):
            L.append(I(f"buffer_load_dwordx4 v1, s[8:11], s21 offen offset:{1024*j} lds"))
        L.append(I(f"s_add_u32 m0, s22, {slot + 4096}"))
        L.append(I(f"buffer_load_dwordx4 v3, s[8:11], s21 offen lds"))
        dma_tok[c] = L[-1].tok
        L.append(I("s_add_u32 s21, s21, 20480"))
        return L

    def x_load(ks):
        L = []
        for T in range(2):
            f = 2 * ks + T
            i = I(f"buffer_load_dwordx4 {ar(4*f, 4)}, v1, s[8:11], s20 offen offset:{1024*(f % 4)}")
            xtok[ks, T] = i.tok
            L.append(i)
        if ks % 2 == 1:
            L.append(I("s_add_u32 s20, s20, 4096"))
        return L
    seq = []
    nx = 0
    for c in range(NR):
        seq.append(dma_chunk(c))
        last_ks = min(19, (20 * c + 19) // 9)
        while nx <= last_ks:
            seq.append(x_load(nx)); nx += 1
    while nx < 20:
        seq.append(x_load(nx)); nx += 1
    pro, rest, n = [], [], 0
    for g in seq:
        nv = sum(1 for i in g if i.kind == "vm")
        if n + nv <= 58 and not rest:
            pro += g; n += nv
        else:
            rest += g
    P.ext(pro)

    pieces = []
    for ks in range(20):
        for t in range(9): pieces.append((0, ks, t))
    for ps in (1, 2):
        for ks in range(20):
            for t in range(4): pieces.append((ps, ks, 5 + t))
    rtok = {}

    def read(i):
        L = []
        if i % 20 == 0:
            c = i // 20
            L.append(I("s_barrier", need=[dma_tok[c]]))
        a = (i % 160) * 1024
        base = [1, 4, 5][a >> 16]
        r = POOL + 4 * (i % NP)
        ins = I(f"ds_read_b128 {vr(r, 4)}, v{base} offset:{a & 0xffff}")
        rtok[i] = ins.tok
        L.append(ins)
        return L

    def mfmas(i):
        ps, ks, t = pieces[i]
        r = POOL + 4 * (i % NP)
        L = []
        for T in range(2):
            x = ar(4 * (2 * ks + T), 4)
            if t < 5:
                d = ACC_AB + 4 * (2 * t + T)
                a, b = x, vr(r, 4)
            else:
                d = ACC_GU[ps & 1] + 4 * (2 * (t - 5) + T)
                a, b = vr(r, 4), x
            c = "0" if ks == 0 else vr(d, 4)
            L.append(I(f"v_mfma_f32_16x16x32_bf16 {vr(d, 4)}, {a}, {b}, {c}", need=[rtok[i], xtok[ks, T]]))
        return L

    def epi_ab():
        L = []
        for t in range(5):
            o = TMP + 4 * (t % 2)
            for T in range(2):
                d = ACC_AB + 4 * (2 * t + T)
                L.append(I(f"v_cvt_pk_bf16_f32 v{o+2*T}, v{d}, v{d+1}"))
                L.append(I(f"v_cvt_pk_bf16_f32 v{o+2*T+1}, v{d+2}, v{d+3}"))
            if t < 4:
                L.append(I(f"buffer_store_dwordx4 {vr(o, 4)}, v1, s[8:11], s23 offen offset:{1024*t}"))
            else:
                L.append(I(f"buffer_store_dwordx4 {vr(o, 4)}, v3, s[8:11], s23 offen"))
        return L

    def epi_gu(ps):
        L = []
        acc = ACC_GU[ps & 1]
        t0 = TMP + 8
        for T in range(2):
            o = TMP + 24 + 4 * T
            for F in range(2):
                g = acc + 4 * (2 * F + T)
                u = acc + 4 * (2 * (2 + F) + T)
                R = range(4)
                for i in R: L.append(I(f"v_mul_f32 v{t0+i}, v{g+i}, v{g+i}"))
                for i in R: L.append(I(f"v_fma_f32 v{t0+i}, v{t0+i}, s27, v6"))
                for i in R: L.append(I(f"v_mul_f32 v{t0+i}, v{t0+i}, v{g+i}"))
                for i in R: L.append(I(f"v_exp_f32 v{t0+i}, v{t0+i}"))
                for i in R: L.append(I(f"v_mul_f32 v{t0+4+i}, v{g+i}, v{u+i}"))
                for i in R: L.append(I(f"v_add_f32 v{t0+i}, 1.0, v{t0+i}"))
                for i in R: L.append(I(f"v_rcp_f32 v{t0+i}, v{t0+i}"))
                for i in R: L.append(I(f"v_mul_f32 v{t0+4+i}, v{t0+4+i}, v{t0+i}"))
                L.append(I(f"v_cvt_pk_bf16_f32 v{o+2*F}, v{t0+4}, v{t0+5}"))
                L.append(I(f"v_cvt_pk_bf16_f32 v{o+2*F+1}, v{t0+6}, v{t0+7}"))
            L.append(I(f"buffer_store_dwordx4 {vr(o, 4)}, v1, s[8:11], s{24+ps} offen offset:{1024*T}"))
        return L

    NPC = len(pieces)
    for c in range(NR, NCH):
        pass
    later = {}
    for c in range(NR, NCH):
        later[c - (NR - 2)] = dma_chunk(c)
    main = []
    for i in range(PD):
        main += read(i)
    segs = []
    for i in range(NPC):
        seg = []
        if i + PD < NPC:
            seg += read(i + PD)
        seg += mfmas(i)
        segs.append(seg)
    sides = []
    sides.append((0, 30, rest))
    for cb_, L in later.items():
        s = 20 * cb_ - PD + 1
        sides.append((s, s + 10, L))
    flat = [x for s in segs for x in s]
    for (s, e, L) in sides:
        flat = interleave(flat, L, 2 * s, 2 * e)
    flat = interleave(flat, epi_ab() + epi_gu(0), 2 * 184, 2 * 258)
    flat = interleave(flat, epi_gu(1), 2 * 264, 2 * 338)
    main += flat
    main += epi_gu(2)
    P.ext(main)
    P("K1_end:")
    P("s_endpgm")
    return finalize(P.L)


def gen_k2():
    P = K()
    P("s_load_dwordx2 s[4:5], s[0:1], 88")
    P("s_load_dwordx2 s[6:7], s[0:1], 0")
    P("s_load_dwordx4 s[28:31], s[0:1], 8")
    P("s_load_dwordx2 s[32:33], s[0:1], 72")
    P("v_lshrrev_b32 v1, 6, v0")
    P("v_and_b32 v2, 63, v0")
    P("v_readfirstlane_b32 s3, v1")
    P("s_cmp_ge_u32 s2, 256")
    P("s_cbranch_scc1 K2_end")
    P("s_and_b32 s36, s2, 7")
    P("s_lshr_b32 s37, s2, 5")
    P("s_bfe_u32 s38, s2, 0x20003")
    P("s_lshr_b32 s39, s2, 3")
    SLOT = 53248
    V_L16, V_L16B, V_AB1, V_AB2 = 1, 3, 4, 5
    V_P = 6
    V_WS = 10
    V_T0, V_T1, V_T2 = 16, 17, 18
    V_FLG, V_L8, V_SEL = 19, 20, 22
    P("v_lshlrev_b32 v1, 4, v2")
    P("v_add_u32 v3, 0x1000, v1")
    P("v_add_u32 v4, 0x10000, v1")
    P("v_add_u32 v5, 0x20000, v1")
    P("v_lshlrev_b32 v20, 3, v2")
    P(f"v_lshrrev_b32 v{V_T0}, 3, v2")
    P(f"v_bfe_u32 v{V_T1}, v2, 4, 1")
    P(f"v_lshlrev_b32 v{V_T1}, 1, v{V_T1}")
    P(f"v_and_b32 v{V_T2}, 7, v2")
    P(f"v_xor_b32 v{V_T1}, v{V_T1}, v{V_T2}")
    P(f"v_lshlrev_b32 v{V_T1}, 4, v{V_T1}")
    P(f"v_lshl_add_u32 v{V_T0}, v{V_T0}, 12, v{V_T1}")
    P(f"v_xor_b32 v{V_T1}, 64, v{V_T0}")
    P(f"v_mov_b32 v{V_P}, v{V_T0}")
    P(f"v_add_u32 v{V_P+1}, {32768-1024}, v{V_T0}")
    P(f"v_add_u32 v{V_P+2}, {2*(32768-1024)}, v{V_T1}")
    P(f"v_add_u32 v{V_P+3}, {3*(32768-1024)}, v{V_T1}")
    P(f"v_bfe_u32 v{V_T0}, v2, 2, 2")
    P(f"v_and_b32 v{V_T1}, 3, v2")
    P(f"v_lshl_add_u32 v{V_T0}, v{V_T0}, 3, v{V_T1}")
    P(f"v_lshlrev_b32 v{V_T0}, 7, v{V_T0}")
    P(f"v_bfe_u32 v{V_T1}, v2, 3, 1")
    P(f"v_lshlrev_b32 v{V_T1}, 2, v{V_T1}")
    P(f"v_and_b32 v{V_T2}, 2, v2")
    P(f"v_or_b32 v{V_T1}, v{V_T1}, v{V_T2}")
    P(f"v_lshrrev_b32 v{V_T2}, 4, v2")
    P(f"v_xor_b32 v{V_T1}, v{V_T1}, v{V_T2}")
    P(f"v_lshl_add_u32 v{V_T0}, v{V_T1}, 4, v{V_T0}")
    P("s_lshl_b32 s40, s3, 13")
    P(f"v_add_u32 v{V_T0}, s40, v{V_T0}")
    P(f"v_xor_b32 v{V_T1}, 64, v{V_T0}")
    for sl in range(3):
        P(f"v_add_u32 v{V_WS+2*sl}, {sl*SLOT}, v{V_T0}")
        P(f"v_add_u32 v{V_WS+2*sl+1}, {sl*SLOT}, v{V_T1}")
    P(f"v_and_b32 v{V_T0}, 15, v2")
    P(f"v_lshrrev_b32 v{V_T1}, 4, v2")
    P(f"v_lshlrev_b32 v{V_T1}, 2, v{V_T1}")
    P(f"v_sub_u32 v{V_T0}, v{V_T0}, v{V_T1}")
    P(f"v_mov_b32 v{V_T1}, 0x3f80")
    P(f"v_mov_b32 v{V_T2}, 0x3f800000")
    for r in (22, 23, 24, 25, 26, 27):
        P(f"v_mov_b32 v{r}, 0")
    for d in range(2):
        P(f"v_cmp_eq_u32 vcc, {2*d}, v{V_T0}")
        P(f"v_cndmask_b32 v{24+d}, v{24+d}, v{V_T1}, vcc")
        P(f"v_cmp_eq_u32 vcc, {2*d+1}, v{V_T0}")
        P(f"v_cndmask_b32 v{24+d}, v{24+d}, v{V_T2}, vcc")
    P("v_mov_b32 v28, v24")
    P("v_mov_b32 v29, v25")
    P("v_mov_b32 v30, v24")
    P("v_mov_b32 v31, v25")
    P(f"v_lshlrev_b32 v{V_T0}, 7, v2")
    P(f"v_mov_b32 v{V_FLG}, {hex(OOB)}")
    P("v_cmp_gt_u32 vcc, 2, v2")
    P(f"v_cndmask_b32 v{V_FLG}, v{V_FLG}, v{V_T0}, vcc")
    P("s_lshl_b32 s41, s37, 2")
    P("s_add_u32 s41, s41, s3")
    P("s_lshl_b32 s41, s41, 18")
    P("s_and_b32 s42, s36, 3")
    P("s_lshl_b32 s42, s42, 10")
    P("s_add_u32 s41, s41, s42")
    P(f"s_add_u32 s42, s41, {32*4096}")
    P("s_lshl_b32 s43, s36, 4")
    P("s_lshr_b32 s44, s3, 1")
    P("s_add_u32 s43, s43, s44")
    P("s_mul_i32 s43, s43, 40")
    P("s_mul_i32 s44, s38, 10")
    P("s_add_u32 s43, s43, s44")
    P("s_and_b32 s44, s3, 1")
    P("s_mul_i32 s44, s44, 5")
    P("s_add_u32 s43, s43, s44")
    P("s_lshl_b32 s43, s43, 10")
    P(f"s_add_u32 s43, s43, {hex(ABT)}")
    P("s_mul_i32 s45, s3, 5120")
    P("s_add_u32 s45, s45, 32768")
    P("s_lshl_b32 s46, s37, 2")
    P("s_lshr_b32 s47, s36, 1")
    P("s_add_u32 s46, s46, s47")
    P("s_lshl_b32 s47, s38, 1")
    P("s_and_b32 s48, s36, 1")
    P("s_add_u32 s47, s47, s48")
    P("s_mul_i32 s48, s3, 12")
    P("s_mul_i32 s49, s46, 48")
    P("s_add_u32 s49, s49, s48")
    P("s_lshl_b32 s49, s49, 12")
    P(f"s_add_u32 s49, s49, {hex(HH)}")
    P("s_mul_i32 s50, s47, 48")
    P("s_add_u32 s50, s50, s48")
    P("s_mul_i32 s50, s50, 5120")
    P(f"s_add_u32 s50, s50, {hex(WD)}")
    P("s_lshl_b32 s51, s39, 3")
    P("s_lshl_b32 s52, s3, 1")
    P("s_add_u32 s51, s51, s52")
    P("s_lshl_b32 s52, s51, 7")
    P(f"s_add_u32 s52, s52, {hex(FLG)}")
    P("s_lshl_b32 s53, s36, 2")
    P("s_add_u32 s52, s52, s53")
    P("s_lshl_b32 s51, s51, 3")
    P("s_add_u32 s51, s51, s36")
    P("s_mul_i32 s51, s51, 10240")
    P(f"s_add_u32 s51, s51, {hex(YP)}")
    P("s_lshl_b32 s53, s39, 3")
    P("s_add_u32 s53, s53, s36")
    P("s_lshl_b32 s54, s53, 7")
    P(f"s_add_u32 s54, s54, {hex(FLG)}")
    P("s_lshl_b32 s53, s53, 5")
    P("s_add_u32 s53, s53, s3")
    P("s_mul_i32 s53, s53, 2560")
    P(f"s_add_u32 s53, s53, {hex(YP)}")
    P("s_waitcnt lgkmcnt(0)")
    srd(P, 8, 4, WS_SIZE)
    P("s_cmp_ge_u32 s36, 4")
    P("s_cselect_b32 s34, s30, s28")
    P("s_cselect_b32 s35, s31, s29")
    srd(P, 12, 34, 2048 * 4096)
    srd(P, 16, 6, 2048 * 1280)
    srd(P, 20, 32, 2048 * 1280)

    ACC = 96
    WSF = 32
    ABP = 64
    NAB = 8
    ACCD = 0
    DF = 80
    dma_tok = {}

    def dma_stage(s):
        L = []
        sl = (s % 3) * SLOT
        L.append(I(f"s_add_u32 m0, s40, {sl}"))
        for p in range(4):
            L.append(I(f"buffer_load_dwordx4 v{V_P+p}, s[12:15], s41 offen offset:{1024*p} lds"))
        L.append(I(f"s_add_u32 m0, s40, {sl + 4096}"))
        for p in range(4):
            L.append(I(f"buffer_load_dwordx4 v{V_P+p}, s[12:15], s42 offen offset:{1024*p} lds"))
        L.append(I(f"s_add_u32 m0, s45, {sl}"))
        L.append(I("s_add_u32 s41, s41, 128"))
        for p in range(4):
            L.append(I(f"buffer_load_dwordx4 v1, s[8:11], s43 offen offset:{1024*p} lds"))
        L.append(I(f"s_add_u32 m0, s45, {sl + 4096}"))
        L.append(I("s_add_u32 s42, s42, 128"))
        L.append(I(f"buffer_load_dwordx4 v3, s[8:11], s43 offen lds"))
        dma_tok[s] = L[-1].tok
        L.append(I(f"s_add_u32 s43, s43, {80*1024}"))
        return L

    dreg, dtok = {}, {}

    def d_load(q):
        kk, j = divmod(q, 9)
        L = []
        r = dreg[q]
        if j < 4:
            i = I(f"buffer_load_dwordx4 {r}, v1, s[8:11], s50 offen offset:{1024*j}")
            L.append(i)
        elif j == 4:
            i = I(f"buffer_load_dwordx4 {r}, v3, s[8:11], s50 offen")
            L += [i, I("s_add_u32 s50, s50, 5120")]
        else:
            i = I(f"buffer_load_dwordx4 {r}, v1, s[8:11], s49 offen offset:{1024*(j-5)}")
            L.append(i)
            if j == 8:
                L.append(I("s_add_u32 s49, s49, 4096"))
        dtok[q] = i.tok
        return L
    for q in range(44):
        dreg[q] = ar(DF + 4 * q, 4)

    for s in range(3):
        P.ext(dma_stage(s))

    wtok, atok = {}, {}

    def ws_read(k, tt):
        s, kap = divmod(k, 2)
        r = WSF + 16 * (k & 1) + 4 * tt
        i = I(f"ds_read_b128 {vr(r, 4)}, v{V_WS + 2*(s % 3) + kap} offset:{4096*(tt >> 1) + 512*(tt & 1)}")
        wtok[k, tt] = i.tok
        return i

    def ab_read(f):
        k, et = divmod(f, 10)
        s, kap = divmod(k, 2)
        a = (s % 3) * SLOT + 32768 + (10 * kap + et) * 1024
        base = [1, 4, 5][a >> 16]
        i = I(f"ds_read_b128 {vr(ABP + 4*(f % NAB), 4)}, v{base} offset:{a & 0xffff}")
        atok[f] = i.tok
        return i

    PD = 4
    main = []
    main.append(I("s_barrier", need=[dma_tok[0]]))
    for tt in range(4): main.append(ws_read(0, tt))
    for f in range(PD): main.append(ab_read(f))
    issued = PD
    bar_pos = {}
    nm = 0
    for f in range(160):
        k, et = divmod(f, 10)
        s = k // 2
        fs = f % 20
        pre = []
        nxt_stage_ok = True
        if fs == 17 and s + 1 < 8:
            pre.append(I("s_barrier", need=[dma_tok[s + 1], atok[20 * s + 19]]))
            bar_pos[s + 1] = nm
            for tt in range(4): pre.append(ws_read(k + 1, tt))
        if fs == 6:
            for tt in range(4): pre.append(ws_read(k + 1, tt))
        lim = min(f + PD, 159)
        if fs < 17:
            lim = min(lim, 20 * s + 19)
        while issued <= lim:
            pre.append(ab_read(issued)); issued += 1
        ms = []
        for tt in range(4):
            d = ACC + 4 * (10 * tt + et)
            c = "0" if k == 0 else vr(d, 4)
            ms.append(I(f"v_mfma_f32_16x16x32_bf16 {vr(d, 4)}, {vr(ABP + 4*(f % NAB), 4)}, {vr(WSF + 16*(k & 1) + 4*tt, 4)}, {c}",
                        need=[atok[f], wtok[k, tt]]))
        if pre and pre[0].text == "s_barrier":
            main.append(pre[0]); pre = pre[1:]
        main += interleave(ms, pre) if pre else ms
        nm += 4
        if fs == 17 and s + 3 < 8:
            pass
        if fs == 16 and s + 1 < 8 and (s + 3) < 8:
            pass
        if fs == 0 and s + 3 < 8:
            dma_later = dma_stage(s + 3)
            bar_pos[("dma", s + 1)] = dma_later
    for s in range(1, 8):
        if ("dma", s) in bar_pos:
            st = bar_pos[s] + 6
            main = interleave(main, bar_pos[("dma", s)], st, st + 40)
    dl = []
    for q in range(44):
        dl += d_load(q)
    main = interleave(main, dl, 40, 600)
    P.ext(main)

    PK = 32
    pub = []
    pub_done = {}
    last_store = None
    n = 0
    for eh in range(2):
        for tt in range(4):
            o = PK + 10 * (n % 2); n += 1
            for e in range(5):
                d = ACC + 4 * (10 * tt + 5 * eh + e)
                pub.append(I(f"v_cvt_pk_bf16_f32 v{o+2*e}, v{d}, v{d+1}"))
                pub.append(I(f"v_cvt_pk_bf16_f32 v{o+2*e+1}, v{d+2}, v{d+3}"))
            pub.append(I(f"s_add_u32 s55, s51, {eh*81920 + tt*2560}"))
            pub.append(I(f"buffer_store_dwordx4 {vr(o, 4)}, v1, s[8:11], s55 offen sc1"))
            pub.append(I(f"buffer_store_dwordx4 {vr(o+4, 4)}, v1, s[8:11], s55 offen offset:1024 sc1"))
            pub.append(I(f"buffer_store_dwordx2 {vr(o+8, 2)}, v20, s[8:11], s55 offen offset:2048 sc1"))
            last_store = pub[-1].tok
            pub_done[eh, tt] = len(pub)
    return P, dict(pub=pub, pub_done=pub_done, last_store=last_store, dreg=dreg, dtok=dtok, d_load=d_load, ACC=ACC, ACCD=ACCD, DF=DF,
                   V_FLG=V_FLG)


def gen_k2_full():
    P, c = gen_k2()
    pub, dreg, dtok, d_load = c["pub"], c["dreg"], c["dtok"], c["d_load"]
    ACC, ACCD, DF, V_FLG = c["ACC"], c["ACCD"], c["DF"], c["V_FLG"]
    q = 44
    early = []
    for j in range(11):
        dreg[q] = vr(52 + 4 * j, 4); early += d_load(q); q += 1
    side = list(early)
    pi = 0
    for tt in range(4):
        side += pub[pi:c["pub_done"][0, tt]]; pi = c["pub_done"][0, tt]
        for e in range(5):
            dreg[q] = vr(ACC + 4 * (10 * tt + e), 4); side += d_load(q); q += 1
    side += pub[pi:]
    rec = {}
    for qq in range(75, 108):
        dreg[qq] = ar(DF + 4 * (qq - 75), 4)
        rec.setdefault((qq - 75) // 9, []).append(qq)
    flag_store = I(f"buffer_store_dword v16, v{V_FLG}, s[8:11], s52 offen sc1", need=[c["last_store"]])

    def d_mfmas(kk, order=None):
        L = []
        for tt in range(4):
            for e in range(5):
                d = ACCD + 4 * (5 * tt + e)
                cc = "0" if kk == 0 else ar(d, 4)
                qa, qb = 9 * kk + e, 9 * kk + 5 + tt
                L.append((f"v_mfma_f32_16x16x32_bf16 {ar(d, 4)}, {dreg[qa]}, {dreg[qb]}, {cc}", qa, qb))
        return L
    rec_l = {kk: [x for qq in qs for x in d_load(qq)] for kk, qs in sorted(rec.items())}
    dm = []
    for kk in range(12):
        dm += [I(t, need=[dtok[qa], dtok[qb]]) for (t, qa, qb) in d_mfmas(kk)]
    P("v_mov_b32 v16, 1")
    stream = side + [x for kk in sorted(rec_l) for x in rec_l[kk]]
    body = interleave(dm, side, 0, 80)
    body = interleave(body, rec_l[0] + rec_l[1] + rec_l[2] + rec_l[3] + [flag_store], 80, 100)
    pre = []
    A = lambda t, **kw: pre.append(I(t, **kw))
    XO, LR = 6, 10
    for j in range(3):
        A(f"v_add_u32 v17, {64*j}, v2")
        A("v_mul_u32_u24 v18, 6554, v17")
        A("v_lshrrev_b32 v18, 16, v18")
        A("v_mul_u32_u24 v13, 10, v18")
        A("v_sub_u32 v13, v17, v13")
        A("v_lshlrev_b32 v13, 4, v13")
        A(f"v_mul_u32_u24 v{LR+j}, 176, v18")
        A(f"v_add_u32 v{LR+j}, v{LR+j}, v13")
        A("v_lshrrev_b32 v14, 2, v18")
        A("v_and_b32 v15, 3, v18")
        A("v_lshl_add_u32 v14, v14, 3, v15")
        A("v_mul_u32_u24 v14, 1280, v14")
        A(f"v_add_u32 v{XO+j}, v14, v13")
        if j == 2:
            A(f"v_mov_b32 v15, {hex(OOB)}")
            A("v_cmp_gt_u32 vcc, 32, v2")
            A(f"v_cndmask_b32 v{XO+j}, v15, v{XO+j}, vcc")
    A("s_lshl_b32 s56, s46, 6")
    A("s_lshr_b32 s57, s3, 1")
    A("s_lshl_b32 s57, s57, 5")
    A("s_add_u32 s56, s56, s57")
    A("s_and_b32 s57, s3, 1")
    A("s_lshl_b32 s57, s57, 2")
    A("s_add_u32 s56, s56, s57")
    A("s_mul_i32 s56, s56, 1280")
    A("s_mul_i32 s57, s47, 160")
    A("s_add_u32 s56, s56, s57")
    A("s_lshl_b32 s57, s3, 12")
    A("s_add_u32 s57, s57, 81920")
    for j in range(3):
        A(f"v_add_u32 v{LR+j}, s57, v{LR+j}")
    A("v_and_b32 v13, 15, v2")
    A("v_mul_u32_u24 v13, 176, v13")
    A("v_lshrrev_b32 v14, 4, v2")
    A("v_lshl_add_u32 v13, v14, 3, v13")
    A("v_add_u32 v13, s57, v13")
    A("s_mul_i32 s58, s3, 20480")
    A("v_add_u32 v14, s58, v1")
    A("s_mul_i32 s58, s3, 5120")
    A("v_add_u32 v15, s58, v1")
    A("v_add_u32 v9, 40960, v15")
    A("v_and_b32 v17, 7, v2")
    A("v_lshlrev_b32 v17, 2, v17")
    XR = 32
    xt = []
    for j in range(3):
        A(f"buffer_load_dwordx4 {vr(XR+4*j, 4)}, v{XO+j}, s[16:19], s56 offen")
        xt.append(pre[-1].tok)
    A("buffer_load_dword v18, v17, s[8:11], s54 offen sc1")
    ftok = pre[-1].tok
    body = interleave(body, pre, 100, 150)
    idx = [i for i, ins in enumerate(body) if ins.kind == "mfma"]
    cut = idx[160]
    P.ext(body[:cut])
    P("v_cmp_ne_u32 vcc, 0, v18", need=[ftok])
    P("s_mov_b32 s59, 0x4000")
    P("s_nop 3")
    P("s_cmp_eq_u64 vcc, -1")
    P("s_cbranch_scc1 K2_flag_ok")
    P("K2_poll:")
    P("buffer_load_dword v18, v17, s[8:11], s54 offen sc1", tok=Tok("none"))
    P("s_waitcnt vmcnt(0)", flags=["raw"])
    P("v_cmp_ne_u32 vcc, 0, v18")
    P("s_sub_u32 s59, s59, 1")
    P("s_cmp_eq_u32 s59, 0")
    P("s_cbranch_scc1 K2_flag_ok")
    P("s_nop 1")
    P("s_cmp_eq_u64 vcc, -1")
    P("s_cbranch_scc0 K2_poll")
    P("K2_flag_ok:")
    P("s_barrier")
    gat = []
    gtok = {}
    for s in range(8):
        b = ACC + 40 * (s >> 1) + 20
        o = b + 8 * (s & 1)
        gat.append(I(f"s_add_u32 s55, s53, {s*10240}"))
        gat.append(I(f"buffer_load_dwordx4 {vr(o, 4)}, v1, s[8:11], s55 offen sc1")); gtok[s, 0] = gat[-1].tok
        gat.append(I(f"buffer_load_dwordx4 {vr(o+4, 4)}, v1, s[8:11], s55 offen offset:1024 sc1")); gtok[s, 1] = gat[-1].tok
        gat.append(I(f"buffer_load_dwordx2 {vr(b+16+2*(s & 1), 2)}, v20, s[8:11], s55 offen offset:2048 sc1")); gtok[s, 2] = gat[-1].tok
    rest = interleave(body[cut:], gat, 0, 30)
    P.ext(rest)
    wt = []
    for t in range(20):
        wt.append(P(f"ds_write_b128 v14, {ar(ACCD + 4*t, 4)} offset:{1024*t}"))
    Y = 64
    for s in range(8):
        b = ACC + 40 * (s >> 1) + 20 + 8 * (s & 1)
        for e in range(4):
            sel = "v[24:27]" if e % 2 == 0 else "v[22:25]"
            cc = "0" if s == 0 else vr(Y + 4 * e, 4)
            P(f"v_mfma_f32_16x16x32_bf16 {vr(Y+4*e, 4)}, {sel}, {vr(b + 4*(e // 2), 4)}, {cc}", need=[gtok[s, e // 2]])
        if s & 1:
            b = ACC + 40 * (s >> 1) + 36
            cc = "0" if s == 1 else vr(Y + 16, 4)
            P(f"v_mfma_f32_16x16x32_bf16 {vr(Y+16, 4)}, v[28:31], {vr(b, 4)}, {cc}", need=[gtok[s, 2], gtok[s - 1, 2]])
    P("s_barrier", need=[wt[-1]])
    DR = ACC
    P("s_nop 7")
    rt = {}
    for s in range(4):
        for e in range(5):
            rt[s, e] = P(f"ds_read_b128 {vr(DR + 20*s + 4*e, 4)}, v{15 if s < 2 else 9} offset:{20480*(s & 1) + 1024*e}")
    L2E = 1.4426950408889634
    pw = []
    for e in range(5):
        R = range(4)
        d = DR + 4 * e
        for i in R: P(f"v_add_f32 v{d+i}, v{d+i}, v{d+20+i}", need=[rt[1, e]])
        for i in R: P(f"v_add_f32 v{d+40+i}, v{d+40+i}, v{d+60+i}", need=[rt[3, e]])
        for i in R: P(f"v_add_f32 v{d+i}, v{d+i}, v{d+40+i}")
        for i in R: P(f"v_mul_f32 v{d+20+i}, {f2h(-L2E)}, v{d+i}")
        for i in R: P(f"v_exp_f32 v{d+20+i}, v{d+20+i}")
        for i in R: P(f"v_mul_f32 v{d+i}, v{d+i}, v{Y+4*e+i}")
        for i in R: P(f"v_add_f32 v{d+20+i}, 1.0, v{d+20+i}")
        for i in R: P(f"v_rcp_f32 v{d+20+i}, v{d+20+i}")
        for i in R: P(f"v_mul_f32 v{d+i}, v{d+i}, v{d+20+i}")
        P(f"v_cvt_pk_bf16_f32 v{d+40}, v{d}, v{d+1}")
        P(f"v_cvt_pk_bf16_f32 v{d+41}, v{d+2}, v{d+3}")
        pw.append(P(f"ds_write_b64 v13, {vr(d+40, 2)} offset:{32*e}"))
    PR = 44
    pr = []
    for j in range(3):
        pr.append(P(f"ds_read_b128 {vr(PR+4*j, 4)}, v{LR+j}"))
    for j in range(3):
        for i in range(4):
            p, x = PR + 4 * j + i, XR + 4 * j + i
            P(f"v_lshlrev_b32 v56, 16, v{p}", need=[pr[j], xt[j]])
            P(f"v_lshlrev_b32 v57, 16, v{x}")
            P(f"v_and_b32 v{p}, 0xffff0000, v{p}")
            P(f"v_and_b32 v{x}, 0xffff0000, v{x}")
            P("v_add_f32 v56, v56, v57")
            P(f"v_add_f32 v{p}, v{p}, v{x}")
            P(f"v_cvt_pk_bf16_f32 v{p}, v56, v{p}")
        P(f"buffer_store_dwordx4 {vr(PR+4*j, 4)}, v{XO+j}, s[20:23], s56 offen")
    P("K2_end:")
    P("s_endpgm")
    return finalize(P.L)


def kernel_desc(label, nv, acc, nsgpr=102):
    return (f".amdhsa_kernel {label}\n  .amdhsa_next_free_vgpr {nv}\n  .amdhsa_next_free_sgpr {nsgpr}\n  .amdhsa_accum_offset {acc}\n"
            "  .amdhsa_group_segment_fixed_size 0\n  .amdhsa_kernarg_size 96\n  .amdhsa_user_sgpr_count 2\n"
            "  .amdhsa_user_sgpr_kernarg_segment_ptr 1\n  .amdhsa_system_sgpr_workgroup_id_x 1\n.end_amdhsa_kernel\n")


def build_all(path, which=("k0", "k1", "k2")):
    ks = {
        "k0": ("prep_kernel", gen_k0, 1016, 16384, 64, 64),
        "k1": ("proj_kernel", gen_k1, 256, 163840, 416, 256),
        "k2": (NAME + "_kernel", gen_k2_full, 256, 163840, 512, 256),
    }
    hdr = "; generated by work/gen1.py\n"
    for k in which:
        lab, _, g, lds, _, _ = ks[k]
        hdr += f"; @launch kernel={lab} grid=({g},1,1) block=(256,1,1) lds={lds}\n"
    s = hdr + '.amdgcn_target "amdgcn-amd-amdhsa--gfx950"\n.text\n'
    for k in which:
        lab, fn, *_ = ks[k]
        s += f".globl {lab}\n.p2align 8\n.type {lab},@function\n{lab}:\n" + text(fn())
    s += '.section .rodata,"a"\n'
    for k in which:
        lab, _, g, lds, nv, acc = ks[k]
        s += ".p2align 6\n" + kernel_desc(lab, nv, acc)
    open(path, "w").write(s)


if __name__ == "__main__":
    build_all(sys.argv[1] if len(sys.argv) > 1 else f"cdna_kernels/{NAME}.s")
```

```python
import re

TRANS = ("v_exp_f32", "v_log_f32", "v_rcp_f32", "v_rsq_f32", "v_sqrt_f32", "v_sin_f32", "v_cos_f32")


class Tok:
    __slots__ = ("cls", "seq", "name")

    def __init__(self, cls, name=""):
        self.cls = cls
        self.seq = None
        self.name = name


class I:
    __slots__ = ("text", "kind", "tok", "need", "wr", "rd", "srcc", "flags")

    def __init__(self, text, need=(), tok=None, flags=()):
        self.text = text.strip()
        self.need = [t for t in need if t is not None]
        self.flags = set(flags)
        self.kind = classify(self.text)
        self.tok = tok
        if self.kind == "vm" and tok is None:
            self.tok = Tok("vm")
        if self.kind == "ds" and tok is None:
            self.tok = Tok("lgkm")
        self.wr, self.rd, self.srcc = regs_of(self.text, self.kind)


def classify(t):
    op = t.split()[0]
    if op.endswith(":"):
        return "label"
    if op.startswith(";") or op.startswith("."):
        return "meta"
    if op.startswith("v_mfma"):
        return "mfma"
    if op.startswith("v_"):
        base = op.replace("_e32", "").replace("_e64", "")
        return "trans" if base in TRANS else "valu"
    if op.startswith("ds_"):
        return "ds"
    if op.startswith("buffer_") or op.startswith("global_"):
        if op.startswith("buffer_inv") or op.startswith("buffer_wbl2"):
            return "vm"
        return "vm"
    if op.startswith("s_load") or op.startswith("s_memtime") or op.startswith("s_memrealtime"):
        return "smem"
    if op.startswith("s_"):
        return "salu"
    raise ValueError("unknown instr " + t)


_R = re.compile(r"^(-|\|)?(neg\()?([vas])(\d+)$|^([vas])\[(\d+):(\d+)\]$")


def parse_reg(o):
    o = o.strip()
    o = o.lstrip("-").strip("|")
    m = re.match(r"^([vas])(\d+)$", o)
    if m:
        return {(m.group(1), int(m.group(2)))}
    m = re.match(r"^([vas])\[(\d+):(\d+)\]$", o)
    if m:
        return {(m.group(1), i) for i in range(int(m.group(2)), int(m.group(3)) + 1)}
    if o in ("vcc", "vcc_lo", "vcc_hi"):
        return {("x", "vcc")}
    if o in ("exec", "exec_lo", "exec_hi"):
        return {("x", "exec")}
    if o == "m0":
        return {("x", "m0")}
    return set()


def regs_of(t, kind):
    if kind in ("label", "meta"):
        return set(), set(), set()
    t = t.split(";")[0]
    parts = t.split(None, 1)
    op = parts[0]
    ops = []
    if len(parts) > 1:
        for o in parts[1].split(","):
            o = o.strip()
            if o:
                ops.append(o.split()[0])
    R = [parse_reg(o) for o in ops]
    wr, rd, srcc = set(), set(), set()
    U = lambda l: set().union(*l) if l else set()
    if kind == "mfma":
        wr = R[0]
        rd = R[1] | R[2] | R[3]
        srcc = R[3]
    elif kind in ("valu", "trans"):
        if "swap" in op:
            wr = R[0] | R[1]
            rd = R[0] | R[1]
        elif op.startswith("v_cmp"):
            wr = R[0]
            rd = U(R[1:])
        else:
            wr = R[0]
            rd = U(R[1:])
            if op.startswith(("v_fmac", "v_mac", "v_dot2c", "v_pk_fmac")) or "dpp" in t or "row_" in t or "quad_perm" in t:
                rd = rd | R[0]
            if op.startswith("v_cndmask") and len(R) == 3:
                rd = rd | {("x", "vcc")}
    elif kind == "ds":
        if op.startswith("ds_read") or op.startswith("ds_bpermute") or op.startswith("ds_swizzle"):
            wr = R[0]
            rd = U(R[1:])
        else:
            rd = U(R)
    elif kind == "vm":
        is_lds = bool(re.search(r"\blds\b", t))
        if op.startswith(("buffer_load", "global_load")) and not is_lds:
            wr = R[0]
            rd = U(R[1:])
        elif "atomic" in op and re.search(r"\bsc0\b", t):
            wr = R[0]
            rd = U(R)
        else:
            rd = U(R)
            if is_lds:
                rd = rd | {("x", "m0")}
    elif kind == "smem":
        wr = R[0]
        rd = U(R[1:])
    elif kind == "salu":
        if op.startswith(("s_cmp", "s_waitcnt", "s_barrier", "s_branch", "s_cbranch", "s_nop", "s_endpgm", "s_setprio",
                          "s_sleep", "s_bitcmp")):
            rd = U(R)
        else:
            wr = R[0] if R else set()
            rd = U(R[1:])
            if "saveexec" in op:
                wr = wr | {("x", "exec")}
    return wr, rd, srcc


def interleave(main, side, start=0, end=None, per_gap=None):
    idx = [i for i, ins in enumerate(main) if ins.kind == "mfma"]
    if end is None:
        end = len(idx)
    n = end - start
    assert n > 0
    out = []
    si = 0
    mi = 0
    for i, ins in enumerate(main):
        out.append(ins)
        if ins.kind == "mfma":
            if start <= mi < end:
                target = ((mi - start + 1) * len(side) + n - 1) // n if per_gap is None else min(len(side), (mi - start + 1) * per_gap)
                while si < min(target, len(side)):
                    out.append(side[si])
                    si += 1
                if mi == end - 1:
                    while si < len(side):
                        out.append(side[si])
                        si += 1
            mi += 1
    assert si == len(side)
    return out


def states(ins):
    if ins.kind in ("label", "meta"):
        return 0
    if ins.text.startswith("s_nop"):
        return int(ins.text.split()[1]) + 1
    return 1


def is_wide_store(ins):
    op = ins.text.split()[0]
    return ins.kind == "vm" and op in ("buffer_store_dwordx4", "buffer_store_dwordx3", "global_store_dwordx4", "global_store_dwordx3")


def need_states(p, c):
    n = 0
    pv = p.kind in ("valu", "trans")
    cv = c.kind in ("valu", "trans")
    cop = c.text.split()[0]
    if p.kind == "mfma":
        passes = 4 if "16x16x32" in p.text else 8
        big = {4: 8, 8: 12}[passes]
        if c.kind == "mfma":
            ab = c.rd - c.srcc if c.srcc else c.rd
            t = c.text.split(None, 1)[1].split(",")
            abr = parse_reg(t[1].split()[0]) | parse_reg(t[2].split()[0])
            if p.wr & abr:
                n = max(n, big)
            if p.wr & c.srcc and p.wr != c.srcc:
                n = max(n, {4: 6, 8: 10}[passes])
            if p.wr & c.wr and not (p.wr & c.srcc):
                n = max(n, {4: 6, 8: 10}[passes])
        elif c.kind in ("valu", "trans", "vm", "ds"):
            if p.wr & (c.rd | c.wr):
                n = max(n, big)
            if cv and (p.srcc & c.wr):
                n = max(n, {4: 3, 8: 7}[passes])
    if pv:
        vw = {r for r in p.wr if r[0] in "va"}
        sw = {r for r in p.wr if r[0] == "s" or r == ("x", "vcc")}
        if c.kind == "mfma" and vw & c.rd:
            n = max(n, 2)
        if c.kind == "mfma" and ("x", "exec") in p.wr:
            n = max(n, 4)
        if cv and vw & c.rd:
            if "permlane" in cop or "dpp" in c.text or "row_" in c.text or "quad_perm" in c.text:
                n = max(n, 2)
            if cop.startswith(("v_readfirstlane", "v_readlane")):
                n = max(n, 1)
            if p.kind == "trans" and c.kind != "trans":
                n = max(n, 1)
            if p.kind == "trans":
                n = max(n, 1)
            if "op_sel" in p.text or "sdwa" in p.text:
                n = max(n, 1)
        if p.text.startswith("v_dot") and (vw & (c.rd | c.wr)):
            pop = p.text.split()[0]
            if cop != pop:
                n = max(n, 3)
            else:
                t = c.text.split(None, 1)[1].split(",")
                if vw & (parse_reg(t[1].split()[0]) | parse_reg(t[2].split()[0])):
                    n = max(n, 3)
        if sw & c.rd:
            if c.kind == "vm":
                n = max(n, 5)
            elif cv:
                n = max(n, 4 if cop.startswith(("v_readlane", "v_writelane")) else 2)
    if p.kind == "salu" and ("x", "m0") in p.wr and ("x", "m0") in c.rd and c.kind in ("vm", "ds"):
        n = max(n, 1)
    if is_wide_store(p):
        data = parse_reg(p.text.split(None, 1)[1].split(",")[0].split()[0])
        if data & c.wr:
            n = max(n, 2)
    return n


def finalize(instrs, hazard_window=14):
    out = []
    cnt = {"vm": 0, "lgkm": 0}
    done = {"vm": 0, "lgkm": 0}
    mx = {"vm": 63, "lgkm": 15}
    for ins in instrs:
        req = {}
        for t in ins.need:
            assert t.seq is not None, f"token {t.name} needed before issue by: {ins.text}"
            if t.seq + 1 > done[t.cls]:
                req[t.cls] = max(req.get(t.cls, 0), t.seq + 1)
        if req:
            parts = []
            for c in ("vm", "lgkm"):
                if c in req:
                    n = min(cnt[c] - req[c], mx[c])
                    parts.append(f"{'vmcnt' if c == 'vm' else 'lgkmcnt'}({n})")
                    done[c] = max(done[c], cnt[c] - n)
            out.append(I("s_waitcnt " + " ".join(parts)))
        if ins.text.startswith("s_waitcnt") and "raw" not in ins.flags:
            m = re.search(r"vmcnt\((\d+)\)", ins.text)
            if m:
                done["vm"] = max(done["vm"], cnt["vm"] - int(m.group(1)))
            m = re.search(r"lgkmcnt\((\d+)\)", ins.text)
            if m:
                done["lgkm"] = max(done["lgkm"], cnt["lgkm"] - int(m.group(1)))
        if ins.tok is not None and ins.tok.cls != "none":
            ins.tok.seq = cnt[ins.tok.cls]
            cnt[ins.tok.cls] += 1
        if ins.text != "; nop-need":
            out.append(ins)
    res = []
    for ins in out:
        if ins.kind in ("label", "meta"):
            res.append(ins)
            continue
        dist = 0
        pad = 0
        for p in reversed(res):
            if dist >= hazard_window:
                break
            n = need_states(p, ins)
            if n > dist:
                pad = max(pad, n - dist)
            dist += states(p)
        while pad > 0:
            k = min(pad, 16)
            res.append(I(f"s_nop {k - 1}"))
            pad -= k
        res.append(ins)
    return res


def text(instrs):
    L = []
    for i in instrs:
        if i.kind == "label":
            L.append(i.text)
        else:
            L.append("  " + i.text)
    return "\n".join(L) + "\n"


def vr(b, n=1, f="v"):
    return f"{f}{b}" if n == 1 else f"{f}[{b}:{b + n - 1}]"


def ar(b, n=1):
    return vr(b, n, "a")


def sr(b, n=1):
    return vr(b, n, "s")


def wait_for(*toks):
    return I("; nop-need", need=toks)


def cost(ins):
    if isinstance(ins, (list, tuple)):
        return sum(cost(i) for i in ins)
    if ins.kind in ("label", "meta"):
        return 0
    if ins.kind == "trans":
        return 8
    if ins.text.startswith("v_dot"):
        return 8
    return 4


class Sched:
    def __init__(self):
        self.m = []
        self.gap = [[]]
        self.used = [0]

    def n(self):
        return len(self.m)

    def mfma(self, ins):
        self.m.append(ins)
        self.gap.append([])
        self.used.append(0)

    def put(self, g, items, front=False):
        items = [x for it in items for x in (it if isinstance(it, (list, tuple)) else [it])]
        if front:
            self.gap[g] = items + self.gap[g]
        else:
            self.gap[g] += items
        self.used[g] += cost(items)

    def _try(self, stream, start, end, cap, spread):
        used = {}
        free = [max(0, cap - self.used[g]) for g in range(start, end)]
        tot_free = sum(f - f % 4 for f in free)
        tot = cost(stream)
        if tot > tot_free:
            return None
        pos = []
        g = start
        acc_free = 0
        acc_cost = 0
        for it in stream:
            c = cost(it)
            while True:
                if g >= end:
                    return None
                f = free[g - start] - used.get(g, 0)
                ok = f >= c or (c > cap and used.get(g, 0) == 0 and self.used[g] == 0)
                if ok and spread:
                    ok = acc_cost * tot_free <= (acc_free + free[g - start] - free[g - start] % 4) * tot * 1.0 - 1e-9 or acc_cost == 0
                if ok:
                    break
                acc_free += free[g - start] - free[g - start] % 4
                g += 1
            used[g] = used.get(g, 0) + c
            acc_cost += c
            pos.append(g)
        return pos

    def place(self, stream, start, end, cap=8, spread=False):
        if not stream:
            return start
        assert start < end <= len(self.gap), (start, end, len(self.gap))
        while True:
            pos = self._try(stream, start, end, cap, spread)
            if pos is not None:
                break
            cap += 4
            assert cap < 4000
        for it, g in zip(stream, pos):
            self.put(g, [it])
        return pos[-1]

    def flat(self):
        out = []
        for g, ins in enumerate(self.m):
            out += self.gap[g]
            out.append(ins)
        out += self.gap[len(self.m)]
        return out

    def est_cycles(self, a=0, b=None):
        b = len(self.m) if b is None else b
        return sum(max(16, 8 + self.used[g]) for g in range(a, b))
```

```python
import sys, struct, re
sys.path.insert(0, "work")
from asmlib import *

NAME = "recurrent_scan__spectral_fnet__glu_gated_geglu__prompt"
W0, RF, STAT, CSD = 0, 0x1000, 0x8000, 0x10000
ABF, HF, WDF, YF = 0x40000, 0x41000, 0x43000, 0x44000
WD, ABT, HH, YP, TSB, WS_SIZE = 0x100000, 0x300000, 0x800000, 0xE00000, 0x1900000, 0x1A00000
OOB = 0x7ff00000
SLOT = 36864
SPARE = 4 * SLOT
C1 = -2.0 * 0.7978845608028654 * 1.4426950408889634
L2E = 1.4426950408889634
MF = "v_mfma_f32_16x16x32_bf16"

CFG = dict(TS=False, nt_x="", nt_w="", nt_ws="", rot=True, pro=2,
           st_ld=(16, 13), st_ck=(19, 15), ab_end=24, ab_flag=30, abp_ld=33, abp_ck=35,
           epb_end=58, hb_flag=62, hp_ld=64, hp_ck=66, yflag=130, yp_ld=170, yp_ck=190)


def f2h(f):
    return hex(struct.unpack("<I", struct.pack("<f", f))[0])


S_AUX, S_WS, S_X, S_GU, S_WA, S_WSQ, S_OUT = 4, 8, 12, 40, 44, 48, 52
sXQ, sRB, sCG, sCB4, sT64, sEB8, sB32, sKS4 = 56, 57, 58, 59, 60, 61, 62, 63
sNON, sSPIN, sW4K, sW5K, sSX, sSW, sSWS, sSWB = 64, 65, 66, 67, 68, 69, 70, 71
sAB = 72
sHB, sWDB, sYPUB, sYGA, sXO, sWDT, sHT, sYT = 76, 77, 78, 79, 80, 81, 82, 83
sU0, sU1 = 100, 101
sT0, sT1, sT2, sT3 = 16, 17, 18, 19
sSO, sSTL, sCSL, sEA0, sEA1, sEB0, sEB1, sFA, sFB = 21, 22, 23, 24, 25, 26, 27, 28, 29
sPAB, sPH, sPWD, sPY, sFY, sJ3D, sFJ, sRF, sLEAD, sSGN = 30, 31, 32, 33, 34, 35, 36, 37, 38, 39
sH8 = 4
STS = 84

V_G = 0
V_X, V_GU, V_WD, R_X, R_WD, R_GU = 4, 8, 12, 18, 22, 26
VJ3R, VJ3 = 12, 13
OWN, XU = 4, 24
V_WS, R_WS, R_AB, V_AB = 44, 48, 52, 54
ST, ONES, SEL = 56, 64, 56
V_CA, V_CR, V_NON, V_L0, V_POLL, V_XO, V_ST, V_H, TMP = 68, 69, 71, 72, 73, 74, 75, 76, 80
V_FAB, V_FH, V_FWD, V_FY, V_DW = 88, 89, 90, 91, 92
ACCA, ACCB, CSB = 96, 176, 240
FB = 160
ACS = 240


def srd(dst, lo, nbytes):
    return [I(f"s_mov_b32 s{dst}, s{lo}"), I(f"s_and_b32 s{dst+1}, s{lo+1}, 0xffff"),
            I(f"s_mov_b32 s{dst+2}, {hex(nbytes)}"), I(f"s_mov_b32 s{dst+3}, 0x20000")]


def srd_sel(dst, lo0, lo1, nbytes):
    return [I(f"s_cselect_b32 s{dst}, s{lo1}, s{lo0}"), I(f"s_cselect_b32 s{dst+1}, s{lo1+1}, s{lo0+1}"),
            I(f"s_and_b32 s{dst+1}, s{dst+1}, 0xffff"), I(f"s_mov_b32 s{dst+2}, {hex(nbytes)}"), I(f"s_mov_b32 s{dst+3}, 0x20000")]


class K:
    def __init__(self):
        self.L = []

    def __call__(self, t, need=(), **kw):
        i = I(t, need=need, **kw)
        self.L.append(i)
        return i.tok

    def ext(self, l):
        self.L.extend(l)


def stamp(i):
    if not CFG["TS"]:
        return []
    return [[I("s_waitcnt lgkmcnt(0)"), I(f"s_memrealtime s[{STS+2*i}:{STS+2*i+1}]"), I("s_waitcnt lgkmcnt(0)")]]


def flat1(l):
    return [x for it in l for x in (it if isinstance(it, (list, tuple)) else [it])]


def stamp_end(n, vt):
    if not CFG["TS"]:
        return []
    L = [I("s_waitcnt vmcnt(0)")] + flat1(stamp(n - 1))
    for i in range(8):
        L.append(I(f"v_mov_b32 v{vt+i}, s{STS+2*min(i, n-1)}"))
    L += [I("s_lshl_b32 s16, s2, 2"), I("s_add_u32 s16, s16, s3"), I("s_lshl_b32 s16, s16, 5"), I(f"s_add_u32 s16, s16, {hex(TSB)}"),
          I(f"buffer_store_dwordx4 v[{vt}:{vt+3}], v{V_L0}, s[8:11], s16 offen"),
          I(f"buffer_store_dwordx4 v[{vt+4}:{vt+7}], v{V_L0}, s[8:11], s16 offen offset:16")]
    return L


T0, T1, T2, T3 = TMP, TMP + 1, TMP + 2, TMP + 3
SF, SD1, SD2, SA = ACCB, ACCB + 20, ACCB + 24, ACCB + 28
CSR, NM, VK = ACCB + 32, ACCB + 52, ACCB + 60


def gen_head():
    P = K()
    P.ext(flat1(stamp(0)))
    P("s_load_dwordx16 s[16:31], s[0:1], 0")
    P("s_load_dwordx8 s[32:39], s[0:1], 64")
    P("v_lshrrev_b32 v1, 6, v0")
    P("v_and_b32 v2, 63, v0")
    P("v_readfirstlane_b32 s3, v1")
    P("s_cmp_ge_u32 s2, 256")
    P("s_cbranch_scc1 L_end")
    P(f"s_bfe_u32 s{sXQ}, s2, 0x10002")
    P(f"s_bfe_u32 s{sRB}, s2, 0x30003")
    P(f"s_and_b32 s{sU0}, s2, 1")
    P(f"s_lshl3_add_u32 s{sRB}, s{sU0}, s{sRB}")
    P(f"s_lshr_b32 s{sCB4}, s2, 6")
    P(f"s_lshl2_add_u32 s{sCG}, s{sXQ}, s{sCB4}")
    P(f"s_bfe_u32 s{sKS4}, s2, 0x20001")
    P(f"s_lshl1_add_u32 s{sT64}, s{sRB}, s{sXQ}")
    P(f"s_and_b32 s{sEB8}, s{sKS4}, 1")
    P(f"s_lshl1_add_u32 s{sEB8}, s{sCB4}, s{sEB8}")
    P(f"s_mov_b32 s{sSPIN}, 30000")
    P(f"s_lshl_b32 s{sW4K}, s3, 12")
    P(f"s_mul_i32 s{sW5K}, s3, 5120")
    P(f"s_lshl2_add_u32 s{sB32}, s{sRB}, s3")
    P(f"s_mul_i32 s{sSX}, s{sB32}, {32*1280}")
    P(f"s_and_b32 s{sU0}, s3, 1")
    P(f"s_mul_i32 s{sSWB}, s{sU0}, {32*3072}")
    P(f"s_lshl_b32 s{sU0}, s{sU0}, 6")
    P("v_lshlrev_b32 v1, 4, v2")
    P("v_add_u32 v3, 0x1000, v1")
    P(f"v_bfe_u32 v{T1}, v2, 4, 1")
    P(f"v_lshlrev_b32 v{T1}, 1, v{T1}")
    P(f"v_and_b32 v{T2}, 7, v2")
    P(f"v_xor_b32 v{T1}, v{T1}, v{T2}")
    P(f"v_lshlrev_b32 v{T1}, 4, v{T1}")
    P(f"v_lshrrev_b32 v{T0}, 3, v2")
    P(f"v_mul_u32_u24 v{V_X}, 1280, v{T0}")
    P(f"v_add_u32 v{V_X}, v{V_X}, v{T1}")
    P(f"v_add_u32 v{V_X+1}, {8*1280-1024}, v{V_X}")
    P(f"v_xor_b32 v{T2}, 64, v{V_X}")
    P(f"v_add_u32 v{V_X+2}, {2*(8*1280-1024)}, v{T2}")
    P(f"v_add_u32 v{V_X+3}, {3*(8*1280-1024)}, v{T2}")
    P(f"v_mul_u32_u24 v{V_GU}, 3072, v{T0}")
    P(f"v_add_u32 v{V_GU}, v{V_GU}, v{T1}")
    P(f"v_xor_b32 v{T3}, 64, v{V_GU}")
    P(f"v_add_u32 v{V_GU+1}, {8*3072-1024}, v{T3}")
    P(f"v_add_u32 v{V_GU+2}, {2*(8*3072-1024)}, v{V_GU}")
    P(f"v_add_u32 v{V_GU+3}, {3*(8*3072-1024)}, v{T3}")
    P(f"v_xor_b32 v{V_WD}, s{sU0}, v{V_X}")
    P(f"v_xor_b32 v{T3}, 64, v{V_WD}")
    P(f"v_add_u32 v{V_WD+1}, {8*1280-1024}, v{T3}")
    P(f"v_add_u32 v{V_WD+2}, {2*(8*1280-1024)}, v{V_WD}")
    P(f"v_add_u32 v{V_WD+3}, {3*(8*1280-1024)}, v{T3}")
    P(f"v_add_u32 v{V_WD+4}, {4*8*1280}, v{V_WD}")
    P(f"v_lshl_add_u32 v{V_WS}, v{T0}, 12, v{T1}")
    P(f"v_bfe_u32 v{T2}, v2, 2, 2")
    P(f"v_and_b32 v{T3}, 3, v2")
    P(f"v_lshrrev_b32 v{T1}, 4, v2")
    P(f"v_mul_u32_u24 v{SA}, 1280, v{T2}")
    P(f"v_lshl_add_u32 v{SA}, v{T3}, 6, v{SA}")
    P(f"v_lshl_add_u32 v{SA}, v{T1}, 4, v{SA}")
    P("s_waitcnt lgkmcnt(0)")
    P.ext(srd(S_WS, 38, WS_SIZE))
    P.ext(srd(S_X, 16, 2048 * 1280))
    P("s_bitcmp1_b32 s2, 1")
    P("s_cbranch_scc1 O_prog")
    return finalize(P.L)


def gen_prog(typ):
    pf = "O" if typ else "E"
    P = K()
    slow = []
    ntx, ntw, ntws = CFG["nt_x"], CFG["nt_w"], CFG["nt_ws"]

    def tag(L, name):
        for i in flat1(L):
            i.flags.add("S:" + name)
        return L

    dma_tok = {}

    def dma_x(s):
        L = [I(f"s_add_u32 m0, s{sW4K}, {(s % 4)*SLOT}")]
        for p in range(4):
            L.append(I(f"buffer_load_dwordx4 v{V_X+p}, s[{S_X}:{S_X+3}], s{sSX} offen offset:{1024*p}{ntx} lds"))
        L.append(I(f"s_add_u32 s{sSX}, s{sSX}, 128"))
        return L

    def dma_gu(lds, sreg):
        L = [I(f"s_add_u32 m0, s{sW4K}, {lds}")]
        for p in range(4):
            L.append(I(f"buffer_load_dwordx4 v{V_GU+p}, s[{S_GU}:{S_GU+3}], s{sreg} offen offset:{1024*p}{ntw} lds"))
        L.append(I(f"s_add_u32 s{sreg}, s{sreg}, {64*3072}"))
        return L

    def dma_wd(s):
        b = (s % 4) * SLOT + 16384
        L = [I(f"s_add_u32 m0, s{sW5K}, {b}")]
        for p in range(4):
            L.append(I(f"buffer_load_dwordx4 v{V_WD+p}, s[{S_WA}:{S_WA+3}], s{sSW} offen offset:{1024*p}{ntw} lds"))
        L.append(I(f"s_add_u32 m0, s{sW5K}, {b + 4096}"))
        L.append(I(f"buffer_load_dwordx4 v{V_WD+4}, s[{S_WA}:{S_WA+3}], s{sSW} offen{ntw} lds"))
        L.append(I(f"s_add_u32 s{sSW}, s{sSW}, 128"))
        return L

    def last_vm(L):
        return [i for i in L if i.kind == "vm"][-1].tok

    def dma_stage(s):
        if s < 10:
            L = dma_x(s) + (dma_wd(s) if typ else dma_gu((s % 4) * SLOT + 16384, sSW))
        else:
            L = dma_gu((s % 4) * SLOT, sSWB) + dma_gu((s % 4) * SLOT + 16384, sSWB)
        dma_tok[s] = last_vm(L)
        return tag(L, f"dma{s}")

    def dma_ws(s):
        L = [I(f"s_add_u32 m0, s{sW4K}, {(s % 4)*SLOT}"), I(f"s_mul_i32 s{sAB + s % 4}, s{sSWS}, 160")]
        for p in range(4):
            L.append(I(f"buffer_load_dwordx4 v{V_WS+p}, s[{S_WSQ}:{S_WSQ+3}], s{sSWS} offen offset:{1024*p}{ntws} lds"))
        L.append(I(f"s_add_u32 s{sSWS}, s{sSWS}, 128"))
        L.append(I(f"s_and_b32 s{sSWS}, s{sSWS}, 0x7ff"))
        return tag(L, f"ws{s}")

    def dma_ab(s):
        b = (s % 4) * SLOT + 16384
        L = [I(f"s_add_u32 m0, s{sW5K}, {b}")]
        for p in range(4):
            L.append(I(f"buffer_load_dwordx4 v{V_AB}, s[8:11], s{sAB + s % 4} offen offset:{1024*p} sc1 lds"))
        L.append(I(f"s_add_u32 m0, s{sW5K}, {b + 4096}"))
        L.append(I(f"buffer_load_dwordx4 v{V_AB+1}, s[8:11], s{sAB + s % 4} offen sc1 lds"))
        dma_tok[s] = L[-1].tok
        return tag(L, f"ab{s}")

    npoll = [0]

    def poll(loads, check):
        k = npoll[0]; npoll[0] += 1
        li = [I(t) for t in loads]
        toks = [i.tok for i in li if i.tok is not None]
        chk = check(toks)
        grp = [chk[-1], I(f"s_cbranch_vccnz {pf}_slow{k}"), I(f"{pf}_ok{k}:")]
        S_ = [I(f"{pf}_slow{k}:")] + [I(t) for t in loads] + [I("s_waitcnt vmcnt(0)")] + check([])
        S_ += [I(f"s_cbranch_vccz {pf}_ok{k}"), I(f"s_sub_u32 s{sSPIN}, s{sSPIN}, 1"), I(f"s_cmp_gt_i32 s{sSPIN}, 0"),
               I(f"s_cbranch_scc1 {pf}_slow{k}"), I(f"s_branch {pf}_ok{k}")]
        slow.extend(finalize(S_))
        return li, chk[:-1] + [grp]

    def flag_poll(voff, soff):
        return poll([f"buffer_load_dword v{V_POLL}, v{voff}, s[8:11], s{soff} offen sc1"],
                    lambda need: [I(f"v_cmp_ne_u32 vcc, s{sNON}, v{V_POLL}", need=need)])

    def tag_check(regs):
        def chk(need):
            L = [I(f"v_xor_b32 v{V_POLL}, s{sNON}, v{regs[0]}", need=need)]
            for r in regs[1:]:
                L.append(I(f"v_xad_u32 v{V_POLL}, v{r}, s{sNON}, v{V_POLL}"))
            L.append(I(f"v_cmp_ne_u32 vcc, 0, v{V_POLL}"))
            return L
        return chk

    def flag_store(sreg, need):
        return I(f"buffer_store_dword v{V_NON}, v{V_L0}, s[8:11], s{sreg} offen sc1", need=need)

    P(f"{pf}_prog:")
    w0tok = P(f"buffer_load_dword v{V_NON}, off, s[8:11], 0 sc1")
    if typ:
        P(f"s_cmp_eq_u32 s{sXQ}, 1")
        P.ext(srd_sel(S_WA, 22, 24, 640 * 1280))
        P(f"s_lshl2_add_u32 s{sSW}, s{sCB4}, s3")
        P(f"s_mul_i32 s{sSW}, s{sSW}, {40*1280}")
    else:
        P("s_cmp_ge_u32 s3, 2")
        P.ext(srd_sel(S_GU, 28, 30, 640 * 3072))
        P(f"s_lshl_b32 s{sSW}, s{sCG}, 8")
        P(f"s_add_u32 s{sSW}, s{sSW}, s{sSWB}")
    P.ext(dma_stage(0))
    if typ:
        P(f"s_mul_i32 s{sU1}, s{sCB4}, 40")
        P(f"s_add_u32 s{sU1}, s{sU1}, s{sB32}")
        P(f"s_cmp_lt_u32 s{sB32}, 40")
        P(f"s_cselect_b32 s{sWDT}, 0, {hex(OOB)}")
        P(f"s_mul_i32 s{sHT}, s{sU1}, {4*1280}")
        P(f"s_add_u32 s{sHT}, s{sHT}, s{sWDT}")
        ssrd = S_WA
    else:
        P(f"s_lshl3_add_u32 s{sU1}, s{sRB}, s{sCG}")
        P(f"s_lshl2_add_u32 s{sU1}, s{sU1}, s3")
        P(f"s_mul_i32 s{sHT}, s{sU1}, {4*1280}")
        ssrd = S_X
    stok = [P(f"buffer_load_dwordx4 {vr(SF + 4*i, 4)}, v{SA}, s[{ssrd}:{ssrd+3}], s{sHT} offen offset:{256*i}") for i in range(5)]
    P.ext(dma_stage(1))
    jt = None
    if not typ:
        P.ext(srd(S_AUX, 32, 1536 * 1280))
        P(f"s_and_b32 s{sYT}, s2, 1")
        P(f"s_lshl1_add_u32 s{sYT}, s{sXQ}, s{sYT}")
        P(f"s_lshl_b32 s{sYT}, s{sYT}, 5")
        P(f"s_lshr_b32 s{sHT}, s2, 3")
        P(f"s_add_u32 s{sYT}, s{sYT}, s{sHT}")
        P(f"s_lshl2_add_u32 s{sYT}, s{sYT}, s3")
        P(f"s_mul_i32 s{sHT}, s{sYT}, 205")
        P(f"s_lshr_b32 s{sHT}, s{sHT}, 11")
        P(f"s_mul_i32 s{sHT}, s{sHT}, {32*1280 - 1280}")
        P(f"s_lshl_b32 s{sWDT}, s{sYT}, 7")
        P(f"s_add_u32 s{sHT}, s{sHT}, s{sWDT}")
        P(f"s_add_u32 m0, s{sW4K}, {SPARE}")
        P(f"s_cmp_lt_u32 s{sYT}, 480")
        P(f"s_cselect_b32 s{sWDT}, 0, {hex(OOB)}")
        for p in range(4):
            jt = P(f"buffer_load_dwordx4 v{V_X+p}, s[{S_AUX}:{S_AUX+3}], s{sHT} offen offset:{1024*p} lds")
    if typ:
        P("s_cmp_ge_u32 s3, 2")
        P.ext(srd_sel(S_GU, 28, 30, 640 * 3072))
    P(f"s_cmp_eq_u32 s{sXQ}, 1")
    P.ext(srd_sel(S_WSQ, 18, 20, 2048 * 4096))
    P.ext(srd(S_OUT, 34, 2048 * 1280))
    for s in range(2, CFG["pro"]):
        P.ext(dma_stage(s))
    w1, w0 = sT2, sT3
    P(f"s_lshr_b32 s{w1}, s3, 1")
    P(f"s_and_b32 s{w0}, s3, 1")
    if typ:
        P(f"s_mul_i32 s{sT0}, s{sXQ}, 160")
        P(f"s_add_u32 s{sSO}, s{sT0}, s{sU1}")
        P(f"s_lshl_b32 s{sSO}, s{sSO}, 5")
        P(f"s_add_u32 s{sSO}, s{sSO}, s{sWDT}")
        P(f"s_add_u32 s{sSO}, s{sSO}, {hex(CSD)}")
        P(f"s_mul_i32 s{sCSL}, s{sCG}, {160*8}")
        P(f"s_add_u32 s{sCSL}, s{sCSL}, {hex(CSD)}")
        P(f"s_lshl_b32 s{sT0}, s{sCG}, 6")
        P(f"s_add_u32 s{sT0}, s{sT0}, s{sB32}")
        P(f"s_mul_i32 s{sEA0}, s{sT0}, 10240")
        P(f"s_add_u32 s{sEA0}, s{sEA0}, {hex(ABT)}")
        P(f"s_add_u32 s{sEA1}, s{sEA0}, 8192")
        P(f"s_lshl2_add_u32 s{sFA}, s{sT0}, {hex(ABF)}")
        P(f"s_lshl_b32 s{sSGN}, s{sXQ}, 31")
        P(f"s_add_u32 s{sT1}, s{sCG}, 16")
    else:
        P(f"s_lshl_b32 s{sSO}, s{sU1}, 6")
        P(f"s_add_u32 s{sSO}, s{sSO}, {hex(STAT)}")
        P(f"s_lshl_b32 s{sJ3D}, s{sYT}, 12")
        P(f"s_add_u32 s{sJ3D}, s{sJ3D}, s{sWDT}")
        P(f"s_add_u32 s{sJ3D}, s{sJ3D}, {hex(WD)}")
        P(f"s_lshl2_add_u32 s{sFJ}, s{sYT}, s{sWDT}")
        P(f"s_add_u32 s{sFJ}, s{sFJ}, {hex(WDF)}")
        P(f"s_lshl1_add_u32 s{sT1}, s{sCG}, 1")
    P(f"s_lshl_b32 s{sT0}, s{sT1}, 7")
    P(f"s_add_u32 s{sSWB}, s{sSWB}, s{sT0}")
    P(f"s_lshl_b32 s{sSTL}, s{sB32}, 9")
    P(f"s_add_u32 s{sSTL}, s{sSTL}, {hex(STAT)}")
    P(f"s_lshr_b32 s{sT0}, s{sB32}, 1")
    P(f"s_mul_i32 s{sEB0}, s{sT0}, 24")
    P(f"s_add_u32 s{sEB0}, s{sEB0}, s{sT1}")
    P(f"s_lshl2_add_u32 s{sEB0}, s{sEB0}, s3")
    P(f"s_lshl_b32 s{sEB0}, s{sEB0}, 11")
    P(f"s_add_u32 s{sEB0}, s{sEB0}, {hex(HH)}")
    P(f"s_xor_b32 s{sEB1}, s{sEB0}, 4096")
    P(f"s_lshl_b32 s{sFB}, s{sT0}, 5")
    P(f"s_add_u32 s{sFB}, s{sFB}, s{sT1}")
    P(f"s_lshl1_add_u32 s{sFB}, s{sFB}, s{w0}")
    P(f"s_lshl2_add_u32 s{sFB}, s{sFB}, {hex(HF)}")
    if not typ:
        P(f"s_sub_u32 s{sEA0}, s{sEB0}, 8192")
        P(f"s_sub_u32 s{sEA1}, s{sEB1}, 8192")
        P(f"s_sub_u32 s{sFA}, s{sFB}, 8")
    P(f"s_lshl_b32 s{sPAB}, s{sCG}, 8")
    P(f"s_add_u32 s{sPAB}, s{sPAB}, {hex(ABF + 128*typ)}")
    P(f"s_lshl_b32 s{sPH}, s{sT64}, 8")
    P(f"s_mul_i32 s{sT0}, s3, 48")
    P(f"s_add_u32 s{sPH}, s{sPH}, s{sT0}")
    P(f"s_add_u32 s{sPH}, s{sPH}, {hex(HF)}")
    P(f"s_mul_i32 s{sT1}, s{sEB8}, 5")
    P(f"s_and_b32 s{sPWD}, s{sT1}, -4")
    P(f"s_mul_i32 s{sT0}, s3, 480")
    P(f"s_add_u32 s{sPWD}, s{sPWD}, s{sT0}")
    P(f"s_add_u32 s{sPWD}, s{sPWD}, {hex(WDF)}")
    P(f"s_add_u32 s{sWDB}, s{sT0}, s{sT1}")
    P(f"s_lshl_b32 s{sWDB}, s{sWDB}, 10")
    P(f"s_add_u32 s{sWDB}, s{sWDB}, {hex(WD)}")
    P(f"s_lshl2_add_u32 s{sHB}, s{sT64}, s3")
    P(f"s_mul_i32 s{sHB}, s{sHB}, {12*4096}")
    P(f"s_add_u32 s{sHB}, s{sHB}, {hex(HH)}")
    P(f"s_lshl2_add_u32 s{sT0}, s{sRB}, s{sCB4}")
    P(f"s_lshl2_add_u32 s{sT1}, s{sT0}, s3")
    P(f"s_lshl2_add_u32 s{sT1}, s{sT1}, s{sKS4}")
    P(f"s_mul_i32 s{sYPUB}, s{sT1}, 10240")
    P(f"s_add_u32 s{sYPUB}, s{sYPUB}, {hex(YP)}")
    P(f"s_lshl2_add_u32 s{sFY}, s{sT1}, {hex(YF)}")
    P(f"s_lshl2_add_u32 s{sT0}, s{sT0}, s{sKS4}")
    P(f"s_lshl4_add_u32 s{sPY}, s{sT0}, {hex(YF)}")
    P(f"s_mul_i32 s{sYGA}, s{sT0}, 40960")
    P(f"s_lshl_b32 s{sT1}, s3, 11")
    P(f"s_add_u32 s{sYGA}, s{sYGA}, s{sT1}")
    P(f"s_add_u32 s{sYGA}, s{sYGA}, {hex(YP)}")
    P(f"s_lshl_b32 s{sT0}, s{w1}, 10")
    P(f"s_sub_u32 s{sT0}, s{sT0}, s{sT1}")
    P(f"s_add_u32 s{sT0}, s{sT0}, 8192")
    P(f"v_add_u32 v{V_G}, s{sT0}, v1")
    P(f"s_lshl1_add_u32 s{sXO}, s{sT64}, s{w1}")
    P(f"s_lshl3_add_u32 s{sXO}, s{sXO}, s{w0}")
    P(f"s_mul_i32 s{sXO}, s{sXO}, {4*1280}")
    P(f"s_mul_i32 s{sT0}, s{sEB8}, 160")
    P(f"s_add_u32 s{sXO}, s{sXO}, s{sT0}")
    P("s_cmp_eq_u32 s3, 0")
    P(f"s_cselect_b32 s{sLEAD}, 0, {hex(OOB)}")
    P(f"s_lshl2_add_u32 s{sRF}, s2, s{sLEAD}")
    P(f"s_add_u32 s{sRF}, s{sRF}, {hex(RF)}")
    P("s_cmp_eq_u32 s2, 0")
    P(f"s_cselect_b32 s{sLEAD}, s{sLEAD}, {hex(OOB)}")
    if CFG["rot"]:
        P(f"s_lshl1_add_u32 s{sSWS}, s{sCB4}, s{sRB}")
        P(f"s_lshl_b32 s{sSWS}, s{sSWS}, 8")
        P(f"s_and_b32 s{sSWS}, s{sSWS}, 0x7ff")
    else:
        P(f"s_mov_b32 s{sSWS}, 0")
    P(f"s_lshl_b32 s{sT0}, s{sB32}, 17")
    P(f"s_add_u32 s{sT0}, s{sT0}, {2048*typ}")
    P(f"v_add_u32 v{V_WS}, s{sT0}, v{V_WS}")
    P(f"v_add_u32 v{V_WS+1}, {8*4096-1024}, v{V_WS}")
    P(f"v_xor_b32 v{V_WS+3}, 64, v{V_WS}")
    P(f"v_add_u32 v{V_WS+2}, {2*(8*4096-1024)}, v{V_WS+3}")
    P(f"v_add_u32 v{V_WS+3}, {3*(8*4096-1024)}, v{V_WS+3}")
    P(f"s_mul_i32 s{sT0}, s{sCG}, {64*10240}")
    P(f"s_add_u32 s{sT0}, s{sT0}, s{sW5K}")
    P(f"s_add_u32 s{sT0}, s{sT0}, {hex(ABT + 32*10240*typ)}")
    P(f"v_add_u32 v{V_AB}, s{sT0}, v1")
    P(f"v_add_u32 v{V_AB+1}, s{sT0}, v3")
    P(f"s_mul_i32 s{sT0}, s{w0}, 5120")
    P(f"s_add_u32 s{sT0}, s{sT0}, 16384")
    P(f"v_add_u32 v{R_AB}, s{sT0}, v1")
    P(f"v_add_u32 v{R_AB+1}, {2*SLOT}, v{R_AB}")
    P(f"v_bfe_u32 v{T0}, v2, 3, 1")
    P(f"v_lshlrev_b32 v{T0}, 2, v{T0}")
    P(f"v_and_b32 v{TMP+4}, 2, v2")
    P(f"v_or_b32 v{T0}, v{T0}, v{TMP+4}")
    P(f"v_xor_b32 v{T0}, v{T0}, v{T1}")
    P(f"v_lshlrev_b32 v{T0}, 4, v{T0}")
    P(f"v_lshl_add_u32 v{V_ST}, v{T2}, 3, v{T3}")
    P(f"v_lshl_add_u32 v{R_WS}, v{V_ST}, 7, v{T0}")
    P(f"v_add_u32 v{R_X}, s{sW4K}, v{R_WS}")
    P(f"v_xor_b32 v{R_X}, s{sU0}, v{R_X}")
    P(f"v_xor_b32 v{R_X+1}, 64, v{R_X}")
    P(f"v_add_u32 v{R_X+2}, {2*SLOT}, v{R_X}")
    P(f"v_add_u32 v{R_X+3}, {2*SLOT}, v{R_X+1}")
    P(f"s_lshl_b32 s{sT0}, s{w1}, 13")
    P(f"v_add_u32 v{R_WS}, s{sT0}, v{R_WS}")
    P(f"v_xor_b32 v{R_WS+1}, 64, v{R_WS}")
    P(f"v_add_u32 v{R_WS+2}, {2*SLOT}, v{R_WS}")
    P(f"v_add_u32 v{R_WS+3}, {2*SLOT}, v{R_WS+1}")
    if typ:
        P(f"v_and_b32 v{R_WD}, 15, v2")
        P(f"v_lshl_add_u32 v{R_WD}, v{R_WD}, 7, v{T0}")
        P(f"v_add_u32 v{R_WD}, 16384, v{R_WD}")
        P(f"v_xor_b32 v{R_WD}, s{sU0}, v{R_WD}")
        P(f"v_xor_b32 v{R_WD+1}, 64, v{R_WD}")
        P(f"v_add_u32 v{R_WD+2}, {2*SLOT}, v{R_WD}")
        P(f"v_add_u32 v{R_WD+3}, {2*SLOT}, v{R_WD+1}")
    P(f"v_lshl_add_u32 v{R_GU}, v{T1}, 3, v{T2}")
    P(f"v_lshlrev_b32 v{R_GU}, 7, v{R_GU}")
    P(f"v_lshl_add_u32 v{R_GU}, v{T3}, 3, v{R_GU}")
    P(f"v_bfe_u32 v{R_GU+1}, v2, 3, 2")
    P(f"v_lshl_add_u32 v{R_GU}, v{R_GU+1}, 5, v{R_GU}")
    P(f"s_lshl_b32 s{sT0}, s{w1}, 6")
    P(f"s_lshl_b32 s{sT1}, s{w0}, 12")
    P(f"s_or_b32 s{sT0}, s{sT0}, s{sT1}")
    P(f"v_xor_b32 v{R_GU}, s{sT0}, v{R_GU}")
    for i in range(1, 8):
        P(f"v_xor_b32 v{R_GU+i}, {32*(i & 3) + 4096*(i >> 2)}, v{R_GU}")
    for i in range(8):
        P(f"v_add_u32 v{R_GU+8+i}, {2*SLOT}, v{R_GU+i}")
    if not typ:
        P(f"v_lshl_add_u32 v{VJ3R}, v{T1}, 2, v{T2}")
        P(f"v_lshlrev_b32 v{VJ3R}, 7, v{VJ3R}")
        P(f"v_lshl_add_u32 v{VJ3R}, v{T3}, 3, v{VJ3R}")
        P(f"v_bfe_u32 v{VJ3}, v2, 3, 1")
        P(f"v_lshl_add_u32 v{VJ3R}, v{VJ3}, 5, v{VJ3R}")
        P(f"v_add_u32 v{VJ3R}, s{sW4K}, v{VJ3R}")
        P(f"v_add_u32 v{VJ3R}, {SPARE}, v{VJ3R}")
        P(f"v_xor_b32 v{VJ3}, 32, v{VJ3R}")
    else:
        P(f"s_add_u32 s{sT0}, s{sW4K}, {SPARE + 1024}")
        P(f"v_lshl_add_u32 v{VK}, v{V_ST}, 2, s{sT0}")
        P(f"v_lshl_add_u32 v{VK+1}, v{T1}, 5, s{sT0}")
        P(f"v_and_b32 v{VK+2}, 15, v2")
        P(f"v_lshlrev_b32 v{VK+2}, 3, v{VK+2}")
    P(f"s_lshl_b32 s{sT0}, s{w1}, 9")
    P(f"s_add_u32 s{sT0}, s{sT0}, {SPARE}")
    P(f"v_lshl_add_u32 v{V_CA}, v2, 2, s{sT0}")
    P(f"v_lshl_add_u32 v{V_CR}, v{T1}, 4, s{sT0}")
    P(f"v_xor_b32 v{V_CR+1}, 512, v{V_CR}")
    for i in range(4):
        P(f"v_mov_b32 v{ONES+i}, 0x3f803f80")
    P(f"v_mul_u32_u24 v{V_XO}, 1280, v{V_ST}")
    P(f"v_lshl_add_u32 v{V_XO}, v{T1}, 3, v{V_XO}")
    P(f"v_lshlrev_b32 v{V_ST}, 4, v{V_ST}")
    for t in range(4):
        P(f"s_add_u32 s{sT0}, s3, {t+1}")
        P(f"s_and_b32 s{sT0}, s{sT0}, 3")
        P(f"v_lshl_add_u32 v{V_H+t}, s{sT0}, 10, v1")
        P(f"v_lshl_add_u32 v{V_DW+t}, s{sT0}, 14, v1")
    P(f"v_and_b32 v{V_FAB}, 31, v2")
    P(f"v_lshlrev_b32 v{V_FAB}, 2, v{V_FAB}")
    P(f"v_min_u32 v{V_FH}, 11, v2")
    P(f"v_lshlrev_b32 v{V_FH}, 2, v{V_FH}")
    P(f"v_lshrrev_b32 v{V_FWD}, 1, v2")
    P(f"v_min_u32 v{V_FWD}, 11, v{V_FWD}")
    P(f"v_mul_u32_u24 v{V_FWD}, 40, v{V_FWD}")
    P(f"v_and_b32 v{TMP+4}, 1, v2")
    P(f"v_lshl_add_u32 v{V_FWD}, v{TMP+4}, 2, v{V_FWD}")
    P(f"v_lshlrev_b32 v{V_FY}, 2, v{T3}")
    P(f"v_mov_b32 v{TMP+4}, {hex(OOB)}")
    P("v_cmp_eq_u32 vcc, 0, v2")
    P(f"v_cndmask_b32 v{V_L0}, v{TMP+4}, v2, vcc")
    P(f"v_mul_u32_u24 v{TMP+5}, 20, v{T1}")
    P(f"v_cmp_eq_u32 vcc, v{TMP+5}, v2")
    P(f"v_lshlrev_b32 v{SA+1}, {3 if typ else 4}, v{T1}")
    P(f"v_cndmask_b32 v{SA+1}, v{TMP+4}, v{SA+1}, vcc")
    for i in range(4):
        P(f"v_mov_b32 v{TMP+4+i}, 0")
    P(f"v_add_u32 v{T0}, s{sW4K}, v1")
    P(f"v_add_u32 v{T0}, {SPARE}, v{T0}")
    zinit = lambda need: I(f"ds_write_b128 v{T0}, {vr(TMP+4, 4)}", need=need)
    if typ:
        P.L.append(zinit([]))
    P(f"v_readfirstlane_b32 s{sNON}, v{V_NON}", need=[w0tok])
    P(f"s_mul_i32 s{sNON}, s{sNON}, 1664525")
    P(f"s_add_u32 s{sNON}, s{sNON}, 1013904223")
    P(f"v_mov_b32 v{V_NON}, s{sNON}")

    S = Sched()
    ksteps = []
    xtok = {}

    def xreg(ks, T):
        return ar(4 * (2 * ks + T), 4)

    def gu_part(rd, m, sl, half, kap, buf, ks, acc):
        for f in (0, 1, 4, 5, 2, 3, 6, 7):
            mat, t = divmod(f, 4)
            tk = []
            for hh in range(2):
                off = (sl & 1) * SLOT + 16384 * half + 8192 * mat + 512 * hh
                i = I(f"ds_read_b64_tr_b16 {ar(buf + 4*f + 2*hh, 2)}, v{R_GU + 8*(sl >> 1) + 4*kap + t} offset:{off}")
                rd.append(i); tk.append(i.tok)
            for T in range(2):
                d = vr(acc + 4 * (2 * f + T), 4)
                m.append(I(f"{MF} {d}, {ar(buf + 4*f, 4)}, {xreg(ks, T)}, {'0' if ks == 0 else d}", need=tk + [xtok[ks, T]]))
            if kap == 0 and t < 2:
                d = ar(ACS + 4 * (2 * mat + t), 4)
                m.append(I(f"{MF} {d}, {vr(ONES, 4)}, {ar(buf + 4*f, 4)}, {'0' if ks == 0 else d}", need=tk))

    def mk_passA(ks):
        s, kap = divmod(ks, 2)
        sl = s % 4
        buf = FB + 40 * (len(ksteps) % 2)
        rd, m = [], []
        for T in range(2):
            i = I(f"ds_read_b128 {xreg(ks, T)}, v{R_X + 2*(sl >> 1) + kap} offset:{(sl & 1)*SLOT + 512*T}")
            rd.append(i); xtok[ks, T] = i.tok
        if typ:
            for t in range(10):
                i = I(f"ds_read_b128 {ar(buf + 4*t, 4)}, v{R_WD + 2*(sl >> 1) + kap} offset:{(sl & 1)*SLOT + 2048*t}")
                rd.append(i)
                for T in range(2):
                    d = vr(ACCA + 4 * (2 * t + T), 4)
                    m.append(I(f"{MF} {d}, {xreg(ks, T)}, {ar(buf + 4*t, 4)}, {'0' if ks == 0 else d}", need=[i.tok, xtok[ks, T]]))
        else:
            gu_part(rd, m, sl, 1, kap, buf, ks, ACCA)
        ksteps.append(dict(rd=rd, m=m, stage=s, first=kap == 0))

    def mk_passB(ks):
        s = 10 + ks // 4
        q = ks % 4
        buf = FB + 40 * (len(ksteps) % 2)
        rd, m = [], []
        gu_part(rd, m, s % 4, q >> 1, q & 1, buf, ks, ACCB)
        ksteps.append(dict(rd=rd, m=m, stage=s, first=q == 0))

    def mk_y(k):
        s, kap = 15 + k // 2, k % 2
        sl = s % 4
        buf = FB + 40 * (len(ksteps) % 2)
        m, wt, ab = [], [], []
        for tt in range(4):
            wt.append(I(f"ds_read_b128 {ar(buf + 4*tt, 4)}, v{R_WS + 2*(sl >> 1) + kap} offset:{(sl & 1)*SLOT + 4096*(tt >> 1) + 512*(tt & 1)}"))
        for e in range(5):
            ab.append(I(f"ds_read_b128 {ar(buf + 16 + 4*e, 4)}, v{R_AB + (sl >> 1)} offset:{(sl & 1)*SLOT + 1024*(10*kap + e)}"))
        rd = [ab[0]] + wt + ab[1:]
        for e in range(5):
            for tt in range(4):
                d = vr(ACCA + 4 * (5 * tt + e), 4)
                m.append(I(f"{MF} {d}, {ar(buf + 16 + 4*e, 4)}, {ar(buf + 4*tt, 4)}, {'0' if k == 0 else d}", need=[ab[e].tok, wt[tt].tok]))
        ksteps.append(dict(rd=rd, m=m, stage=s, first=kap == 0))

    for ks in range(20): mk_passA(ks)
    for ks in range(20): mk_passB(ks)
    for k in range(32): mk_y(k)

    dmaL = {s: dma_stage(s) for s in range(CFG["pro"], 15)}
    wsL = {s: dma_ws(s) for s in range(15, 31)}
    abL = {s: dma_ab(s) for s in range(15, 31)}

    csadd = {}
    for ps in (0, 1):
        if ps == 0 and typ:
            continue
        csadd[ps] = [I(f"ds_add_f32 v{V_CA}, a{ACS + 4*(2*mat + t)} offset:{(2*ps + mat)*4096 + 256*t}") for mat in range(2) for t in range(2)]

    bar = {}
    kpos = []
    pre = [I("s_barrier", need=[dma_tok[0]]), flag_store(sRF, [])] + ksteps[0]["rd"]
    for K_, ks in enumerate(ksteps):
        g0 = S.n()
        kpos.append(g0)
        for m in ks["m"]:
            S.mfma(m)
        gend = S.n()
        nx = ksteps[K_ + 1] if K_ + 1 < len(ksteps) else None
        if nx is not None and nx["first"]:
            need = [dma_tok[nx["stage"]], ks["rd"][-1].tok]
            if K_ in (19, 39) and (K_ // 20) in csadd:
                need.append(csadd[K_ // 20][-1].tok)
            S.put(g0, [I("s_barrier", need=need)])
            bar[nx["stage"]] = g0
        else:
            S.put(g0, [wait_for(ks["rd"][-1].tok)])
            S.used[g0] += 4
        if nx is not None:
            S.place(nx["rd"], g0 + 1, gend - (2 if nx["first"] else 4), cap=4)
        if K_ in (18, 38) and (K_ // 20) in csadd:
            S.place(csadd[K_ // 20], g0 + 15, gend - 2)
        if K_ == 1:
            for i in range(5):
                S.mfma(I(f"{MF} {vr(SD1, 4)}, {vr(ONES, 4)}, {vr(SF + 4*i, 4)}, {'0' if i == 0 else vr(SD1, 4)}", need=[stok[i]]))
                if not typ:
                    S.mfma(I(f"{MF} {vr(SD2, 4)}, {vr(SF + 4*i, 4)}, {vr(SF + 4*i, 4)}, {'0' if i == 0 else vr(SD2, 4)}", need=[stok[i]]))
    kpos.append(S.n())

    ACCD = FB
    wdreg, hreg, wdtok, htok = {}, {}, {}, {}
    for kk in range(8):
        for e in range(5): wdreg[kk, e] = ar(20 * kk + 4 * e, 4)
    for kk in range(4):
        for t in range(4): hreg[kk, t] = vr(ACCB + 16 * kk + 4 * t, 4)
    for t in range(4):
        hreg[4, t] = vr(240 + 4 * t, 4)
        hreg[5, t] = ar(240 + 4 * t, 4)
        hreg[6, t] = hreg[0, t]
        hreg[7, t] = hreg[1, t]
    for e in range(5):
        wdreg[8, e] = ar(220 + 4 * e, 4)
        for j in range(3): wdreg[9 + j, e] = wdreg[j, e]
    for j in range(4):
        hreg[8 + j, 0] = hreg[2, j]
        hreg[8 + j, 1] = hreg[3, j]
        hreg[8 + j, 2] = wdreg[3, j]
        hreg[8 + j, 3] = wdreg[4, j]

    def wd_load(kk):
        L = [I(f"s_add_u32 s{sWDT}, s{sWDB}, {40960*kk}")]
        for e in range(5):
            v, o = (1, 1024 * e) if e < 4 else (3, 0)
            L.append(I(f"buffer_load_dwordx4 {wdreg[kk, e]}, v{v}, s[8:11], s{sWDT} offen offset:{o} sc1"))
            wdtok[kk, e] = L[-1].tok
        return tag(L, f"wd{kk}")

    def h_load(kk):
        L = [I(f"s_add_u32 s{sHT}, s{sHB}, {4096*kk}")]
        for t in range(4):
            L.append(I(f"buffer_load_dwordx4 {hreg[kk, t]}, v{V_H+t}, s[8:11], s{sHT} offen sc1"))
            htok[kk, t] = L[-1].tok
        return tag(L, f"h{kk}")

    def h_load_t(t):
        L = []
        for j in range(4):
            L.append(I(f"buffer_load_dwordx4 {hreg[8+j, t]}, v{V_H+t}, s[8:11], s{sH8+j} offen sc1"))
            htok[8 + j, t] = L[-1].tok
        return L
    wdL = {kk: wd_load(kk) for kk in range(12)}
    hL = {kk: h_load(kk) for kk in range(8)}
    htL = {t: h_load_t(t) for t in range(4)}

    def dacc(t, e):
        return ar(ACCD + 4 * (5 * t + e), 4) if t < 3 else vr(OWN + 4 * e, 4)

    def d_mfma(kk, t, e):
        d = dacc(t, e)
        S.mfma(I(f"{MF} {d}, {wdreg[kk, e]}, {hreg[kk, t]}, {'0' if kk == 0 else d}", need=[wdtok[kk, e], htok[kk, t]]))
    gD = S.n()
    for kk in range(8):
        for e in range(5):
            for t in range(4): d_mfma(kk, t, e)
    GA, Y, RED = ACCA, ACCA + 48, ACCB
    gtok = {}
    gat = []
    for s in range(4):
        gat.append(I(f"s_add_u32 s{sYT}, s{sYGA}, {10240*s}"))
        for u in range(3):
            v = 1 if u < 2 else V_G
            gat.append(I(f"buffer_load_dwordx4 {vr(GA + 12*s + 4*u, 4)}, v{v}, s[8:11], s{sYT} offen offset:{1024*u if u < 2 else 0} sc1"))
            gtok[s, u] = gat[-1].tok
    tag(gat, "gat")
    gT = {}
    for t in range(3):
        gT[t] = S.n()
        for kk in range(8, 12):
            for e in range(5): d_mfma(kk, t, e)
    gT[3] = S.n()
    for e in range(5):
        for kk in range(8, 12): d_mfma(kk, 3, e)
    gT["ysum"] = S.n()
    for e in range(5):
        for s in range(4):
            sel = vr(SEL + 6, 4) if e == 4 else (vr(SEL + 2, 4) if e % 2 == 0 else vr(SEL, 4))
            d = vr(Y + 4 * e, 4)
            S.mfma(I(f"{MF} {d}, {sel}, {vr(GA + 12*s + 4*(e // 2), 4)}, {'0' if s == 0 else d}", need=[gtok[s, e // 2]]))
    gEnd = S.n()
    k2 = kpos

    def win(s):
        a = bar[s] + 1
        b = bar[s + 1] if s + 1 in bar else gD
        return a, b
    early = []
    for s in range(CFG["pro"], 4):
        early += dmaL[s]
    S.place(early, 0, bar[1] + 1 if len(early) <= 14 else k2[2])
    for s in range(4, 15):
        a, b = win(s - 3)
        if s == 4 and len(early) > 14:
            a = k2[2]
        S.place(dmaL[s], a, b, spread=True)
    sf = K()
    a0, a1, a2, a3 = SF, SF + 1, SF + 2, SF + 3
    dp = "row_mask:0xf bank_mask:0xf"
    if typ:
        sf(f"v_add_f32_dpp v{a0}, v{SD1}, v{SD1} quad_perm:[1,0,3,2] {dp}")
        sf(f"v_mov_b32 v{a1}, v{V_NON}")
        sf(f"v_add_f32_dpp v{a0}, v{a0}, v{a0} quad_perm:[2,3,0,1] {dp}")
        sf(f"buffer_store_dwordx2 {vr(a0, 2)}, v{SA+1}, s[8:11], s{sSO} offen sc1")
    else:
        sf(f"v_add_f32_dpp v{a0}, v{SD1}, v{SD1} quad_perm:[1,0,3,2] {dp}")
        sf(f"v_mov_b32_dpp v{a1}, v{SD2} quad_perm:[0,0,0,0] {dp}")
        sf(f"v_add_f32_dpp v{a1}, v{SD2+1}, v{a1} quad_perm:[1,1,1,1] {dp}")
        sf(f"v_add_f32_dpp v{a0}, v{a0}, v{a0} quad_perm:[2,3,0,1] {dp}")
        sf(f"v_add_f32_dpp v{a1}, v{SD2+2}, v{a1} quad_perm:[2,2,2,2] {dp}")
        sf(f"v_mul_f32 v{a0}, {f2h(-1.0/640)}, v{a0}")
        sf(f"v_add_f32_dpp v{a1}, v{SD2+3}, v{a1} quad_perm:[3,3,3,3] {dp}")
        sf(f"v_mul_f32 v{a1}, {f2h(1.0/640)}, v{a1}")
        sf(f"v_fma_f32 v{a1}, -v{a0}, v{a0}, v{a1}")
        sf(f"v_max_f32 v{a1}, 0, v{a1}")
        sf(f"v_cvt_pk_bf16_f32 v{a0}, v{a0}, v{a1}")
        sf(f"v_and_b32 v{a1}, 0xffff0000, v{a0}")
        sf(f"v_lshlrev_b32 v{a0}, 16, v{a0}")
        sf(f"v_add_f32 v{a1}, {f2h(1e-5)}, v{a1}")
        sf(f"v_cvt_pk_bf16_f32 v{a1}, v{a1}, v{a1}")
        sf(f"v_lshlrev_b32 v{a1}, 16, v{a1}")
        sf(f"v_sqrt_f32 v{a1}, v{a1}")
        sf(f"v_mov_b32 v{a3}, v{V_NON}")
        sf(f"v_cvt_pk_bf16_f32 v{a1}, v{a1}, v{a1}")
        sf(f"v_lshlrev_b32 v{a1}, 16, v{a1}")
        sf(f"v_mul_f32 v{a2}, v{a1}, v{a1}")
        sf(f"v_rcp_f32 v{a1}, v{a1}")
        sf("s_nop 0")
        sf(f"buffer_store_dwordx4 {vr(a0, 4)}, v{SA+1}, s[8:11], s{sSO} offen sc1")
    S.place(sf.L, k2[2] + 3, k2[4])
    if not typ:
        JF = 144
        jr, js = [], []
        for tI in range(4):
            for hh in range(2):
                off = 2048 * hh + (64 * ((tI >> 1) ^ hh))
                jr.append(I(f"ds_read_b64_tr_b16 {ar(JF + 4*tI + 2*hh, 2)}, v{VJ3 if tI & 1 else VJ3R} offset:{off}", need=[jt]))
        for tI in range(4):
            js.append(I(f"buffer_store_dwordx4 {ar(JF + 4*tI, 4)}, v1, s[8:11], s{sJ3D} offen offset:{1024*tI} sc1",
                        need=[jr[2*tI].tok, jr[2*tI+1].tok]))
        S.place(jr, k2[4], k2[5])
        S.place([zinit([jr[-1].tok])] + js, k2[5] + 1, k2[7])
        S.place([flag_store(sFJ, [js[-1].tok])], k2[13] + 1, k2[14])
    lds = [f"buffer_load_dwordx4 {vr(ST + 4*T, 4)}, v{V_ST}, s[8:11], s{sSTL} offen offset:{64*T} sc1" for T in range(2)]
    tags = [ST + 3, ST + 7]
    if typ:
        lds += [f"buffer_load_dwordx2 {vr(CSR + 2*t, 2)}, v{VK+2}, s[8:11], s{sCSL} offen offset:{128*t} sc1" for t in range(10)]
        tags += [CSR + 2 * t + 1 for t in range(10)]
    sl_, sc_ = poll(lds, tag_check(tags))
    kc = K()
    RS = CSB
    if typ:
        wt_ = []
        for T in range(2):
            kc(f"v_xor_b32 v{ST+4*T+3}, s{sSGN}, v{ST+4*T+1}")
            wt_.append(kc(f"ds_write2_b32 v{VK}, v{ST+4*T}, v{ST+4*T+3} offset0:{4*T} offset1:{32 + 4*T}"))
        nmt = [kc(f"ds_read_b128 {vr(NM + 4*h, 4)}, v{VK+1} offset:{16*h}") for h in range(2)]
        rst = [kc(f"ds_read_b128 {vr(RS + 4*h, 4)}, v{VK+1} offset:{128 + 16*h}") for h in range(2)]
    for T in range(2):
        r = ST + 4 * T
        kc(f"v_mul_f32 v{r+3}, v{r+1}, v{r+1}", need=wt_ if typ else [])
        kc(f"v_mul_f32 v{r+1}, {f2h(C1)}, v{r+1}")
        kc(f"v_mul_f32 v{r+3}, {f2h(0.044715)}, v{r+3}")
        kc(f"v_mul_f32 v{r+3}, v{r+3}, v{r+1}")
    S.place(sl_, k2[CFG["st_ld"][typ]], k2[CFG["st_ld"][typ] + 1])
    S.place(sc_ + kc.L, k2[CFG["st_ck"][typ]], k2[CFG["st_ck"][typ] + 1])
    if typ:
        k0 = CFG["st_ck"][1] + 1
        nk = 20 - k0
        tiles = list(range(20))
        per = (20 + nk - 1) // nk
        for kq in range(nk):
            mine = tiles[kq::nk]
            for idx in mine:
                t, T = divmod(idx, 2)
                L = [I(f"v_fmac_f32 v{ACCA + 4*idx + i}, v{NM + 4*T + i}, v{CSR + 2*t}", need=[nmt[T]]) for i in range(4)]
                g = k2[k0 + kq]
                if idx < 10:
                    S.place(L, g + idx + 5, g + min(idx + 14, 20))
                else:
                    S.place(L, g + max(idx - 13, 1), g + idx - 2)

    def epi_gu(acc, ps, so):
        L = []
        last = None

        def cs_reads(p):
            R = []
            for t2 in range(2):
                for mat in range(2):
                    R.append(I(f"ds_read_b128 {vr(CSB + 8*t2 + 4*mat, 4)}, v{V_CR+p} offset:{(2*ps + mat)*4096 + 256*t2}"))
            return R
        rd = cs_reads(0)
        L += rd
        for p in range(2):
            for t2 in range(2):
                for mat in range(2):
                    for T in range(2):
                        a = acc + 4 * (2 * (4 * mat + 2 * p + t2) + T)
                        for i in range(4):
                            L.append(I(f"v_fmac_f32 v{a+i}, v{ST+4*T}, v{CSB + 8*t2 + 4*mat + i}", need=[rd[2*t2 + mat].tok]))
            if p == 0:
                rd = cs_reads(1)
                L += rd
            for T in range(2):
                o = acc + 4 * (2 * (2 * p) + T)
                c = ST + 4 * T
                for t2 in range(2):
                    g = acc + 4 * (2 * (2 * p + t2) + T)
                    u = g + 32
                    R = range(4)
                    for i in R: L.append(I(f"v_mul_f32 v{TMP+i}, v{g+i}, v{g+i}"))
                    for i in R: L.append(I(f"v_fma_f32 v{TMP+i}, v{TMP+i}, v{c+3}, v{c+1}"))
                    for i in R: L.append(I(f"v_mul_f32 v{TMP+i}, v{TMP+i}, v{g+i}"))
                    for i in R:
                        L.append(I(f"v_exp_f32 v{TMP+i}, v{TMP+i}"))
                        L.append(I(f"v_mul_f32 v{u+i}, v{g+i}, v{u+i}"))
                    for i in R: L.append(I(f"v_fma_f32 v{TMP+i}, v{TMP+i}, v{c+2}, v{c+2}"))
                    for i in R: L.append(I(f"v_rcp_f32 v{TMP+i}, v{TMP+i}"))
                    for i in R: L.append(I(f"v_mul_f32 v{u+i}, v{u+i}, v{TMP+i}"))
                    L.append(I(f"v_cvt_pk_bf16_f32 v{o+2*t2}, v{u}, v{u+1}"))
                    L.append(I(f"v_cvt_pk_bf16_f32 v{o+2*t2+1}, v{u+2}, v{u+3}"))
                L.append(I(f"buffer_store_dwordx4 {vr(o, 4)}, v1, s[8:11], s{so+p} offen offset:{1024*T} sc1"))
                last = L[-1].tok
        return L, last

    def epi_ab():
        L = []
        for t in range(10):
            o = ACCA + 8 * t
            for j in range(8):
                L.append(I(f"v_mul_f32 v{o+j}, v{o+j}, v{RS+j}", need=[rst[j // 4]]))
            for j in range(4):
                L.append(I(f"v_cvt_pk_bf16_f32 v{o+j}, v{o+2*j}, v{o+2*j+1}"))
            v, so, off = (1, sEA0, 1024 * t) if t < 4 else ((3, sEA0, 1024 * (t - 4)) if t < 8 else (1, sEA1, 1024 * (t - 8)))
            L.append(I(f"buffer_store_dwordx4 {vr(o, 4)}, v{v}, s[8:11], s{so} offen offset:{off} sc1"))
        return L, L[-1].tok

    pl, pc = flag_poll(V_FWD, sPWD)
    S.place(pl, k2[20], k2[21])
    S.place(pc, k2[22], k2[23])
    for kk in range(8):
        a = 20 + (20 * kk + 20 + 7) // 8
        S.place(wdL[kk], k2[a], k2[a + 2], spread=True)
    for s in (15, 16, 17):
        a, b = win(s - 3)
        S.place(wsL[s], a, min(b, a + 20), spread=True)
    pl, pc = flag_poll(V_FAB, sPAB)
    S.place(pl, k2[CFG["abp_ld"]], k2[CFG["abp_ld"] + 1])
    a = max(k2[CFG["abp_ck"]], bar[14] + 21)
    gl = S.place(pc + abL[15] + abL[16] + abL[17], a, bar[15])
    for s in range(18, 31):
        S.place(wsL[s] + abL[s], *win(s - 3), spread=True)
    if typ:
        L, last = epi_ab()
        S.place(L, k2[20] + 1, k2[CFG["ab_end"]])
        S.place([flag_store(sFA, [last])], k2[CFG["ab_flag"]] + 1, k2[CFG["ab_flag"] + 1])
    else:
        L, last = epi_gu(ACCA, 0, sEA0)
        S.place(L, k2[20] + 1, k2[40] - 2)
        S.place([flag_store(sFA, [last])], k2[46] + 1, k2[47])
    L, last = epi_gu(ACCB, 1, sEB0)
    S.place(L, k2[40] + 1, k2[CFG["epb_end"]])
    S.place([flag_store(sFB, [last])], k2[CFG["hb_flag"]] + 1, k2[CFG["hb_flag"] + 1])
    e0 = CFG["epb_end"]
    rl, rc = poll([f"buffer_load_dwordx4 {vr(TMP, 4)}, v3, s[8:11], 0 offen sc1"], tag_check([TMP + i for i in range(4)]))
    assert RF == 0x1000
    mi = K()
    xt = [mi(f"buffer_load_dwordx2 {vr(XU + 4*e + 2, 2)}, v{V_XO}, s[{S_X}:{S_X+3}], s{sXO} offen offset:{32*e}") for e in range(5)]
    mi(f"v_and_b32 v{TMP+4}, 15, v2")
    mi(f"v_lshrrev_b32 v{TMP+5}, 4, v2")
    mi(f"v_lshlrev_b32 v{TMP+5}, 2, v{TMP+5}")
    mi(f"v_sub_u32 v{TMP+4}, v{TMP+4}, v{TMP+5}")
    mi(f"v_lshlrev_b32 v{TMP+5}, 4, v{TMP+4}")
    mi(f"v_mov_b32 v{TMP+6}, 0x3f80")
    mi(f"v_lshlrev_b32 v{TMP+5}, v{TMP+5}, v{TMP+6}")
    mi(f"v_lshrrev_b32 v{TMP+4}, 1, v{TMP+4}")
    for r in (0, 1, 4, 5):
        mi(f"v_mov_b32 v{SEL+r}, 0")
    for d in range(2):
        mi.L.append([I(f"v_cmp_eq_u32 vcc, {d}, v{TMP+4}"), I(f"v_cndmask_b32 v{SEL+2+d}, 0, v{TMP+5}, vcc")])
    mi.L.append([I("s_bitcmp1_b32 s3, 0"), I("s_cselect_b64 vcc, -1, 0")] +
                [I(f"v_cndmask_b32 v{SEL+6+i}, v{SEL+2+i}, v{SEL+i}, vcc") for i in range(4)])
    for j in range(4):
        mi(f"s_add_u32 s{sH8+j}, s{sHB}, {4096*(8+j)}")
    S.place(rl + mi.L, k2[e0], k2[e0 + 3])
    xu = K()
    for e in range(5):
        b = XU + 4 * e
        xu(f"v_lshlrev_b32 v{b}, 16, v{b+2}", need=[xt[e]])
        xu(f"v_and_b32 v{b+1}, 0xffff0000, v{b+2}")
        xu(f"v_lshlrev_b32 v{b+2}, 16, v{b+3}")
        xu(f"v_and_b32 v{b+3}, 0xffff0000, v{b+3}")
    S.place(rc + [flag_store(sLEAD, [])] + xu.L, k2[e0 + 4], k2[CFG["hp_ld"]])
    pl, pc = flag_poll(V_FH, sPH)
    S.place(pl, k2[CFG["hp_ld"]], k2[CFG["hp_ld"] + 1])
    S.place(pc + sum((hL[kk] for kk in range(6)), []), k2[CFG["hp_ck"]], gD - 10)

    pub = K()
    units = [(ACCA + 4 * (5 * tt + 2 * h), ACCA + 4 * (5 * tt + 2 * h + 1)) for tt in range(4) for h in range(2)]
    units += [(ACCA + 4 * (10 * p + 4), ACCA + 4 * (10 * p + 9)) for p in range(2)]
    pub(f"s_add_u32 s{sYT}, s{sYPUB}, 8192")
    for u, (a, b) in enumerate(units):
        pub(f"v_cvt_pk_bf16_f32 v{a}, v{a}, v{a+1}")
        pub(f"v_cvt_pk_bf16_f32 v{a+1}, v{a+2}, v{a+3}")
        pub(f"v_cvt_pk_bf16_f32 v{a+2}, v{b}, v{b+1}")
        pub(f"v_cvt_pk_bf16_f32 v{a+3}, v{b+2}, v{b+3}")
        v, so, off = (1, sYPUB, 1024 * u) if u < 4 else ((3, sYPUB, 1024 * (u - 4)) if u < 8 else (1, sYT, 1024 * (u - 8)))
        last = pub(f"buffer_store_dwordx4 {vr(a, 4)}, v{v}, s[8:11], s{so} offen offset:{off} sc1")
    tag(pub.L, "pub")
    S.place(pub.L, gD + 1, gD + 30)
    S.place(wdL[8], gD + 1, gD + 20)
    S.place(hL[6] + wdL[9], gD + 20, gD + 40)
    S.place(hL[7] + wdL[10], gD + 40, gD + 60)
    S.place(htL[0] + wdL[11], gD + 60, gD + 80)
    S.place(htL[1] + htL[2], gD + 80, gD + 100)
    S.place(htL[3], gD + 100, gD + 120)
    S.place([flag_store(sFY, [last])], gD + CFG["yflag"], gD + CFG["yflag"] + 4)
    pl, pc = flag_poll(V_FY, sPY)
    S.place(pl, gD + CFG["yp_ld"], gD + CFG["yp_ld"] + 4)
    S.place(pc + gat, gD + CFG["yp_ck"], gD + CFG["yp_ck"] + 12)
    wl = None
    for t in range(3):
        W = [I(f"ds_write_b128 v{V_DW+t}, {dacc(t, e)} offset:{5120*t + 1024*e}") for e in range(5)]
        S.place(W, gT[t + 1] + 1, gT[t + 1] + 12, cap=4)
        wl = W[-1].tok
    rr = {}
    R = [I("s_barrier", need=[wl])]
    for e in range(5):
        for j in range(3):
            R.append(I(f"ds_read_b128 {vr(RED + 12*e + 4*j, 4)}, v{V_DW+3} offset:{5120*j + 1024*e}"))
            rr[e, j] = R[-1].tok
    S.place(R, gT[3] + 12, gT["ysum"] + 4)
    fin = K()
    for e in range(5):
        b, d, y, x = RED + 12 * e, OWN + 4 * e, Y + 4 * e, XU + 4 * e
        Rg = range(4)
        for i in Rg: fin(f"v_add_f32 v{b+i}, v{b+i}, v{b+4+i}", need=[rr[e, 0], rr[e, 1]])
        for i in Rg: fin(f"v_add_f32 v{d+i}, v{d+i}, v{b+8+i}", need=[rr[e, 2]])
        for i in Rg: fin(f"v_add_f32 v{d+i}, v{d+i}, v{b+i}")
        for i in Rg: fin(f"v_mul_f32 v{b+i}, {f2h(-L2E)}, v{d+i}")
        for i in Rg: fin(f"v_exp_f32 v{b+i}, v{b+i}")
        for i in Rg: fin(f"v_add_f32 v{b+i}, 1.0, v{b+i}")
        for i in Rg: fin(f"v_rcp_f32 v{b+i}, v{b+i}")
        for i in Rg: fin(f"v_mul_f32 v{d+i}, v{d+i}, v{b+i}")
    fin2 = K()
    for e in range(5):
        b, d, y, x = RED + 12 * e, OWN + 4 * e, Y + 4 * e, XU + 4 * e
        for i in range(4): fin2(f"v_fma_f32 v{d+i}, v{d+i}, v{y+i}, v{x+i}")
        fin2(f"v_cvt_pk_bf16_f32 v{d}, v{d}, v{d+1}")
        fin2(f"v_cvt_pk_bf16_f32 v{d+1}, v{d+2}, v{d+3}")
        fin2(f"buffer_store_dwordx2 {vr(d, 2)}, v{V_XO}, s[{S_OUT}:{S_OUT+3}], s{sXO} offen offset:{32*e}")
    S.place(fin.L, gT["ysum"] + 4, gEnd + 1)
    S.put(gEnd, fin2.L)
    if CFG["TS"]:
        for i, g in enumerate([0, k2[20], k2[40], gD, gT[3], gT["ysum"]]):
            S.put(g, stamp(i + 1), front=True)
    info = dict(A=S.est_cycles(0, k2[20]), B=S.est_cycles(k2[20], k2[40]), y=S.est_cycles(k2[40], gD), d=S.est_cycles(gD, gEnd),
                tail=S.used[gEnd], nm=gEnd)
    body = P.L + pre + S.flat() + stamp_end(8, ACCA) + [I("s_endpgm")]
    fin_ = finalize(body)
    check(fin_)
    return fin_ + slow, info


def check(L):
    pend = {"vm": [], "lgkm": []}
    lastw = {}
    owner = {}
    for n, ins in enumerate(L):
        if ins.kind in ("label", "meta"):
            continue
        if ins.text.startswith("s_waitcnt"):
            for c, nm in (("vm", "vmcnt"), ("lgkm", "lgkmcnt")):
                m = re.search(nm + r"\((\d+)\)", ins.text)
                if m:
                    k = int(m.group(1))
                    pend[c] = pend[c][len(pend[c]) - k:] if k < len(pend[c]) else pend[c]
                    if k == 0: pend[c] = []
            continue
        touched = ins.rd | ins.wr
        for c in pend:
            for p in pend[c]:
                if p.wr & touched:
                    raise SystemExit(f"PENDING hazard at {n}: {ins.text}  <- {p.text}")
        for t in ins.need:
            o = owner.get(id(t))
            if o is not None:
                for r in o.wr & ins.rd:
                    if lastw.get(r) is not o:
                        raise SystemExit(f"CLOBBER at {n}: {ins.text} expects {o.text} but last writer {lastw[r].text}")
        st = [f for f in ins.flags if f.startswith("S:")]
        if st and ins.kind == "vm":
            for r in ins.rd:
                if (r == ("x", "m0") or r in (("s", sWDT), ("s", sHT), ("s", sYT))) and r in lastw:
                    st2 = [f for f in lastw[r].flags if f.startswith("S:")]
                    if st2 != st:
                        raise SystemExit(f"STREAM clash at {n}: {ins.text} {st} vs {lastw[r].text} {st2}")
        if ins.tok is not None and ins.tok.cls in pend:
            pend[ins.tok.cls].append(ins)
            owner[id(ins.tok)] = ins
            assert len(pend["vm"]) <= 63, f"vm overflow at {n}"
        for r in ins.wr:
            lastw[r] = ins


def build(path, verbose=True):
    lab = NAME + "_kernel"
    s = "; generated by work/gen3.py\n; @launch grid=(256,1,1) block=(256,1,1) lds=163840\n"
    s += '.amdgcn_target "amdgcn-amd-amdhsa--gfx950"\n.text\n'
    s += f".globl {lab}\n.p2align 8\n.type {lab},@function\n{lab}:\n" + text(gen_head())
    for typ in (0, 1):
        L, info = gen_prog(typ)
        if verbose:
            nn = sum(1 for i in L if i.text.startswith("s_nop"))
            nw = sum(1 for i in L if i.text.startswith("s_waitcnt"))
            print("EO"[typ], info, "instrs", len(L), "nops", nn, "waits", nw)
        s += text(L)
    s += "L_end:\n  s_endpgm\n"
    s += '.section .rodata,"a"\n.p2align 6\n'
    s += (f".amdhsa_kernel {lab}\n  .amdhsa_next_free_vgpr 512\n  .amdhsa_next_free_sgpr 102\n  .amdhsa_accum_offset 256\n"
          "  .amdhsa_group_segment_fixed_size 0\n  .amdhsa_kernarg_size 96\n  .amdhsa_user_sgpr_count 2\n"
          "  .amdhsa_user_sgpr_kernarg_segment_ptr 1\n  .amdhsa_system_sgpr_workgroup_id_x 1\n.end_amdhsa_kernel\n")
    open(path, "w").write(s)


if __name__ == "__main__":
    for a in sys.argv[2:]:
        if a == "ts":
            CFG["TS"] = True
        else:
            k, v = a.split("=", 1)
            CFG[k] = eval(v)
    build(sys.argv[1] if len(sys.argv) > 1 else "v3.s")
```

```python
import re

TRANS = ("v_exp_f32", "v_log_f32", "v_rcp_f32", "v_rsq_f32", "v_sqrt_f32", "v_sin_f32", "v_cos_f32")


class Tok:
    __slots__ = ("cls", "seq", "name")

    def __init__(self, cls, name=""):
        self.cls = cls
        self.seq = None
        self.name = name


class I:
    __slots__ = ("text", "kind", "tok", "need", "wr", "rd", "srcc", "flags")

    def __init__(self, text, need=(), tok=None, flags=()):
        self.text = text.strip()
        self.need = [t for t in need if t is not None]
        self.flags = set(flags)
        self.kind = classify(self.text)
        self.tok = tok
        if self.kind == "vm" and tok is None:
            self.tok = Tok("vm")
        if self.kind == "ds" and tok is None:
            self.tok = Tok("lgkm")
        self.wr, self.rd, self.srcc = regs_of(self.text, self.kind)


def classify(t):
    op = t.split()[0]
    if op.endswith(":"):
        return "label"
    if op.startswith(";") or op.startswith("."):
        return "meta"
    if op.startswith("v_mfma"):
        return "mfma"
    if op.startswith("v_"):
        base = op.replace("_e32", "").replace("_e64", "")
        return "trans" if base in TRANS else "valu"
    if op.startswith("ds_"):
        return "ds"
    if op.startswith("buffer_") or op.startswith("global_"):
        if op.startswith("buffer_inv") or op.startswith("buffer_wbl2"):
            return "vm"
        return "vm"
    if op.startswith("s_load") or op.startswith("s_memtime") or op.startswith("s_memrealtime"):
        return "smem"
    if op.startswith("s_"):
        return "salu"
    raise ValueError("unknown instr " + t)


_R = re.compile(r"^(-|\|)?(neg\()?([vas])(\d+)$|^([vas])\[(\d+):(\d+)\]$")


def parse_reg(o):
    o = o.strip()
    o = o.lstrip("-").strip("|")
    m = re.match(r"^([vas])(\d+)$", o)
    if m:
        return {(m.group(1), int(m.group(2)))}
    m = re.match(r"^([vas])\[(\d+):(\d+)\]$", o)
    if m:
        return {(m.group(1), i) for i in range(int(m.group(2)), int(m.group(3)) + 1)}
    if o in ("vcc", "vcc_lo", "vcc_hi"):
        return {("x", "vcc")}
    if o in ("exec", "exec_lo", "exec_hi"):
        return {("x", "exec")}
    if o == "m0":
        return {("x", "m0")}
    return set()


def regs_of(t, kind):
    if kind in ("label", "meta"):
        return set(), set(), set()
    t = t.split(";")[0]
    parts = t.split(None, 1)
    op = parts[0]
    ops = []
    if len(parts) > 1:
        for o in parts[1].split(","):
            o = o.strip()
            if o:
                ops.append(o.split()[0])
    R = [parse_reg(o) for o in ops]
    wr, rd, srcc = set(), set(), set()
    U = lambda l: set().union(*l) if l else set()
    if kind == "mfma":
        wr = R[0]
        rd = R[1] | R[2] | R[3]
        srcc = R[3]
    elif kind in ("valu", "trans"):
        if "swap" in op:
            wr = R[0] | R[1]
            rd = R[0] | R[1]
        elif op.startswith("v_cmp"):
            wr = R[0]
            rd = U(R[1:])
        else:
            wr = R[0]
            rd = U(R[1:])
            if op.startswith(("v_fmac", "v_mac", "v_dot2c", "v_pk_fmac")) or "dpp" in t or "row_" in t or "quad_perm" in t:
                rd = rd | R[0]
            if op.startswith("v_cndmask") and len(R) == 3:
                rd = rd | {("x", "vcc")}
    elif kind == "ds":
        if op.startswith("ds_read") or op.startswith("ds_bpermute") or op.startswith("ds_swizzle"):
            wr = R[0]
            rd = U(R[1:])
        else:
            rd = U(R)
    elif kind == "vm":
        is_lds = bool(re.search(r"\blds\b", t))
        if op.startswith(("buffer_load", "global_load")) and not is_lds:
            wr = R[0]
            rd = U(R[1:])
        elif "atomic" in op and re.search(r"\bsc0\b", t):
            wr = R[0]
            rd = U(R)
        else:
            rd = U(R)
            if is_lds:
                rd = rd | {("x", "m0")}
    elif kind == "smem":
        wr = R[0]
        rd = U(R[1:])
    elif kind == "salu":
        if op.startswith(("s_cmp", "s_waitcnt", "s_barrier", "s_branch", "s_cbranch", "s_nop", "s_endpgm", "s_setprio",
                          "s_sleep", "s_bitcmp")):
            rd = U(R)
        else:
            wr = R[0] if R else set()
            rd = U(R[1:])
            if "saveexec" in op:
                wr = wr | {("x", "exec")}
    return wr, rd, srcc


def interleave(main, side, start=0, end=None, per_gap=None):
    idx = [i for i, ins in enumerate(main) if ins.kind == "mfma"]
    if end is None:
        end = len(idx)
    n = end - start
    assert n > 0
    out = []
    si = 0
    mi = 0
    for i, ins in enumerate(main):
        out.append(ins)
        if ins.kind == "mfma":
            if start <= mi < end:
                target = ((mi - start + 1) * len(side) + n - 1) // n if per_gap is None else min(len(side), (mi - start + 1) * per_gap)
                while si < min(target, len(side)):
                    out.append(side[si])
                    si += 1
                if mi == end - 1:
                    while si < len(side):
                        out.append(side[si])
                        si += 1
            mi += 1
    assert si == len(side)
    return out


def states(ins):
    if ins.kind in ("label", "meta"):
        return 0
    if ins.text.startswith("s_nop"):
        return int(ins.text.split()[1]) + 1
    return 1


def is_wide_store(ins):
    op = ins.text.split()[0]
    return ins.kind == "vm" and op in ("buffer_store_dwordx4", "buffer_store_dwordx3", "global_store_dwordx4", "global_store_dwordx3")


def need_states(p, c):
    n = 0
    pv = p.kind in ("valu", "trans")
    cv = c.kind in ("valu", "trans")
    cop = c.text.split()[0]
    if p.kind == "mfma":
        passes = 4 if "16x16x" in p.text else 8
        big = {4: 8, 8: 12}[passes]
        if c.kind == "mfma":
            ab = c.rd - c.srcc if c.srcc else c.rd
            t = c.text.split(None, 1)[1].split(",")
            abr = parse_reg(t[1].split()[0]) | parse_reg(t[2].split()[0])
            if p.wr & abr:
                n = max(n, big)
            if p.wr & c.srcc and p.wr != c.srcc:
                n = max(n, {4: 6, 8: 10}[passes])
            if p.wr & c.wr and not (p.wr & c.srcc):
                n = max(n, {4: 6, 8: 10}[passes])
        elif c.kind in ("valu", "trans", "vm", "ds"):
            if p.wr & (c.rd | c.wr):
                n = max(n, big)
            if cv and (p.srcc & c.wr):
                n = max(n, {4: 3, 8: 7}[passes])
    if pv:
        vw = {r for r in p.wr if r[0] in "va"}
        sw = {r for r in p.wr if r[0] == "s" or r == ("x", "vcc")}
        if c.kind == "mfma" and vw & c.rd:
            n = max(n, 2)
        if c.kind == "mfma" and ("x", "exec") in p.wr:
            n = max(n, 4)
        if cv and vw & c.rd:
            if "permlane" in cop or "dpp" in c.text or "row_" in c.text or "quad_perm" in c.text:
                n = max(n, 2)
            if cop.startswith(("v_readfirstlane", "v_readlane")):
                n = max(n, 1)
            if p.kind == "trans" and c.kind != "trans":
                n = max(n, 1)
            if p.kind == "trans":
                n = max(n, 1)
            if "op_sel" in p.text or "sdwa" in p.text:
                n = max(n, 1)
        if p.text.startswith("v_dot") and (vw & (c.rd | c.wr)):
            pop = p.text.split()[0]
            if cop != pop:
                n = max(n, 3)
            else:
                t = c.text.split(None, 1)[1].split(",")
                if vw & (parse_reg(t[1].split()[0]) | parse_reg(t[2].split()[0])):
                    n = max(n, 3)
        if sw & c.rd:
            if c.kind == "vm":
                n = max(n, 5)
            elif cv:
                n = max(n, 4 if cop.startswith(("v_readlane", "v_writelane")) else 2)
    if p.kind == "salu" and ("x", "m0") in p.wr and ("x", "m0") in c.rd and c.kind in ("vm", "ds"):
        n = max(n, 1)
    if is_wide_store(p):
        data = parse_reg(p.text.split(None, 1)[1].split(",")[0].split()[0])
        if data & c.wr:
            n = max(n, 2)
    return n


def finalize(instrs, hazard_window=14):
    out = []
    cnt = {"vm": 0, "lgkm": 0}
    done = {"vm": 0, "lgkm": 0}
    mx = {"vm": 63, "lgkm": 15}
    for ins in instrs:
        req = {}
        for t in ins.need:
            assert t.seq is not None, f"token {t.name} needed before issue by: {ins.text}"
            if t.seq + 1 > done[t.cls]:
                req[t.cls] = max(req.get(t.cls, 0), t.seq + 1)
        if req:
            parts = []
            for c in ("vm", "lgkm"):
                if c in req:
                    n = min(cnt[c] - req[c], mx[c])
                    parts.append(f"{'vmcnt' if c == 'vm' else 'lgkmcnt'}({n})")
                    done[c] = max(done[c], cnt[c] - n)
            out.append(I("s_waitcnt " + " ".join(parts)))
        if ins.text.startswith("s_waitcnt") and "raw" not in ins.flags:
            m = re.search(r"vmcnt\((\d+)\)", ins.text)
            if m:
                done["vm"] = max(done["vm"], cnt["vm"] - int(m.group(1)))
            m = re.search(r"lgkmcnt\((\d+)\)", ins.text)
            if m:
                done["lgkm"] = max(done["lgkm"], cnt["lgkm"] - int(m.group(1)))
        if ins.tok is not None and ins.tok.cls != "none":
            ins.tok.seq = cnt[ins.tok.cls]
            cnt[ins.tok.cls] += 1
        if ins.text != "; nop-need":
            out.append(ins)
    res = []
    for ins in out:
        if ins.kind in ("label", "meta"):
            res.append(ins)
            continue
        dist = 0
        pad = 0
        for p in reversed(res):
            if dist >= hazard_window:
                break
            n = need_states(p, ins)
            if n > dist:
                pad = max(pad, n - dist)
            dist += states(p)
        while pad > 0:
            k = min(pad, 16)
            res.append(I(f"s_nop {k - 1}"))
            pad -= k
        res.append(ins)
    return res


def text(instrs):
    L = []
    for i in instrs:
        if i.kind == "label":
            L.append(i.text)
        else:
            L.append("  " + i.text)
    return "\n".join(L) + "\n"


def vr(b, n=1, f="v"):
    return f"{f}{b}" if n == 1 else f"{f}[{b}:{b + n - 1}]"


def ar(b, n=1):
    return vr(b, n, "a")


def sr(b, n=1):
    return vr(b, n, "s")


def wait_for(*toks):
    return I("; nop-need", need=toks)


def cost(ins):
    if isinstance(ins, (list, tuple)):
        return sum(cost(i) for i in ins)
    if ins.kind in ("label", "meta"):
        return 0
    if ins.kind == "trans":
        return 8
    if ins.text.startswith("v_dot"):
        return 8
    return 4


class Sched:
    def __init__(self):
        self.m = []
        self.gap = [[]]
        self.used = [0]

    def n(self):
        return len(self.m)

    def mfma(self, ins):
        self.m.append(ins)
        self.gap.append([])
        self.used.append(0)

    def put(self, g, items, front=False):
        items = [x for it in items for x in (it if isinstance(it, (list, tuple)) else [it])]
        if front:
            self.gap[g] = items + self.gap[g]
        else:
            self.gap[g] += items
        self.used[g] += cost(items)

    def _try(self, stream, start, end, cap, spread):
        used = {}
        free = [max(0, cap - self.used[g]) for g in range(start, end)]
        tot_free = sum(f - f % 4 for f in free)
        tot = cost(stream)
        if tot > tot_free:
            return None
        pos = []
        g = start
        acc_free = 0
        acc_cost = 0
        for it in stream:
            c = cost(it)
            while True:
                if g >= end:
                    return None
                f = free[g - start] - used.get(g, 0)
                ok = f >= c or (c > cap and used.get(g, 0) == 0 and self.used[g] == 0)
                if ok and spread:
                    ok = acc_cost * tot_free <= (acc_free + free[g - start] - free[g - start] % 4) * tot * 1.0 - 1e-9 or acc_cost == 0
                if ok:
                    break
                acc_free += free[g - start] - free[g - start] % 4
                g += 1
            used[g] = used.get(g, 0) + c
            acc_cost += c
            pos.append(g)
        return pos

    def place(self, stream, start, end, cap=8, spread=False):
        if not stream:
            return start
        assert start < end <= len(self.gap), (start, end, len(self.gap))
        while True:
            pos = self._try(stream, start, end, cap, spread)
            if pos is not None:
                break
            cap += 4
            assert cap < 4000
        for it, g in zip(stream, pos):
            self.put(g, [it])
        self.lastpos = pos
        self.lastcap = cap
        return pos[-1]

    def flat(self):
        out = []
        for g, ins in enumerate(self.m):
            out += self.gap[g]
            out.append(ins)
        out += self.gap[len(self.m)]
        return out

    def est_cycles(self, a=0, b=None):
        b = len(self.m) if b is None else b
        return sum(max(16, 8 + self.used[g]) for g in range(a, b))


def _capf(level):
    base, frac = divmod(level, 32)
    return lambda g: 8 + 4 * base + (4 if (g * frac) % 32 < frac else 0)


def place_dag(S, stream, start, end, window=40, level0=0):
    n = len(stream)
    pred = [set() for _ in range(n)]
    for j in range(n):
        for i in range(j):
            a, b = stream[i], stream[j]
            if (a.wr & (b.rd | b.wr)) or (a.rd & b.wr) or (a.kind == "vm" and b.kind == "vm"):
                pred[j].add(i)
    level = level0
    while True:
        cap = _capf(level)
        pos = [None] * n
        order = []
        lo = 0
        g = start
        while g < end and lo < n:
            free = cap(g) - S.used[g]
            while free >= 4:
                cand = []
                for j in range(lo, min(n, lo + window)):
                    if pos[j] is not None:
                        continue
                    ok = True
                    for i in pred[j]:
                        if pos[i] is None or (pos[i] == g and (stream[i].kind == "trans" or stream[i].kind == "vm")):
                            ok = False
                            break
                    if ok and cost(stream[j]) <= free:
                        cand.append(j)
                if not cand:
                    break
                tr = [j for j in cand if cost(stream[j]) == 8]
                j = tr[0] if tr else cand[0]
                pos[j] = g
                order.append(j)
                free -= cost(stream[j])
                while lo < n and pos[lo] is not None:
                    lo += 1
            g += 1
        if lo >= n:
            break
        level += 1
        assert level < 400
    for j in order:
        S.put(pos[j], [stream[j]])
    S.lastpos = pos
    return max(pos), level
```

```python
import sys, struct, re
sys.path.insert(0, "work")
from asmlib import *

NAME = "recurrent_scan__spectral_fnet__glu_gated_geglu__prompt"
W0, RF, STAT, CSD = 0, 0x1000, 0x8000, 0x10000
ABF, HF, WDF = 0x40000, 0x60000, 0x50000
WD, ABT, HH, YP, TSB, WS_SIZE = 0x100000, 0x300000, 0x800000, 0xE00000, 0x1900000, 0x1A00000
OOB = 0x7ff00000
SLOT = 36864
SPARE = 4 * SLOT
C1 = -2.0 * 0.7978845608028654 * 1.4426950408889634
L2E = 1.4426950408889634
MF = "v_mfma_f32_16x16x32_bf16"

MF16 = "v_mfma_f32_16x16x16_bf16"
CFG = dict(TS=False, nt_x="", nt_w="", nt_ws="", rot=True, pro=2, pro2=3, FS=2, pf_gu=-1, pf_h=True,
           j3_rd=2, j3_flag=9, ini=(4, 38), rf_bar=43,
           st_ld=(15, 12), st_ck=(18, 14), ab_end=24, ab_flag=28, abp_ld=31, abp_ck=33,
           wdp_ld=22, wdp_ck=24, ha_flag=44, epb_end=57, hb_flag=61, rf_ld=50, rf_ck=53,
           hp0_ld=53, hp0_ck=56, h0_end=65, hp_ld=66, hp_ck=69, gat=140, rdsp=False, win=60, tsk=1, probe=False)


def f2h(f):
    return hex(struct.unpack("<I", struct.pack("<f", f))[0])


S_AUX, S_WS, S_X, S_GU, S_WA, S_WSQ, S_OUT = 4, 8, 12, 40, 44, 48, 52
sXQ, sRB, sCG, sCB4, sT64, sEB8, sB32, sKS4 = 56, 57, 58, 59, 60, 61, 62, 63
sNON, sSPIN, sW4K, sW5K, sSX, sSW, sSWS, sSWB = 64, 65, 66, 67, 68, 69, 70, 71
sAB = 72
sHB, sWDB, sYPUB, sYGA, sXO, sWDT, sHT, sYT = 76, 77, 78, 79, 80, 81, 82, 83
sU0, sU1 = 100, 101
sT0, sT1, sT2, sT3 = 16, 17, 18, 19
sSO, sSTL, sCSL, sEA0, sEA1, sEB0, sEB1, sFA, sFB = 21, 22, 23, 24, 25, 26, 27, 28, 29
sPAB, sPH, sPWD, sPY, sFY, sJ3D, sFJ, sRF, sLEAD, sSGN = 30, 31, 32, 33, 34, 35, 36, 37, 38, 39
sB0 = 98
sH8 = 4
STS = 84

V_G = 0
V_X, V_GU, V_WD, R_X, R_WD, R_GU = 4, 8, 12, 18, 22, 26
VJ3R, VJ3 = 12, 13
OWN, XU = 4, 24
V_WS, R_WS, R_AB, V_AB = 44, 48, 52, 54
ST, ONES, SEL = 56, 64, 56
V_CA, V_CR, V_NON, V_L0, V_POLL, V_XO, V_ST, V_H, TMP = 68, 69, 71, 72, 73, 74, 75, 76, 80
V_FAB, V_FH, V_FWD, V_FH2, V_DW = 88, 89, 90, 91, 92
V_PF, INI, NMB, V_S0 = 42, 252, 64, 44
ACCA, ACCB, CSB = 96, 176, 240
FB = 160
ACS = 240
XCH = SLOT
STG = [3 * SLOT, 3 * SLOT + 16384, 0, 16384]
STG4 = 3 * SLOT + 32768


def srd(dst, lo, nbytes):
    return [I(f"s_mov_b32 s{dst}, s{lo}"), I(f"s_and_b32 s{dst+1}, s{lo+1}, 0xffff"),
            I(f"s_mov_b32 s{dst+2}, {hex(nbytes)}"), I(f"s_mov_b32 s{dst+3}, 0x20000")]


def srd_sel(dst, lo0, lo1, nbytes):
    return [I(f"s_cselect_b32 s{dst}, s{lo1}, s{lo0}"), I(f"s_cselect_b32 s{dst+1}, s{lo1+1}, s{lo0+1}"),
            I(f"s_and_b32 s{dst+1}, s{dst+1}, 0xffff"), I(f"s_mov_b32 s{dst+2}, {hex(nbytes)}"), I(f"s_mov_b32 s{dst+3}, 0x20000")]


class K:
    def __init__(self):
        self.L = []

    def __call__(self, t, need=(), **kw):
        i = I(t, need=need, **kw)
        self.L.append(i)
        return i.tok

    def ext(self, l):
        self.L.extend(l)


V_TS = 87
V_TS2 = 68


def stamp(i):
    if not CFG["TS"]:
        return []
    L = [I("s_waitcnt lgkmcnt(0)")]
    if i > 0:
        L.append(I(f"v_writelane_b32 v{V_TS if i - 1 < 64 else V_TS2}, s{STS + 2*((i-1) & 1)}, {(i-1) & 63}"))
    L.append(I(f"s_memrealtime s[{STS+2*(i & 1)}:{STS+2*(i & 1)+1}]"))
    return [L]


def ST_(name):
    return [I(f"; STAMP {name}")] if CFG["TS"] else []


def expand_stamps(L, n0):
    out, names = [], []
    for i in L:
        if i.text.startswith("; STAMP"):
            out += flat1(stamp(n0 + len(names)))
            names.append(i.text.split()[2])
        else:
            out.append(i)
    return out, names


def flat1(l):
    return [x for it in l for x in (it if isinstance(it, (list, tuple)) else [it])]


def stamp_end(n):
    if not CFG["TS"]:
        return []
    L = [I("s_waitcnt vmcnt(0)")] + flat1(stamp(n)) + flat1(stamp(n + 1))
    L += [I(f"v_writelane_b32 v{V_TS2}, s{sSPIN}, 63"), I(f"s_mov_b32 s16, {n + 1}"), I(f"v_writelane_b32 v{V_TS2}, s16, 62"),
          I("s_lshl_b32 s16, s2, 2"), I("s_add_u32 s16, s16, s3"), I("s_lshl_b32 s16, s16, 9"), I(f"s_add_u32 s16, s16, {hex(TSB)}"),
          I("v_lshlrev_b32 v1, 2, v2"),
          I(f"buffer_store_dword v{V_TS}, v1, s[8:11], s16 offen"),
          I(f"buffer_store_dword v{V_TS2}, v1, s[8:11], s16 offen offset:256"), I("s_waitcnt vmcnt(0) lgkmcnt(0)")]
    return L


T0, T1, T2, T3 = TMP, TMP + 1, TMP + 2, TMP + 3
SF, SD1, SD2, SA = ACCB, ACCB + 20, ACCB + 24, ACCB + 28
CSR, CSV, NM, VK = ACCB + 32, ACCB + 40, ACCB + 52, ACCB + 60


def gen_head():
    P = K()
    P.ext(flat1(stamp(0)))
    P("s_load_dwordx16 s[16:31], s[0:1], 0")
    P("s_load_dwordx8 s[32:39], s[0:1], 64")
    P("v_lshrrev_b32 v1, 6, v0")
    P("v_and_b32 v2, 63, v0")
    P("v_readfirstlane_b32 s3, v1")
    P("s_cmp_ge_u32 s2, 256")
    P("s_cbranch_scc1 L_end")
    P(f"s_bfe_u32 s{sXQ}, s2, 0x10002")
    P(f"s_bfe_u32 s{sRB}, s2, 0x30003")
    P(f"s_and_b32 s{sU0}, s2, 1")
    P(f"s_lshl3_add_u32 s{sRB}, s{sU0}, s{sRB}")
    P(f"s_lshr_b32 s{sCB4}, s2, 6")
    P(f"s_lshl2_add_u32 s{sCG}, s{sXQ}, s{sCB4}")
    P(f"s_lshr_b32 s{sB0}, s{sCG}, 1")
    P(f"s_lshl2_add_u32 s{sB0}, s{sB0}, s{sCG}")
    P(f"s_bfe_u32 s{sKS4}, s2, 0x20001")
    P(f"s_lshl1_add_u32 s{sT64}, s{sRB}, s{sXQ}")
    P(f"s_and_b32 s{sEB8}, s{sKS4}, 1")
    P(f"s_lshl1_add_u32 s{sEB8}, s{sCB4}, s{sEB8}")
    P(f"s_mov_b32 s{sSPIN}, 30000")
    P(f"s_lshl_b32 s{sW4K}, s3, 12")
    P(f"s_mul_i32 s{sW5K}, s3, 5120")
    P(f"s_lshl2_add_u32 s{sB32}, s{sRB}, s3")
    P(f"s_mul_i32 s{sSX}, s{sB32}, {32*1280}")
    P(f"s_and_b32 s{sU0}, s3, 1")
    P(f"s_mul_i32 s{sSWB}, s{sU0}, {32*3072}")
    P(f"s_lshl_b32 s{sU0}, s{sU0}, 6")
    P("v_lshlrev_b32 v1, 4, v2")
    P("v_add_u32 v3, 0x1000, v1")
    P(f"v_bfe_u32 v{T1}, v2, 4, 1")
    P(f"v_lshlrev_b32 v{T1}, 1, v{T1}")
    P(f"v_and_b32 v{T2}, 7, v2")
    P(f"v_xor_b32 v{T1}, v{T1}, v{T2}")
    P(f"v_lshlrev_b32 v{T1}, 4, v{T1}")
    P(f"v_lshrrev_b32 v{T0}, 3, v2")
    P(f"v_mul_u32_u24 v{V_X}, 1280, v{T0}")
    P(f"v_add_u32 v{V_X}, v{V_X}, v{T1}")
    P(f"v_add_u32 v{V_X+1}, {8*1280-1024}, v{V_X}")
    P(f"v_xor_b32 v{T2}, 64, v{V_X}")
    P(f"v_add_u32 v{V_X+2}, {2*(8*1280-1024)}, v{T2}")
    P(f"v_add_u32 v{V_X+3}, {3*(8*1280-1024)}, v{T2}")
    P(f"v_mul_u32_u24 v{V_GU}, 3072, v{T0}")
    P(f"v_add_u32 v{V_GU}, v{V_GU}, v{T1}")
    P(f"v_xor_b32 v{T3}, 64, v{V_GU}")
    P(f"v_add_u32 v{V_GU+1}, {8*3072-1024}, v{T3}")
    P(f"v_add_u32 v{V_GU+2}, {2*(8*3072-1024)}, v{V_GU}")
    P(f"v_add_u32 v{V_GU+3}, {3*(8*3072-1024)}, v{T3}")
    P(f"v_xor_b32 v{V_WD}, s{sU0}, v{V_X}")
    P(f"v_xor_b32 v{T3}, 64, v{V_WD}")
    P(f"v_add_u32 v{V_WD+1}, {8*1280-1024}, v{T3}")
    P(f"v_add_u32 v{V_WD+2}, {2*(8*1280-1024)}, v{V_WD}")
    P(f"v_add_u32 v{V_WD+3}, {3*(8*1280-1024)}, v{T3}")
    P(f"v_add_u32 v{V_WD+4}, {4*8*1280}, v{V_WD}")
    P(f"v_lshl_add_u32 v{V_WS}, v{T0}, 12, v{T1}")
    P(f"v_bfe_u32 v{T2}, v2, 2, 2")
    P(f"v_and_b32 v{T3}, 3, v2")
    P(f"v_lshrrev_b32 v{T1}, 4, v2")
    P(f"v_mul_u32_u24 v{SA}, 1280, v{T2}")
    P(f"v_lshl_add_u32 v{SA}, v{T3}, 6, v{SA}")
    P(f"v_lshl_add_u32 v{SA}, v{T1}, 4, v{SA}")
    P(f"s_mov_b32 m0, s{sW4K}")
    P("s_waitcnt lgkmcnt(0)")
    P.ext(flat1(stamp(1)))
    P.ext(srd(S_X, 16, 2048 * 1280))
    for p in range(4):
        P(f"buffer_load_dwordx4 v{V_X+p}, s[{S_X}:{S_X+3}], s{sSX} offen offset:{1024*p}{CFG['nt_x']} lds")
    P(f"s_add_u32 s{sSX}, s{sSX}, 128")
    P.ext(srd(S_WS, 38, WS_SIZE))
    P("s_bitcmp1_b32 s2, 1")
    P("s_cbranch_scc1 O_prog")
    return finalize(P.L)


def gen_prog(typ):
    pf = "O" if typ else "E"
    INI = 252 if typ else 164
    P = K()
    slow = []
    ntx, ntw, ntws = CFG["nt_x"], CFG["nt_w"], CFG["nt_ws"]

    def tag(L, name):
        for i in flat1(L):
            i.flags.add("S:" + name)
        return L

    dma_tok = {}

    def dma_x(s):
        L = [I(f"s_add_u32 m0, s{sW4K}, {(s % 4)*SLOT}")]
        for p in range(4):
            L.append(I(f"buffer_load_dwordx4 v{V_X+p}, s[{S_X}:{S_X+3}], s{sSX} offen offset:{1024*p}{ntx} lds"))
        L.append(I(f"s_add_u32 s{sSX}, s{sSX}, 128"))
        return L

    def dma_gu(lds, sreg):
        L = [I(f"s_add_u32 m0, s{sW4K}, {lds}")]
        for p in range(4):
            L.append(I(f"buffer_load_dwordx4 v{V_GU+p}, s[{S_GU}:{S_GU+3}], s{sreg} offen offset:{1024*p}{ntw} lds"))
        L.append(I(f"s_add_u32 s{sreg}, s{sreg}, {64*3072}"))
        return L

    def dma_wd(s):
        b = (s % 4) * SLOT + 16384
        L = [I(f"s_add_u32 m0, s{sW5K}, {b}")]
        for p in range(4):
            L.append(I(f"buffer_load_dwordx4 v{V_WD+p}, s[{S_WA}:{S_WA+3}], s{sSW} offen offset:{1024*p}{ntw} lds"))
        L.append(I(f"s_add_u32 m0, s{sW5K}, {b + 4096}"))
        L.append(I(f"buffer_load_dwordx4 v{V_WD+4}, s[{S_WA}:{S_WA+3}], s{sSW} offen{ntw} lds"))
        L.append(I(f"s_add_u32 s{sSW}, s{sSW}, 128"))
        return L

    def last_vm(L):
        return [i for i in L if i.kind == "vm"][-1].tok

    def dma_stage(s):
        if s < 10:
            L = (dma_x(s) if s else []) + (dma_wd(s) if typ else dma_gu((s % 4) * SLOT + 16384, sSW))
        else:
            L = dma_gu((s % 4) * SLOT, sSWB) + dma_gu((s % 4) * SLOT + 16384, sSWB)
        dma_tok[s] = last_vm(L)
        return tag(L, f"dma{s}")

    def dma_ws(s):
        L = [I(f"s_add_u32 m0, s{sW4K}, {(s % 4)*SLOT}"), I(f"s_mul_i32 s{sAB + s % 4}, s{sSWS}, 160")]
        for p in range(4):
            L.append(I(f"buffer_load_dwordx4 v{V_WS+p}, s[{S_WSQ}:{S_WSQ+3}], s{sSWS} offen offset:{1024*p}{ntws} lds"))
        L.append(I(f"s_add_u32 s{sSWS}, s{sSWS}, 128"))
        L.append(I(f"s_and_b32 s{sSWS}, s{sSWS}, 0x7ff"))
        return tag(L, f"ws{s}")

    def dma_ab(s):
        b = (s % 4) * SLOT + 16384
        L = [I(f"s_add_u32 m0, s{sW5K}, {b}")]
        for p in range(4):
            L.append(I(f"buffer_load_dwordx4 v{V_AB}, s[8:11], s{sAB + s % 4} offen offset:{1024*p} sc1 lds"))
        L.append(I(f"s_add_u32 m0, s{sW5K}, {b + 4096}"))
        L.append(I(f"buffer_load_dwordx4 v{V_AB+1}, s[8:11], s{sAB + s % 4} offen sc1 lds"))
        dma_tok[s] = L[-1].tok
        return tag(L, f"ab{s}")

    npoll = [0]

    def poll(loads, check):
        k = npoll[0]; npoll[0] += 1
        li = [I(t) for t in loads]
        toks = [i.tok for i in li if i.tok is not None]
        chk = check(toks)
        grp = [chk[-1], I(f"s_cbranch_vccnz {pf}_slow{k}"), I(f"{pf}_ok{k}:")]
        S_ = [I(f"{pf}_slow{k}:")] + [I(t) for t in loads] + [I("s_waitcnt vmcnt(0)")] + check([])
        S_ += [I(f"s_cbranch_vccz {pf}_ok{k}"), I(f"s_sub_u32 s{sSPIN}, s{sSPIN}, 1"), I(f"s_cmp_gt_i32 s{sSPIN}, 0"),
               I(f"s_cbranch_scc1 {pf}_slow{k}"), I(f"s_branch {pf}_ok{k}")]
        slow.extend(finalize(S_))
        return li, chk[:-1] + [grp]

    def flag_poll(voff, soff):
        return poll([f"buffer_load_dword v{V_POLL}, v{voff}, s[8:11], s{soff} offen sc1"],
                    lambda need: [I(f"v_cmp_ne_u32 vcc, s{sNON}, v{V_POLL}", need=need)])

    def tag_check(regs):
        def chk(need):
            L = [I(f"v_xor_b32 v{V_POLL}, s{sNON}, v{regs[0]}", need=need)]
            for r in regs[1:]:
                L.append(I(f"v_xad_u32 v{V_POLL}, v{r}, s{sNON}, v{V_POLL}"))
            L.append(I(f"v_cmp_ne_u32 vcc, 0, v{V_POLL}"))
            return L
        return chk

    def flag_store(sreg, need):
        return I(f"buffer_store_dword v{V_NON}, v{V_L0}, s[8:11], s{sreg} offen sc1", need=need)

    P(f"{pf}_prog:")
    if typ:
        P(f"s_cmp_eq_u32 s{sXQ}, 1")
        P.ext(srd_sel(S_WA, 22, 24, 640 * 1280))
        P(f"s_lshl2_add_u32 s{sSW}, s{sCB4}, s3")
        P(f"s_mul_i32 s{sSW}, s{sSW}, {40*1280}")
    else:
        P("s_cmp_ge_u32 s3, 2")
        P.ext(srd_sel(S_GU, 28, 30, 640 * 3072))
        P(f"s_lshl_b32 s{sSW}, s{sB0}, 7")
        P(f"s_add_u32 s{sSW}, s{sSW}, s{sSWB}")
    if CFG["probe"]: P.ext(ST_("x0"))
    P.ext(dma_stage(0))
    if CFG["probe"]: P.ext(ST_("w0"))
    w0tok = P(f"buffer_load_dword v{V_NON}, off, s[8:11], 0 sc1")
    if typ:
        P(f"s_mul_i32 s{sU1}, s{sCB4}, 40")
        P(f"s_add_u32 s{sU1}, s{sU1}, s{sB32}")
        P(f"s_cmp_lt_u32 s{sB32}, 40")
        P(f"s_cselect_b32 s{sWDT}, 0, {hex(OOB)}")
        P(f"s_mul_i32 s{sHT}, s{sU1}, {4*1280}")
        P(f"s_add_u32 s{sHT}, s{sHT}, s{sWDT}")
        ssrd = S_WA
    else:
        P(f"s_lshl3_add_u32 s{sU1}, s{sRB}, s{sCG}")
        P(f"s_lshl2_add_u32 s{sU1}, s{sU1}, s3")
        P(f"s_mul_i32 s{sHT}, s{sU1}, {4*1280}")
        ssrd = S_X
    stok = [P(f"buffer_load_dwordx4 {vr(SF + 4*i, 4)}, v{SA}, s[{ssrd}:{ssrd+3}], s{sHT} offen offset:{256*i}") for i in range(5)]
    if CFG["probe"]:
        P.ext(ST_("S"))
        L1 = dma_stage(1)
        P.ext(L1[:3] + ST_("x1a") + L1[3:6] + ST_("x1") + L1[6:9] + ST_("w1a") + L1[9:] + ST_("w1"))
    else:
        P.ext(dma_stage(1))
    jt = None
    if not typ:
        P.ext(srd(S_AUX, 32, 1536 * 1280))
        P(f"s_and_b32 s{sYT}, s2, 1")
        P(f"s_lshl1_add_u32 s{sYT}, s{sXQ}, s{sYT}")
        P(f"s_lshl_b32 s{sYT}, s{sYT}, 5")
        P(f"s_lshr_b32 s{sHT}, s2, 3")
        P(f"s_add_u32 s{sYT}, s{sYT}, s{sHT}")
        P(f"s_lshl2_add_u32 s{sYT}, s{sYT}, s3")
        P(f"s_mul_i32 s{sHT}, s{sYT}, 205")
        P(f"s_lshr_b32 s{sHT}, s{sHT}, 11")
        P(f"s_mul_i32 s{sHT}, s{sHT}, {32*1280 - 1280}")
        P(f"s_lshl_b32 s{sWDT}, s{sYT}, 7")
        P(f"s_add_u32 s{sHT}, s{sHT}, s{sWDT}")
        P(f"s_add_u32 m0, s{sW4K}, {SPARE}")
        P(f"s_cmp_lt_u32 s{sYT}, 480")
        P(f"s_cselect_b32 s{sWDT}, 0, {hex(OOB)}")
        for p in range(4):
            jt = P(f"buffer_load_dwordx4 v{V_X+p}, s[{S_AUX}:{S_AUX+3}], s{sHT} offen offset:{1024*p} lds")
    if typ:
        P("s_cmp_ge_u32 s3, 2")
        P.ext(srd_sel(S_GU, 28, 30, 640 * 3072))
    P(f"s_cmp_eq_u32 s{sXQ}, 1")
    P.ext(srd_sel(S_WSQ, 18, 20, 2048 * 4096))
    P.ext(srd(S_OUT, 34, 2048 * 1280))
    for s in range(2, CFG["pro"]):
        P.ext(dma_stage(s))
    P.ext(ST_("p_ld"))
    P(f"s_and_b32 s{sT0}, s{sRB}, 7")
    P(f"s_and_b32 s{sT1}, s3, 1")
    P(f"s_lshl1_add_u32 s{sT0}, s{sT0}, s{sT1}")
    P(f"s_mul_i32 s{sT0}, s{sT0}, {40*3072}")
    P(f"s_lshl_b32 s{sT1}, s{sB0}, 7")
    P(f"s_add_u32 s{sPY}, s{sT0}, s{sT1}")
    P(f"v_min_u32 v{V_PF}, 39, v2")
    P(f"v_mul_u32_u24 v{V_PF}, 3072, v{V_PF}")
    if typ:
        pfL = [I(f"buffer_load_dword v{V_PF}, v{V_PF}, s[{S_GU}:{S_GU+3}], s{sPY} offen offset:512 sc1")]
    else:
        pfL = [I(f"buffer_load_dword v{V_PF+1}, v{V_PF}, s[{S_GU}:{S_GU+3}], s{sPY} offen sc1"),
               I(f"buffer_load_dword v{V_PF}, v{V_PF}, s[{S_GU}:{S_GU+3}], s{sPY} offen offset:256 sc1")]
    if CFG["pf_gu"] == -2:
        P.ext(pfL)
    FS = CFG["FS"]

    def flag_addr(dst, idx, base):
        P(f"s_lshl_b32 s{dst}, s{idx}, {FS}")
        P(f"s_add_u32 s{dst}, s{dst}, {hex(base)}")
    w1, w0 = sT2, sT3
    P(f"s_lshr_b32 s{w1}, s3, 1")
    P(f"s_and_b32 s{w0}, s3, 1")
    if typ:
        P(f"s_mul_i32 s{sCSL}, s{sCG}, 1280")
        P(f"s_add_u32 s{sCSL}, s{sCSL}, {hex(CSD)}")
        P(f"s_lshr_b32 s{sT0}, s{sRB}, 1")
        P(f"s_lshl2_add_u32 s{sT0}, s{sT0}, s3")
        P(f"s_and_b32 s{sT1}, s{sRB}, 1")
        P(f"s_lshl3_add_u32 s{sT0}, s{sT0}, s{sT1}")
        P(f"s_lshl3_add_u32 s{sSO}, s{sT0}, s{sCSL}")
        P(f"s_add_u32 s{sSO}, s{sSO}, s{sWDT}")
        P(f"s_lshl_b32 s{sT0}, s{sCG}, 6")
        P(f"s_add_u32 s{sT0}, s{sT0}, s{sB32}")
        P(f"s_mul_i32 s{sEA0}, s{sT0}, 10240")
        P(f"s_add_u32 s{sEA0}, s{sEA0}, {hex(ABT)}")
        P(f"s_add_u32 s{sEA1}, s{sEA0}, 8192")
        flag_addr(sFA, sT0, ABF)
        P(f"s_lshl_b32 s{sSGN}, s{sXQ}, 31")
        P(f"s_add_u32 s{sT1}, s{sB0}, 4")
    else:
        P(f"s_lshl_b32 s{sSO}, s{sU1}, 6")
        P(f"s_add_u32 s{sSO}, s{sSO}, {hex(STAT)}")
        P(f"s_lshl_b32 s{sJ3D}, s{sYT}, 12")
        P(f"s_add_u32 s{sJ3D}, s{sJ3D}, s{sWDT}")
        P(f"s_add_u32 s{sJ3D}, s{sJ3D}, {hex(WD)}")
        flag_addr(sFJ, sYT, WDF)
        P(f"s_add_u32 s{sFJ}, s{sFJ}, s{sWDT}")
        P(f"s_add_u32 s{sT1}, s{sB0}, 2")
    P(f"s_lshl_b32 s{sT0}, s{sT1}, 7")
    P(f"s_add_u32 s{sSWB}, s{sSWB}, s{sT0}")
    P(f"s_lshl_b32 s{sSTL}, s{sB32}, 9")
    P(f"s_add_u32 s{sSTL}, s{sSTL}, {hex(STAT)}")
    P(f"s_lshr_b32 s{sT0}, s{sB32}, 1")
    P(f"s_mul_i32 s{sEB0}, s{sT0}, 24")
    P(f"s_add_u32 s{sEB0}, s{sEB0}, s{sT1}")
    P(f"s_lshl2_add_u32 s{sEB0}, s{sEB0}, s3")
    P(f"s_lshl_b32 s{sEB0}, s{sEB0}, 11")
    P(f"s_add_u32 s{sEB0}, s{sEB0}, {hex(HH)}")
    P(f"s_xor_b32 s{sEB1}, s{sEB0}, 4096")
    P(f"s_lshl_b32 s{sFB}, s{sT0}, 5")
    P(f"s_add_u32 s{sFB}, s{sFB}, s{sT1}")
    P(f"s_lshl1_add_u32 s{sFB}, s{sFB}, s{w0}")
    flag_addr(sFB, sFB, HF)
    if not typ:
        P(f"s_sub_u32 s{sEA0}, s{sEB0}, 16384")
        P(f"s_sub_u32 s{sEA1}, s{sEB1}, 16384")
        P(f"s_sub_u32 s{sFA}, s{sFB}, {4 << FS}")
    P(f"s_lshl_b32 s{sPAB}, s{sCG}, {6 + FS}")
    P(f"s_add_u32 s{sPAB}, s{sPAB}, {hex(ABF + (32*typ << FS))}")
    P(f"s_lshl_b32 s{sPH}, s{sT64}, 6")
    P(f"s_mul_i32 s{sT0}, s3, 12")
    P(f"s_add_u32 s{sPH}, s{sPH}, s{sT0}")
    flag_addr(sPH, sPH, HF)
    P(f"s_mul_i32 s{sT1}, s{sEB8}, 5")
    P(f"s_lshr_b32 s{sPWD}, s{sT1}, 2")
    P(f"s_mul_i32 s{sT0}, s3, 120")
    P(f"s_add_u32 s{sPWD}, s{sPWD}, s{sT0}")
    flag_addr(sPWD, sPWD, WDF)
    P(f"s_lshl_b32 s{sT0}, s{sT0}, 2")
    P(f"s_add_u32 s{sWDB}, s{sT0}, s{sT1}")
    P(f"s_lshl_b32 s{sWDB}, s{sWDB}, 10")
    P(f"s_add_u32 s{sWDB}, s{sWDB}, {hex(WD)}")
    P(f"s_lshl2_add_u32 s{sHB}, s{sT64}, s3")
    P(f"s_mul_i32 s{sHB}, s{sHB}, {12*4096}")
    P(f"s_add_u32 s{sHB}, s{sHB}, {hex(HH)}")
    P(f"s_lshl2_add_u32 s{sT0}, s{sRB}, s{sCB4}")
    P(f"s_lshl2_add_u32 s{sT1}, s{sT0}, s3")
    P(f"s_lshl2_add_u32 s{sT1}, s{sT1}, s{sKS4}")
    P(f"s_mul_i32 s{sYPUB}, s{sT1}, 10240")
    P(f"s_add_u32 s{sYPUB}, s{sYPUB}, {hex(YP)}")
    P(f"s_lshl2_add_u32 s{sT0}, s{sT0}, s{sKS4}")
    P(f"s_mul_i32 s{sYGA}, s{sT0}, 40960")
    P(f"s_lshl_b32 s{sT1}, s3, 11")
    P(f"s_add_u32 s{sYGA}, s{sYGA}, s{sT1}")
    P(f"s_add_u32 s{sYGA}, s{sYGA}, {hex(YP)}")
    P(f"s_lshl_b32 s{sT0}, s{w1}, 10")
    P(f"s_sub_u32 s{sT0}, s{sT0}, s{sT1}")
    P(f"s_add_u32 s{sT0}, s{sT0}, 8192")
    P(f"v_add_u32 v{V_G}, s{sT0}, v1")
    P(f"s_lshl1_add_u32 s{sXO}, s{sT64}, s{w1}")
    P(f"s_lshl3_add_u32 s{sXO}, s{sXO}, s{w0}")
    P(f"s_mul_i32 s{sXO}, s{sXO}, {4*1280}")
    P(f"s_mul_i32 s{sT0}, s{sEB8}, 160")
    P(f"s_add_u32 s{sXO}, s{sXO}, s{sT0}")
    P("s_cmp_eq_u32 s3, 0")
    P(f"s_cselect_b32 s{sLEAD}, 0, {hex(OOB)}")
    P(f"s_lshl2_add_u32 s{sRF}, s2, s{sLEAD}")
    P(f"s_add_u32 s{sRF}, s{sRF}, {hex(RF)}")
    P("s_cmp_eq_u32 s2, 0")
    P(f"s_cselect_b32 s{sLEAD}, s{sLEAD}, {hex(OOB)}")
    if CFG["rot"]:
        P(f"s_lshl1_add_u32 s{sSWS}, s{sCB4}, s{sRB}")
        P(f"s_lshl_b32 s{sSWS}, s{sSWS}, 8")
        P(f"s_and_b32 s{sSWS}, s{sSWS}, 0x7ff")
    else:
        P(f"s_mov_b32 s{sSWS}, 0")
    P(f"s_lshl_b32 s{sT0}, s{sB32}, 17")
    P(f"s_add_u32 s{sT0}, s{sT0}, {2048*typ}")
    P(f"v_add_u32 v{V_WS}, s{sT0}, v{V_WS}")
    P(f"v_add_u32 v{V_WS+1}, {8*4096-1024}, v{V_WS}")
    P(f"v_xor_b32 v{V_WS+3}, 64, v{V_WS}")
    P(f"v_add_u32 v{V_WS+2}, {2*(8*4096-1024)}, v{V_WS+3}")
    P(f"v_add_u32 v{V_WS+3}, {3*(8*4096-1024)}, v{V_WS+3}")
    P(f"s_mul_i32 s{sT0}, s{sCG}, {64*10240}")
    P(f"s_add_u32 s{sT0}, s{sT0}, s{sW5K}")
    P(f"s_add_u32 s{sT0}, s{sT0}, {hex(ABT + 32*10240*typ)}")
    P(f"v_add_u32 v{V_AB}, s{sT0}, v1")
    P(f"v_add_u32 v{V_AB+1}, s{sT0}, v3")
    P(f"s_mul_i32 s{sT0}, s{w0}, 5120")
    P(f"s_add_u32 s{sT0}, s{sT0}, 16384")
    P(f"v_add_u32 v{R_AB}, s{sT0}, v1")
    P(f"v_add_u32 v{R_AB+1}, {2*SLOT}, v{R_AB}")
    P(f"v_bfe_u32 v{T0}, v2, 3, 1")
    P(f"v_lshlrev_b32 v{T0}, 2, v{T0}")
    P(f"v_and_b32 v{TMP+4}, 2, v2")
    P(f"v_or_b32 v{T0}, v{T0}, v{TMP+4}")
    P(f"v_xor_b32 v{T0}, v{T0}, v{T1}")
    P(f"v_lshlrev_b32 v{T0}, 4, v{T0}")
    P(f"v_lshl_add_u32 v{V_ST}, v{T2}, 3, v{T3}")
    P(f"v_lshl_add_u32 v{R_WS}, v{V_ST}, 7, v{T0}")
    P(f"v_add_u32 v{R_X}, s{sW4K}, v{R_WS}")
    P(f"v_xor_b32 v{R_X}, s{sU0}, v{R_X}")
    P(f"v_xor_b32 v{R_X+1}, 64, v{R_X}")
    P(f"v_add_u32 v{R_X+2}, {2*SLOT}, v{R_X}")
    P(f"v_add_u32 v{R_X+3}, {2*SLOT}, v{R_X+1}")
    P(f"s_lshl_b32 s{sT0}, s{w1}, 13")
    P(f"v_add_u32 v{R_WS}, s{sT0}, v{R_WS}")
    P(f"v_xor_b32 v{R_WS+1}, 64, v{R_WS}")
    P(f"v_add_u32 v{R_WS+2}, {2*SLOT}, v{R_WS}")
    P(f"v_add_u32 v{R_WS+3}, {2*SLOT}, v{R_WS+1}")
    if typ:
        P(f"v_and_b32 v{R_WD}, 15, v2")
        P(f"v_lshl_add_u32 v{R_WD}, v{R_WD}, 7, v{T0}")
        P(f"v_add_u32 v{R_WD}, 16384, v{R_WD}")
        P(f"v_xor_b32 v{R_WD}, s{sU0}, v{R_WD}")
        P(f"v_xor_b32 v{R_WD+1}, 64, v{R_WD}")
        P(f"v_add_u32 v{R_WD+2}, {2*SLOT}, v{R_WD}")
        P(f"v_add_u32 v{R_WD+3}, {2*SLOT}, v{R_WD+1}")
    P(f"v_lshl_add_u32 v{R_GU}, v{T1}, 3, v{T2}")
    P(f"v_lshlrev_b32 v{R_GU}, 7, v{R_GU}")
    P(f"v_lshl_add_u32 v{R_GU}, v{T3}, 3, v{R_GU}")
    P(f"v_bfe_u32 v{R_GU+1}, v2, 3, 2")
    P(f"v_lshl_add_u32 v{R_GU}, v{R_GU+1}, 5, v{R_GU}")
    P(f"s_lshl_b32 s{sT0}, s{w1}, 6")
    P(f"s_lshl_b32 s{sT1}, s{w0}, 12")
    P(f"s_or_b32 s{sT0}, s{sT0}, s{sT1}")
    P(f"v_xor_b32 v{R_GU}, s{sT0}, v{R_GU}")
    for i in range(1, 8):
        P(f"v_xor_b32 v{R_GU+i}, {32*(i & 3) + 4096*(i >> 2)}, v{R_GU}")
    for i in range(8):
        P(f"v_add_u32 v{R_GU+8+i}, {2*SLOT}, v{R_GU+i}")
    if not typ:
        P(f"v_lshl_add_u32 v{VJ3R}, v{T1}, 2, v{T2}")
        P(f"v_lshlrev_b32 v{VJ3R}, 7, v{VJ3R}")
        P(f"v_lshl_add_u32 v{VJ3R}, v{T3}, 3, v{VJ3R}")
        P(f"v_bfe_u32 v{VJ3}, v2, 3, 1")
        P(f"v_lshl_add_u32 v{VJ3R}, v{VJ3}, 5, v{VJ3R}")
        P(f"v_add_u32 v{VJ3R}, s{sW4K}, v{VJ3R}")
        P(f"v_add_u32 v{VJ3R}, {SPARE}, v{VJ3R}")
        P(f"v_xor_b32 v{VJ3}, 32, v{VJ3R}")
    else:
        P(f"s_add_u32 s{sT0}, s{sW4K}, {SPARE + 1024}")
        P(f"v_lshl_add_u32 v{VK}, v{V_ST}, 2, s{sT0}")
        P(f"v_lshl_add_u32 v{VK+1}, v{T1}, 5, s{sT0}")
        P(f"v_and_b32 v{VK+2}, 15, v2")
        P(f"v_mul_u32_u24 v{SA+3}, 80, v{VK+2}")
        P(f"v_add_u32 v{SA+3}, s{sT0}, v{SA+3}")
        P(f"v_lshl_add_u32 v{SA+2}, v{T1}, 3, v{SA+3}")
        P(f"v_lshlrev_b32 v{VK+2}, 4, v{VK+2}")
    P(f"s_lshl_b32 s{sT0}, s{w1}, 8")
    P(f"s_add_u32 s{sT0}, s{sT0}, {SPARE}")
    P(f"v_and_b32 v{V_CR}, 15, v2")
    P(f"v_lshl_add_u32 v{V_CR}, v{V_CR}, 4, s{sT0}")
    P(f"v_xor_b32 v{V_CR+1}, 256, v{V_CR}")
    P(f"v_lshl_add_u32 v{V_CA}, s{w0}, 2, v{V_CR}")
    P(f"v_bfe_u32 v{TMP+4}, v2, 5, 1")
    P(f"v_lshl_add_u32 v{V_CA}, v{TMP+4}, 9, v{V_CA}")
    P(f"v_bfe_u32 v{TMP+4}, v2, 4, 1")
    P(f"v_lshl_add_u32 v{V_CA}, v{TMP+4}, 3, v{V_CA}")
    for i in range(4):
        P(f"v_mov_b32 v{ONES+i}, 0x3f803f80")
        P(f"v_mov_b32 v{INI+i}, -1")
    for j in range(4):
        P(f"v_cmp_eq_u32 vcc, {j}, v{T2}")
        P(f"v_cndmask_b32 v{TMP+4}, 0, v{ONES}, vcc")
        for i in range(4):
            P(f"v_accvgpr_write_b32 a{ACS + 4*j + i}, v{TMP+4}")
    P(f"v_mul_u32_u24 v{V_XO}, 1280, v{V_ST}")
    P(f"v_lshl_add_u32 v{V_XO}, v{T1}, 3, v{V_XO}")
    P(f"v_lshlrev_b32 v{V_ST}, 4, v{V_ST}")
    for t in range(4):
        P(f"s_add_u32 s{sT0}, s3, {t+1}")
        P(f"s_and_b32 s{sT0}, s{sT0}, 3")
        P(f"v_lshl_add_u32 v{V_H+t}, s{sT0}, 10, v1")
        P(f"v_lshl_add_u32 v{V_DW+t}, s{sT0}, 14, v1")
    P(f"v_and_b32 v{V_FAB}, 31, v2")
    P(f"v_lshlrev_b32 v{V_FAB}, {FS}, v{V_FAB}")
    P(f"v_lshlrev_b32 v{V_FH}, {FS}, v{T3}")
    P(f"v_and_b32 v{V_FH2}, 7, v2")
    P(f"v_add_lshl_u32 v{V_FH2}, v{V_FH2}, 4, {FS}")
    P(f"v_lshrrev_b32 v{V_FWD}, 1, v2")
    P(f"v_min_u32 v{V_FWD}, 11, v{V_FWD}")
    P(f"v_mul_u32_u24 v{V_FWD}, 10, v{V_FWD}")
    P(f"v_and_b32 v{TMP+4}, 1, v2")
    P(f"v_add_lshl_u32 v{V_FWD}, v{TMP+4}, v{V_FWD}, {FS}")
    P(f"v_mov_b32 v{TMP+4}, {hex(OOB)}")
    P("v_cmp_eq_u32 vcc, 0, v2")
    P(f"v_cndmask_b32 v{V_L0}, v{TMP+4}, v2, vcc")
    P(f"v_mul_u32_u24 v{TMP+5}, 20, v{T1}")
    P(f"v_cmp_eq_u32 vcc, v{TMP+5}, v2")
    P(f"v_lshlrev_b32 v{SA+1}, 4, v{T1}")
    P(f"v_cndmask_b32 v{SA+1}, v{TMP+4}, v{SA+1}, vcc")
    P.ext(ST_("p_set"))
    for s in range(CFG["pro"], CFG["pro2"]):
        P.ext(dma_stage(s))
    if CFG["pf_gu"] == -1:
        P.ext(pfL)
    P.ext(ST_("p_ld2"))
    P(f"v_readfirstlane_b32 s{sNON}, v{V_NON}", need=[w0tok])
    P(f"s_mul_i32 s{sNON}, s{sNON}, 1664525")
    P(f"s_add_u32 s{sNON}, s{sNON}, 1013904223")
    P(f"v_mov_b32 v{V_NON}, s{sNON}")

    S = Sched()
    CS = 20 if typ else 160
    ksteps = []
    xtok = {}

    def xreg(ks, T):
        return ar(4 * (2 * ks + T), 4)

    def gu_part(rd, m, sl, half, kap, buf, ks, acc):
        for f in (0, 1, 4, 5, 2, 3, 6, 7):
            mat, t = divmod(f, 4)
            tk = []
            for hh in range(2):
                off = (sl & 1) * SLOT + 16384 * half + 8192 * mat + 512 * hh
                i = I(f"ds_read_b64_tr_b16 {ar(buf + 4*f + 2*hh, 2)}, v{R_GU + 8*(sl >> 1) + 4*kap + t} offset:{off}")
                rd.append(i); tk.append(i.tok)
            for T in range(2):
                d = vr(acc + 4 * (2 * f + T), 4)
                m.append(I(f"{MF} {d}, {ar(buf + 4*f, 4)}, {xreg(ks, T)}, {'0' if ks == 0 else d}", need=tk + [xtok[ks, T]]))
            if kap == 0 and t < 2:
                d = vr(CS, 4)
                m.append(I(f"{MF} {d}, {ar(ACS + 4*(2*mat + t), 4)}, {ar(buf + 4*f, 4)}, {'0' if ks == 0 and f == 0 else d}", need=tk))

    def mk_passA(ks):
        s, kap = divmod(ks, 2)
        sl = s % 4
        buf = FB + 40 * (len(ksteps) % 2)
        rd, m = [], []
        for T in range(2):
            i = I(f"ds_read_b128 {xreg(ks, T)}, v{R_X + 2*(sl >> 1) + kap} offset:{(sl & 1)*SLOT + 512*T}")
            rd.append(i); xtok[ks, T] = i.tok
        if typ:
            for t in range(10):
                i = I(f"ds_read_b128 {ar(buf + 4*t, 4)}, v{R_WD + 2*(sl >> 1) + kap} offset:{(sl & 1)*SLOT + 2048*t}")
                rd.append(i)
                for T in range(2):
                    d = vr(ACCA + 4 * (2 * t + T), 4)
                    m.append(I(f"{MF} {d}, {xreg(ks, T)}, {ar(buf + 4*t, 4)}, {'0' if ks == 0 else d}", need=[i.tok, xtok[ks, T]]))
        else:
            gu_part(rd, m, sl, 1, kap, buf, ks, ACCA)
        ksteps.append(dict(rd=rd, m=m, stage=s, first=kap == 0))

    def mk_passB(ks):
        s = 10 + ks // 4
        q = ks % 4
        buf = FB + 40 * (len(ksteps) % 2)
        rd, m = [], []
        gu_part(rd, m, s % 4, q >> 1, q & 1, buf, ks, ACCB)
        ksteps.append(dict(rd=rd, m=m, stage=s, first=q == 0))

    def mk_y(k):
        s, kap = 15 + k // 2, k % 2
        sl = s % 4
        buf = FB + 40 * (len(ksteps) % 2)
        m, wt, ab = [], [], []
        for tt in range(4):
            wt.append(I(f"ds_read_b128 {ar(buf + 4*tt, 4)}, v{R_WS + 2*(sl >> 1) + kap} offset:{(sl & 1)*SLOT + 4096*(tt >> 1) + 512*(tt & 1)}"))
        for e in range(5):
            ab.append(I(f"ds_read_b128 {ar(buf + 16 + 4*e, 4)}, v{R_AB + (sl >> 1)} offset:{(sl & 1)*SLOT + 1024*(10*kap + e)}"))
        rd = [ab[0]] + wt + ab[1:]
        for e in range(5):
            for tt in range(4):
                d = vr(ACCA + 4 * (5 * tt + e), 4)
                m.append(I(f"{MF} {d}, {ar(buf + 16 + 4*e, 4)}, {ar(buf + 4*tt, 4)}, {'0' if k == 0 else d}", need=[ab[e].tok, wt[tt].tok]))
        ksteps.append(dict(rd=rd, m=m, stage=s, first=kap == 0))

    for ks in range(20): mk_passA(ks)
    for ks in range(20): mk_passB(ks)
    for k in range(32): mk_y(k)

    dmaL = {s: dma_stage(s) for s in range(CFG["pro2"], 15)}
    wsL = {s: dma_ws(s) for s in range(15, 31)}
    abL = {s: dma_ab(s) for s in range(15, 31)}

    cspub, csrd = {}, {}
    for ps in (0, 1):
        if ps == 0 and typ:
            continue
        cspub[ps] = [I(f"v_cvt_pk_bf16_f32 v{CS+1}, v{CS}, v{CS}"), I(f"v_and_b32 v{CS+1}, 0xffff0000, v{CS+1}"),
                     I(f"v_sub_f32 v{CS+1}, v{CS}, v{CS+1}"), I(f"v_cvt_pk_bf16_f32 v{CS+1}, v{CS}, v{CS+1}"),
                     I(f"ds_write_b32 v{V_CA}, v{CS+1} offset:{4096*ps}")]
        csrd[ps] = {(p, mat): I(f"ds_read_b128 {vr(CSB + 8*p + 4*mat, 4)}, v{V_CR+p} offset:{4096*ps + 512*mat}")
                    for p in range(2) for mat in range(2)}
    ini = [I(f"s_add_u32 s{sYT}, s{sYPUB}, 8192")]
    for u in range(10):
        v, so, off = (1, sYPUB, 1024 * u) if u < 4 else ((3, sYPUB, 1024 * (u - 4)) if u < 8 else (1, sYT, 1024 * (u - 8)))
        ini.append(I(f"buffer_store_dwordx4 {vr(INI, 4)}, v{v}, s[8:11], s{so} offen offset:{off} sc1"))
    tag(ini, "ini")

    bar = {}
    kpos = []
    gC = {}
    pre = ST_("p_non") + [I("s_barrier", need=[dma_tok[0]])] + ST_("p_bar") + ksteps[0]["rd"]
    for K_, ks in enumerate(ksteps):
        g0 = S.n()
        kpos.append(g0)
        for m in ks["m"]:
            S.mfma(m)
        if K_ in (19, 39) and (K_ // 20) in cspub:
            acc = ACCB if K_ == 39 else ACCA
            gC[K_ // 20] = S.n()
            for p in range(2):
                for T in range(2):
                    for t2 in range(2):
                        for mat in range(2):
                            d = vr(acc + 4 * (2 * (4 * mat + 2 * p + t2) + T), 4)
                            S.mfma(I(f"{MF16} {d}, {vr(CSB + 8*p + 4*mat + 2*t2, 2)}, {vr(NMB + 2*T, 2)}, {d}",
                                     need=[csrd[K_ // 20][p, mat].tok]))
        if K_ == 1:
            for i in range(5):
                S.mfma(I(f"{MF} {vr(SD1, 4)}, {vr(ONES, 4)}, {vr(SF + 4*i, 4)}, {'0' if i == 0 else vr(SD1, 4)}", need=[stok[i]]))
                if not typ:
                    S.mfma(I(f"{MF} {vr(SD2, 4)}, {vr(SF + 4*i, 4)}, {vr(SF + 4*i, 4)}, {'0' if i == 0 else vr(SD2, 4)}", need=[stok[i]]))
        gend = S.n()
        nx = ksteps[K_ + 1] if K_ + 1 < len(ksteps) else None
        if nx is not None and nx["first"]:
            need = [dma_tok[nx["stage"]], ks["rd"][-1].tok]
            if K_ in (19, 39) and (K_ // 20) in cspub:
                need.append(cspub[K_ // 20][-1].tok)
            if K_ == CFG["rf_bar"] and CFG["ini"]:
                need.append(ini[-1].tok)
            S.put(g0, [I("s_barrier", need=need)])
            bar[nx["stage"]] = g0
        else:
            S.put(g0, [wait_for(ks["rd"][-1].tok)])
            S.used[g0] += 4
        if nx is not None:
            rds = nx["rd"]
            if K_ in (19, 39) and (K_ // 20) in cspub:
                rds = list(csrd[K_ // 20].values()) + rds
            if CFG["rdsp"] and len(rds) > gend - 4 - g0 - 1:
                S.place(rds, g0 + 1, gend - 3, cap=8, spread=True)
            else:
                S.place(rds, g0 + 1, gend - (2 if nx["first"] else 4), cap=4)
        if K_ in (18, 38) and (K_ // 20) in cspub:
            S.place(cspub[K_ // 20], g0 + 14, gend - 2)
    kpos.append(S.n())

    ACCD = FB
    wdreg, hreg, wdtok, htok = {}, {}, {}, {}
    for kk in range(8):
        for e in range(5): wdreg[kk, e] = ar(20 * kk + 4 * e, 4)
    for kk in range(4):
        for t in range(4): hreg[kk, t] = vr(ACCB + 16 * kk + 4 * t, 4)
    for t in range(4):
        hreg[4, t] = vr(240 + 4 * t, 4)
        hreg[5, t] = ar(240 + 4 * t, 4)
        hreg[6, t] = hreg[0, t]
        hreg[7, t] = hreg[1, t]
    for e in range(5):
        wdreg[8, e] = ar(220 + 4 * e, 4)
        for j in range(3): wdreg[9 + j, e] = wdreg[j, e]
    for j in range(4):
        hreg[8 + j, 0] = hreg[2, j]
        hreg[8 + j, 1] = hreg[3, j]
        hreg[8 + j, 2] = wdreg[3, j]
        hreg[8 + j, 3] = wdreg[4, j]

    def wd_load(kk):
        L = [I(f"s_add_u32 s{sWDT}, s{sWDB}, {40960*kk}")]
        for e in range(5):
            v, o = (1, 1024 * e) if e < 4 else (3, 0)
            L.append(I(f"buffer_load_dwordx4 {wdreg[kk, e]}, v{v}, s[8:11], s{sWDT} offen offset:{o} sc1"))
            wdtok[kk, e] = L[-1].tok
        return tag(L, f"wd{kk}")

    def h_load(kk):
        L = [I(f"s_add_u32 s{sHT}, s{sHB}, {4096*kk}")]
        for t in range(4):
            L.append(I(f"buffer_load_dwordx4 {hreg[kk, t]}, v{V_H+t}, s[8:11], s{sHT} offen sc1"))
            htok[kk, t] = L[-1].tok
        return tag(L, f"h{kk}")

    def h_load_t(t):
        L = []
        for j in range(4):
            L.append(I(f"buffer_load_dwordx4 {hreg[8+j, t]}, v{V_H+t}, s[8:11], s{sH8+j} offen sc1"))
            htok[8 + j, t] = L[-1].tok
        return L

    def wd_stage(kk):
        j = kk - 8
        L = [I(f"s_add_u32 s{sWDT}, s{sWDB}, {40960*kk}"), I(f"s_add_u32 m0, s{sW4K}, {STG[j]}")]
        for e in range(4):
            L.append(I(f"buffer_load_dwordx4 v1, s[8:11], s{sWDT} offen offset:{1024*e} sc1 lds"))
        L.append(I(f"s_add_u32 m0, s{sW4K}, {STG4 + 1024*j}"))
        L.append(I(f"buffer_load_dwordx4 v3, s[8:11], s{sWDT} offen sc1 lds"))
        R = []
        for e in range(5):
            a = STG[j] + 1024 * e if e < 4 else STG4 + 1024 * j
            v, o = (V_S0 + 1, a - 3 * SLOT) if a >= 3 * SLOT else (V_S0, a)
            R.append(I(f"ds_read_b128 {wdreg[kk, e]}, v{v} offset:{o}", need=[L[-1].tok]))
            wdtok[kk, e] = R[-1].tok
        return tag(L, f"wd{kk}"), R
    wdL = {kk: wd_load(kk) for kk in range(8)}
    wdS = {kk: wd_stage(kk) for kk in range(8, 12)}
    hL = {kk: h_load(kk) for kk in range(8)}
    htL = {t: h_load_t(t) for t in range(4)}

    def dacc(t, e):
        return ar(ACCD + 4 * (5 * t + e), 4) if t < 3 else vr(OWN + 4 * e, 4)

    def d_mfma(kk, t, e):
        d = dacc(t, e)
        S.mfma(I(f"{MF} {d}, {wdreg[kk, e]}, {hreg[kk, t]}, {'0' if kk == 0 else d}", need=[wdtok[kk, e], htok[kk, t]]))
    gD = S.n()
    for kk in range(8):
        for e in range(5):
            for t in range(4): d_mfma(kk, t, e)
    GA, Y, RED = ACCA, ACCA + 48, ACCB
    gtxt = []
    for s in range(4):
        gtxt.append(f"s_add_u32 s{sYT}, s{sYGA}, {10240*s}")
        for u in range(3):
            v = 1 if u < 2 else V_G
            gtxt.append(f"buffer_load_dwordx4 {vr(GA + 12*s + 4*u, 4)}, v{v}, s[8:11], s{sYT} offen offset:{1024*u if u < 2 else 0} sc1")

    def gat_check(need):
        L = [I(f"v_max3_u32 v{V_POLL}, v{GA}, v{GA+4}, v{GA+8}", need=need[:3])]
        for i in range(3, 11, 2):
            L.append(I(f"v_max3_u32 v{V_POLL}, v{V_POLL}, v{GA+4*i}, v{GA+4*i+4}", need=need[i:i+2]))
        L.append(I(f"v_max_u32 v{V_POLL}, v{V_POLL}, v{GA+44}", need=need[11:]))
        L.append(I(f"v_cmp_eq_u32 vcc, -1, v{V_POLL}"))
        return L
    gat, gck = poll(gtxt, gat_check)
    tag(gat, "gat")
    gT = {}
    for t in range(3):
        gT[t] = S.n()
        for kk in range(8, 12):
            for e in range(5): d_mfma(kk, t, e)
    gT[3] = S.n()
    for e in range(5):
        for kk in range(8, 12): d_mfma(kk, 3, e)
    gT["ysum"] = S.n()
    for e in range(5):
        for s in range(4):
            sel = vr(SEL + 6, 4) if e == 4 else (vr(SEL + 2, 4) if e % 2 == 0 else vr(SEL, 4))
            d = vr(Y + 4 * e, 4)
            S.mfma(I(f"{MF} {d}, {sel}, {vr(GA + 12*s + 4*(e // 2), 4)}, {'0' if s == 0 else d}"))
    gEnd = S.n()
    k2 = kpos

    def kof(g):
        k = max(i for i in range(len(k2)) if k2[i] <= g)
        return round(k + (g - k2[k]) / 20, 2)

    def win(s):
        a = bar[s] + 1
        b = bar[s + 1] if s + 1 in bar else gD
        return a, b
    early = []
    for s in range(CFG["pro2"], 4):
        early += dmaL[s]
    S.place(early, 0, bar[1] + 1 if len(early) <= 14 else k2[2])
    for s in range(4, 15):
        a, b = win(s - 3)
        if s == 4 and len(early) > 14:
            a = k2[2]
        S.place(dmaL[s], a, b, spread=True)
    if CFG["pf_gu"] is not None and CFG["pf_gu"] >= 0:
        S.place(pfL, k2[CFG["pf_gu"]], k2[CFG["pf_gu"] + 1])
    sf = K()
    a0, a1, a2, a3 = SF, SF + 1, SF + 2, SF + 3
    dp = "row_mask:0xf bank_mask:0xf"
    if typ:
        sf(f"v_add_f32_dpp v{a0}, v{SD1}, v{SD1} quad_perm:[1,0,3,2] {dp}")
        sf(f"v_mov_b32 v{a1}, v{V_NON}")
        sf(f"v_add_f32_dpp v{a0}, v{a0}, v{a0} quad_perm:[2,3,0,1] {dp}")
        sf(f"buffer_store_dwordx2 {vr(a0, 2)}, v{SA+1}, s[8:11], s{sSO} offen sc1")
    else:
        sf(f"v_add_f32_dpp v{a0}, v{SD1}, v{SD1} quad_perm:[1,0,3,2] {dp}")
        sf(f"v_mov_b32_dpp v{a1}, v{SD2} quad_perm:[0,0,0,0] {dp}")
        sf(f"v_add_f32_dpp v{a1}, v{SD2+1}, v{a1} quad_perm:[1,1,1,1] {dp}")
        sf(f"v_add_f32_dpp v{a0}, v{a0}, v{a0} quad_perm:[2,3,0,1] {dp}")
        sf(f"v_add_f32_dpp v{a1}, v{SD2+2}, v{a1} quad_perm:[2,2,2,2] {dp}")
        sf(f"v_mul_f32 v{a0}, {f2h(-1.0/640)}, v{a0}")
        sf(f"v_add_f32_dpp v{a1}, v{SD2+3}, v{a1} quad_perm:[3,3,3,3] {dp}")
        sf(f"v_mul_f32 v{a1}, {f2h(1.0/640)}, v{a1}")
        sf(f"v_fma_f32 v{a1}, -v{a0}, v{a0}, v{a1}")
        sf(f"v_max_f32 v{a1}, 0, v{a1}")
        sf(f"v_cvt_pk_bf16_f32 v{a0}, v{a0}, v{a1}")
        sf(f"v_and_b32 v{a1}, 0xffff0000, v{a0}")
        sf(f"v_lshlrev_b32 v{a0}, 16, v{a0}")
        sf(f"v_add_f32 v{a1}, {f2h(1e-5)}, v{a1}")
        sf(f"v_cvt_pk_bf16_f32 v{a1}, v{a1}, v{a1}")
        sf(f"v_lshlrev_b32 v{a1}, 16, v{a1}")
        sf(f"v_sqrt_f32 v{a1}, v{a1}")
        sf(f"v_mov_b32 v{a3}, v{V_NON}")
        sf(f"v_cvt_pk_bf16_f32 v{a1}, v{a1}, v{a1}")
        sf(f"v_lshlrev_b32 v{a1}, 16, v{a1}")
        sf(f"v_mul_f32 v{a2}, v{a1}, v{a1}")
        sf(f"v_rcp_f32 v{a1}, v{a1}")
        sf("s_nop 0")
        sf(f"buffer_store_dwordx4 {vr(a0, 4)}, v{SA+1}, s[8:11], s{sSO} offen sc1")
    S.place(sf.L, k2[2] + 3, k2[4])
    if not typ:
        JF = 144
        jr, js = [], []
        for tI in range(4):
            for hh in range(2):
                off = 2048 * hh + (64 * ((tI >> 1) ^ hh))
                jr.append(I(f"ds_read_b64_tr_b16 {ar(JF + 4*tI + 2*hh, 2)}, v{VJ3 if tI & 1 else VJ3R} offset:{off}", need=[jt]))
        for tI in range(4):
            js.append(I(f"buffer_store_dwordx4 {ar(JF + 4*tI, 4)}, v1, s[8:11], s{sJ3D} offen offset:{1024*tI} sc1",
                        need=[jr[2*tI].tok, jr[2*tI+1].tok]))
        j = CFG["j3_rd"]
        S.place(jr, k2[j], k2[j + 1])
        S.place(js, k2[j + 1] + 1, k2[j + 3])
        S.place([flag_store(sFJ, [js[-1].tok])], k2[CFG["j3_flag"]] + 1, k2[CFG["j3_flag"] + 1])
    if CFG["ini"]:
        S.place(ini, k2[CFG["ini"][0]], k2[CFG["ini"][1]], spread=True)
    S.place([flag_store(sRF, [])], k2[CFG["rf_bar"]] + 1, k2[CFG["rf_bar"] + 1])
    lds = [f"buffer_load_dwordx4 {vr(ST + 4*T, 4)}, v{V_ST}, s[8:11], s{sSTL} offen offset:{64*T} sc1" for T in range(2)]
    tags = [ST + 3, ST + 7]
    if typ:
        lds += [f"buffer_load_dwordx4 {vr(CSR, 4)}, v1, s[8:11], s{sCSL} offen sc1",
                f"buffer_load_dwordx4 {vr(CSR + 4, 4)}, v{VK+2}, s[8:11], s{sCSL} offen offset:1024 sc1"]
        tags += [CSR + 1, CSR + 3, CSR + 5, CSR + 7]
    sl_, sc_ = poll(lds, tag_check(tags))
    kc = K()
    RS = CSB
    if typ:
        wt_ = []
        for h in range(2):
            kc(f"ds_write2_b32 v{SA+2}, v{CSR+4*h}, v{CSR+4*h+2} offset0:{64 + 8*h} offset1:{65 + 8*h}")
        for T in range(2):
            kc(f"v_xor_b32 v{ST+4*T+3}, s{sSGN}, v{ST+4*T+1}")
            wt_.append(kc(f"ds_write2_b32 v{VK}, v{ST+4*T}, v{ST+4*T+3} offset0:{4*T} offset1:{32 + 4*T}"))
        cst = [kc(f"ds_read_b128 {vr(CSV + 4*h, 4)}, v{SA+3} offset:{256 + 16*h}") for h in range(2)]
        cst.append(kc(f"ds_read_b64 {vr(CSV + 8, 2)}, v{SA+3} offset:{256 + 32}"))
        nmt = [kc(f"ds_read_b128 {vr(NM + 4*h, 4)}, v{VK+1} offset:{16*h}") for h in range(2)]
        rst = [kc(f"ds_read_b128 {vr(RS + 4*h, 4)}, v{VK+1} offset:{128 + 16*h}") for h in range(2)]
    for T in range(2):
        r = ST + 4 * T
        kc(f"v_mul_f32 v{NMB+2*T}, 0.25, v{r}".replace("0.25", f2h(0.25)))
        kc(f"v_mul_f32 v{r+3}, v{r+1}, v{r+1}", need=wt_ if typ else [])
        kc(f"v_cvt_pk_bf16_f32 v{NMB+2*T}, v{NMB+2*T}, v{NMB+2*T}")
        kc(f"v_mul_f32 v{r+1}, {f2h(C1)}, v{r+1}")
        kc(f"v_mul_f32 v{r+3}, {f2h(0.044715)}, v{r+3}")
        kc(f"v_mov_b32 v{NMB+2*T+1}, v{NMB+2*T}")
        kc(f"v_mul_f32 v{r+3}, v{r+3}, v{r+1}")
    S.place(sl_, k2[CFG["st_ld"][typ]], k2[CFG["st_ld"][typ] + 1])
    S.place(sc_ + kc.L, k2[CFG["st_ck"][typ]], k2[CFG["st_ck"][typ] + 1] + (0 if typ else 12))
    if typ:
        k0 = CFG["st_ck"][1] + 1
        nk = 19 - k0
        tiles = list(range(20))
        for kq in range(nk):
            mine = tiles[kq::nk]
            for idx in mine:
                t, T = divmod(idx, 2)
                L = [I(f"v_fmac_f32 v{ACCA + 4*idx + i}, v{NM + 4*T + i}, v{CSV + t}", need=[nmt[T], cst[t // 4]]) for i in range(4)]
                g = k2[k0 + kq]
                if idx < 10:
                    S.place(L, g + idx + 5, g + min(idx + 14, 20))
                else:
                    S.place(L, g + max(idx - 13, 1), g + idx - 2)

    def epi_gu(acc, so):
        L = []
        last = None
        for p in range(2):
            for T in range(2):
                o = acc + 4 * (2 * (2 * p) + T)
                c = ST + 4 * T
                for t2 in range(2):
                    g = acc + 4 * (2 * (2 * p + t2) + T)
                    u = g + 32
                    R = range(4)
                    for i in R:
                        L.append(I(f"v_mul_f32 v{TMP+i}, v{g+i}, v{g+i}"))
                        L.append(I(f"v_mul_f32 v{u+i}, v{g+i}, v{u+i}"))
                        L.append(I(f"v_fma_f32 v{TMP+i}, v{TMP+i}, v{c+3}, v{c+1}"))
                        L.append(I(f"v_mul_f32 v{g+i}, v{TMP+i}, v{g+i}"))
                    for i in R: L.append(I(f"v_exp_f32 v{g+i}, v{g+i}"))
                    for i in R: L.append(I(f"v_fma_f32 v{g+i}, v{g+i}, v{c+2}, v{c+2}"))
                    for i in R: L.append(I(f"v_rcp_f32 v{g+i}, v{g+i}"))
                    for i in R: L.append(I(f"v_mul_f32 v{u+i}, v{u+i}, v{g+i}"))
                    L.append(I(f"v_cvt_pk_bf16_f32 v{o+2*t2}, v{u}, v{u+1}"))
                    L.append(I(f"v_cvt_pk_bf16_f32 v{o+2*t2+1}, v{u+2}, v{u+3}"))
                L.append(I(f"buffer_store_dwordx4 {vr(o, 4)}, v1, s[8:11], s{so+p} offen offset:{1024*T} sc1"))
                last = L[-1].tok
        return L, last

    def epi_ab():
        L = []
        for t in range(10):
            o = ACCA + 8 * t
            for j in range(8):
                L.append(I(f"v_mul_f32 v{o+j}, v{o+j}, v{RS+j}", need=[rst[j // 4]]))
            for j in range(4):
                L.append(I(f"v_cvt_pk_bf16_f32 v{o+j}, v{o+2*j}, v{o+2*j+1}"))
            v, so, off = (1, sEA0, 1024 * t) if t < 4 else ((3, sEA0, 1024 * (t - 4)) if t < 8 else (1, sEA1, 1024 * (t - 8)))
            L.append(I(f"buffer_store_dwordx4 {vr(o, 4)}, v{v}, s[8:11], s{so} offen offset:{off} sc1"))
        return L, L[-1].tok

    C = CFG
    info = {}

    def epi_assert(g):
        for q in range(8):
            assert min(S.lastpos[34 * q + q // 2:]) > g + 2 * q + 2
    pl, pc = flag_poll(V_FWD, sPWD)
    S.place(pl, k2[C["wdp_ld"]], k2[C["wdp_ld"] + 1])
    S.place(pc, k2[C["wdp_ck"]], k2[C["wdp_ck"]] + 8)
    prev = k2[C["wdp_ck"]] + 8
    for kk in range(8):
        a = max(k2[20 + (20 * kk + 20 + 7) // 8], prev)
        prev = a + 30
        S.place(wdL[kk], a, prev, spread=True)
    pl, pc = flag_poll(V_FAB, sPAB)
    S.place(pl, k2[C["abp_ld"]], k2[C["abp_ld"] + 1])
    for s in (15, 16):
        a, b = win(s - 3)
        S.place(wsL[s], a, min(b, a + 20), spread=True)
    a = max(k2[C["abp_ck"]], bar[13] + 21)
    S.place(pc + abL[15] + abL[16], a, max(bar[14] + 1, a + 40), spread=True)
    S.place(wsL[17] + abL[17], max(bar[14] + 1, a + 40), bar[15], spread=True)
    for s in range(18, 31):
        S.place(wsL[s] + abL[s], *win(s - 3), spread=True)
    rl, rc = poll([f"buffer_load_dwordx4 {vr(CSB, 4)}, v3, s[8:11], 0 offen sc1"], tag_check([CSB + i for i in range(4)]))
    assert RF == 0x1000
    S.place(rl, k2[C["rf_ld"]], k2[C["rf_ld"] + 1])
    S.place(rc + [flag_store(sLEAD, [])], k2[C["rf_ck"]] - 12, k2[C["rf_ck"]])
    pl, pc0 = flag_poll(V_FH, sPH)
    S.place(pl, k2[C["hp0_ld"]], k2[C["hp0_ld"] + 1])
    S.place(pc0, k2[C["hp0_ck"]], k2[C["hp0_ck"] + 1])
    if typ:
        L, last = epi_ab()
        info["epA"] = place_dag(S, L, k2[19] + 5, k2[C["ab_end"]], window=6)
        for t in range(10):
            assert min(S.lastpos[13 * t:]) > k2[19] + 2 * t + 2
        S.place([flag_store(sFA, [last])], k2[C["ab_flag"]] + 1, k2[C["ab_flag"] + 1])
    else:
        L, last = epi_gu(ACCA, sEA0)
        info["epA"] = place_dag(S, L, gC[0] + 5, gC[1] + 2, window=C["win"])
        epi_assert(gC[0])
        S.place([flag_store(sFA, [last])], k2[C["ha_flag"]] + 1, k2[C["ha_flag"] + 1])
    L, last = epi_gu(ACCB, sEB0)
    info["epB"] = place_dag(S, L, gC[1] + 5, k2[C["epb_end"]], window=C["win"])
    epi_assert(gC[1])
    S.place([flag_store(sFB, [last])], k2[C["hb_flag"]] + 1, k2[C["hb_flag"] + 1])
    e0 = C["epb_end"]
    S.place(sum((hL[kk] for kk in range(4)), []), max(k2[e0], k2[C["hp0_ck"] + 1]), k2[C["h0_end"]], spread=True)
    mi = K()
    mi(f"v_and_b32 v{TMP+4}, 15, v2")
    mi(f"v_lshrrev_b32 v{TMP+5}, 4, v2")
    mi(f"v_lshlrev_b32 v{TMP+5}, 2, v{TMP+5}")
    mi(f"v_sub_u32 v{TMP+4}, v{TMP+4}, v{TMP+5}")
    mi(f"v_lshlrev_b32 v{TMP+5}, 4, v{TMP+4}")
    mi(f"v_mov_b32 v{TMP+6}, 0x3f80")
    mi(f"v_lshlrev_b32 v{TMP+5}, v{TMP+5}, v{TMP+6}")
    mi(f"v_lshrrev_b32 v{TMP+4}, 1, v{TMP+4}")
    for r in (0, 1, 4, 5):
        mi(f"v_mov_b32 v{SEL+r}, 0")
    for d in range(2):
        mi.L.append([I(f"v_cmp_eq_u32 vcc, {d}, v{TMP+4}"), I(f"v_cndmask_b32 v{SEL+2+d}, 0, v{TMP+5}, vcc")])
    mi.L.append([I("s_bitcmp1_b32 s3, 0"), I("s_cselect_b64 vcc, -1, 0")] +
                [I(f"v_cndmask_b32 v{SEL+6+i}, v{SEL+2+i}, v{SEL+i}, vcc") for i in range(4)])
    for j in range(4):
        mi(f"s_add_u32 s{sH8+j}, s{sHB}, {4096*(8+j)}")
    S.place(mi.L, k2[e0], k2[e0 + 3])
    sg = [I(f"v_add_u32 v{V_S0}, s{sW4K}, v1"), I(f"v_add_u32 v{V_S0+1}, {3*SLOT}, v{V_S0}")]
    S.place(wdS[8][0] + wdS[9][0] + sg, bar[28] + 1, bar[29] + 1, spread=True)
    S.place(wdS[10][0] + wdS[11][0], bar[29] + 1, bar[30] + 1, spread=True)
    pl, pc = flag_poll(V_FH2, sPH)
    S.place(pl, k2[C["hp_ld"]], k2[C["hp_ld"] + 1])
    pf_ = []
    if C["pf_h"]:
        pf_ = [I(f"v_min_u32 v{V_AB}, 47, v2"), I(f"s_mul_i32 s{sT0}, s{sCB4}, 6144"), I(f"v_lshlrev_b32 v{V_AB}, 7, v{V_AB}"),
               I(f"s_add_u32 s{sT0}, s{sT0}, s{sHB}"), I(f"s_add_u32 s{sT0}, s{sT0}, {6*4096}")]
        S.place(pf_, bar[28] + 1, k2[C["hp_ck"]])
        pf_ = [I(f"buffer_load_dword v{V_AB}, v{V_AB}, s[8:11], s{sT0} offen sc1")]
    S.place(pc + hL[4] + pf_ + hL[5], k2[C["hp_ck"]], k2[C["hp_ck"]] + 30, spread=True)
    xl = K()
    xt = [xl(f"buffer_load_dwordx2 {vr(XU + 4*e + 2, 2)}, v{V_XO}, s[{S_X}:{S_X+3}], s{sXO} offen offset:{32*e}") for e in range(5)]
    xu = K()
    for e in range(5):
        b = XU + 4 * e
        xu(f"v_lshlrev_b32 v{b}, 16, v{b+2}", need=[xt[e]])
        xu(f"v_and_b32 v{b+1}, 0xffff0000, v{b+2}")
        xu(f"v_lshlrev_b32 v{b+2}, 16, v{b+3}")
        xu(f"v_and_b32 v{b+3}, 0xffff0000, v{b+3}")

    pub = K()
    units = [(ACCA + 4 * (5 * tt + 2 * h), ACCA + 4 * (5 * tt + 2 * h + 1)) for tt in range(4) for h in range(2)]
    units += [(ACCA + 4 * (10 * p + 4), ACCA + 4 * (10 * p + 9)) for p in range(2)]
    pub(f"s_add_u32 s{sYT}, s{sYPUB}, 8192")
    for u, (a, b) in enumerate(units):
        pub(f"v_cvt_pk_bf16_f32 v{a}, v{a}, v{a+1}")
        pub(f"v_cvt_pk_bf16_f32 v{a+1}, v{a+2}, v{a+3}")
        pub(f"v_cvt_pk_bf16_f32 v{a+2}, v{b}, v{b+1}")
        pub(f"v_cvt_pk_bf16_f32 v{a+3}, v{b+2}, v{b+3}")
        v, so, off = (1, sYPUB, 1024 * u) if u < 4 else ((3, sYPUB, 1024 * (u - 4)) if u < 8 else (1, sYT, 1024 * (u - 8)))
        last = pub(f"buffer_store_dwordx4 {vr(a, 4)}, v{v}, s[8:11], s{so} offen offset:{off} sc1")
    tag(pub.L, "pub")
    S.place(pub.L, gD + 1, gD + 30)
    S.place(hL[6], gD + 20, gD + 40)
    S.place([I("s_barrier")] + hL[7] + wdS[8][1] + wdS[9][1], gD + 40, gD + 60)
    S.place(htL[0] + wdS[10][1] + wdS[11][1], gD + 60, gD + 80)
    S.place(htL[1] + htL[2], gD + 80, gD + 100)
    S.place(htL[3], gD + 100, gD + 110)
    S.place(xl.L, gD + 45, gD + 135, spread=True)
    S.place(gat, gD + C["gat"], gD + C["gat"] + 24, spread=True)
    S.place(xu.L, gD + 190, gD + 220)
    wl = None
    for t in range(3):
        W = [I(f"ds_write_b128 v{V_DW+t}, {dacc(t, e)} offset:{XCH + 5120*t + 1024*e}") for e in range(5)]
        S.place(W, gT[t + 1] + 1, gT[t + 1] + 12, cap=4)
        wl = W[-1].tok
    rr = {}
    R = [I("s_barrier", need=[wl])]
    for e in range(5):
        for j in range(3):
            R.append(I(f"ds_read_b128 {vr(RED + 12*e + 4*j, 4)}, v{V_DW+3} offset:{XCH + 5120*j + 1024*e}"))
            rr[e, j] = R[-1].tok
    S.place(R, gT[3] + 12, gT["ysum"])
    fin = K()
    P2 = lambda r: vr(r, 2)
    fin(f"s_mov_b32 s{sT0}, {f2h(-L2E)}")
    fin(f"s_mov_b32 s{sT1}, {f2h(-L2E)}")
    fin(f"s_mov_b32 s{sT2}, 1.0")
    fin(f"s_mov_b32 s{sT3}, 1.0")
    S.place(fin.L, gT[3], gT[3] + 12)
    fin = K()
    for e in range(5):
        b, d = RED + 12 * e, OWN + 4 * e
        for i in (0, 2): fin(f"v_pk_add_f32 {P2(b+i)}, {P2(b+i)}, {P2(b+4+i)}", need=[rr[e, 0], rr[e, 1]])
        for i in (0, 2): fin(f"v_pk_add_f32 {P2(d+i)}, {P2(d+i)}, {P2(b+8+i)}", need=[rr[e, 2]])
        for i in (0, 2): fin(f"v_pk_add_f32 {P2(d+i)}, {P2(d+i)}, {P2(b+i)}")
        for i in (0, 2): fin(f"v_pk_mul_f32 {P2(b+i)}, {P2(d+i)}, s[{sT0}:{sT1}]")
        for i in range(4): fin(f"v_exp_f32 v{b+i}, v{b+i}")
    for e in range(5):
        b, d = RED + 12 * e, OWN + 4 * e
        for i in (0, 2): fin(f"v_pk_add_f32 {P2(b+i)}, {P2(b+i)}, s[{sT2}:{sT3}]")
        for i in range(4): fin(f"v_rcp_f32 v{b+i}, v{b+i}")
    for e in range(5):
        b, d = RED + 12 * e, OWN + 4 * e
        for i in (0, 2): fin(f"v_pk_mul_f32 {P2(d+i)}, {P2(d+i)}, {P2(b+i)}")
    S.put(gT["ysum"], fin.L + gck)
    for e in range(5):
        fin2 = K()
        d, y, x = OWN + 4 * e, Y + 4 * e, XU + 4 * e
        for i in range(4): fin2(f"v_fma_f32 v{d+i}, v{d+i}, v{y+i}, v{x+i}")
        fin2(f"v_cvt_pk_bf16_f32 v{d}, v{d}, v{d+1}")
        fin2(f"v_cvt_pk_bf16_f32 v{d+1}, v{d+2}, v{d+3}")
        fin2(f"buffer_store_dwordx2 {vr(d, 2)}, v{V_XO}, s[{S_OUT}:{S_OUT+3}], s{sXO} offen offset:{32*e}")
        a = min(gT["ysum"] + 4 * e + 6, gEnd)
        S.place(fin2.L, a, min(a + 4, gEnd + 1))
    pts = [(k2[k], f"k{k}") for k in range(0, 72, CFG["tsk"])] + [(gD + 20 * i, f"d{i}") for i in range(13)] + [(gT["ysum"] + 1, "ys"), (gEnd, "end")]
    for g, nm in pts:
        n = 1 if g < gD else 0
        S.gap[g] = S.gap[g][:n] + ST_(nm) + S.gap[g][n:]
    info = {k: (kof(v[0]), v[1]) for k, v in info.items()}
    info.update(A=S.est_cycles(0, k2[20]), B=S.est_cycles(k2[20], k2[40]), y=S.est_cycles(k2[40], gD), d=S.est_cycles(gD, gEnd),
                tail=S.used[gEnd], nm=gEnd)
    body, names = expand_stamps(P.L + pre + S.flat(), 2)
    body += stamp_end(len(names) + 2) + [I("s_endpgm")]
    if CFG["TS"]:
        body.append(I(f"; NAMES{typ} start karg " + " ".join(names) + " fin"))
    fin_ = finalize(body)
    check(fin_)
    return fin_ + slow, info


def check(L):
    pend = {"vm": [], "lgkm": []}
    lastw = {}
    owner = {}
    for n, ins in enumerate(L):
        if ins.kind in ("label", "meta"):
            continue
        if ins.text.startswith("s_waitcnt"):
            for c, nm in (("vm", "vmcnt"), ("lgkm", "lgkmcnt")):
                m = re.search(nm + r"\((\d+)\)", ins.text)
                if m:
                    k = int(m.group(1))
                    pend[c] = pend[c][len(pend[c]) - k:] if k < len(pend[c]) else pend[c]
                    if k == 0: pend[c] = []
            continue
        touched = ins.rd | ins.wr
        for c in pend:
            for p in pend[c]:
                if p.wr & touched:
                    raise SystemExit(f"PENDING hazard at {n}: {ins.text}  <- {p.text}")
        for t in ins.need:
            o = owner.get(id(t))
            if o is not None:
                for r in o.wr & ins.rd:
                    if lastw.get(r) is not o:
                        raise SystemExit(f"CLOBBER at {n}: {ins.text} expects {o.text} but last writer {lastw[r].text}")
        st = [f for f in ins.flags if f.startswith("S:")]
        if st and ins.kind == "vm":
            for r in ins.rd:
                if (r == ("x", "m0") or r in (("s", sWDT), ("s", sHT), ("s", sYT))) and r in lastw:
                    st2 = [f for f in lastw[r].flags if f.startswith("S:")]
                    if st2 != st:
                        raise SystemExit(f"STREAM clash at {n}: {ins.text} {st} vs {lastw[r].text} {st2}")
        if ins.tok is not None and ins.tok.cls in pend:
            pend[ins.tok.cls].append(ins)
            owner[id(ins.tok)] = ins
            assert len(pend["vm"]) <= 63, f"vm overflow at {n}"
        for r in ins.wr:
            lastw[r] = ins


def build(path, verbose=True):
    lab = NAME + "_kernel"
    s = "; generated by work/gen4.py\n; @launch grid=(256,1,1) block=(256,1,1) lds=163840\n"
    s += '.amdgcn_target "amdgcn-amd-amdhsa--gfx950"\n.text\n'
    s += f".globl {lab}\n.p2align 8\n.type {lab},@function\n{lab}:\n" + text(gen_head())
    for typ in (0, 1):
        L, info = gen_prog(typ)
        if verbose:
            nn = sum(1 for i in L if i.text.startswith("s_nop"))
            nw = sum(1 for i in L if i.text.startswith("s_waitcnt"))
            print("EO"[typ], info, "instrs", len(L), "nops", nn, "waits", nw)
        s += text(L)
    s += "L_end:\n  s_endpgm\n"
    s += '.section .rodata,"a"\n.p2align 6\n'
    s += (f".amdhsa_kernel {lab}\n  .amdhsa_next_free_vgpr 512\n  .amdhsa_next_free_sgpr 102\n  .amdhsa_accum_offset 256\n"
          "  .amdhsa_group_segment_fixed_size 0\n  .amdhsa_kernarg_size 96\n  .amdhsa_user_sgpr_count 2\n"
          "  .amdhsa_user_sgpr_kernarg_segment_ptr 1\n  .amdhsa_system_sgpr_workgroup_id_x 1\n.end_amdhsa_kernel\n")
    open(path, "w").write(s)


if __name__ == "__main__":
    for a in sys.argv[2:]:
        if a == "ts":
            CFG["TS"] = True
        else:
            k, v = a.split("=", 1)
            CFG[k] = eval(v)
    build(sys.argv[1] if len(sys.argv) > 1 else "v4.s")
```

```python
import re

TRANS = ("v_exp_f32", "v_log_f32", "v_rcp_f32", "v_rsq_f32", "v_sqrt_f32", "v_sin_f32", "v_cos_f32")


class Tok:
    __slots__ = ("cls", "seq", "name")

    def __init__(self, cls, name=""):
        self.cls = cls
        self.seq = None
        self.name = name


class I:
    __slots__ = ("text", "kind", "tok", "need", "wr", "rd", "srcc", "flags")

    def __init__(self, text, need=(), tok=None, flags=()):
        self.text = text.strip()
        self.need = [t for t in need if t is not None]
        self.flags = set(flags)
        self.kind = classify(self.text)
        self.tok = tok
        if self.kind == "vm" and tok is None:
            self.tok = Tok("vm")
        if self.kind == "ds" and tok is None:
            self.tok = Tok("lgkm")
        self.wr, self.rd, self.srcc = regs_of(self.text, self.kind)


def classify(t):
    op = t.split()[0]
    if op.endswith(":"):
        return "label"
    if op.startswith(";") or op.startswith("."):
        return "meta"
    if op.startswith("v_mfma"):
        return "mfma"
    if op.startswith("v_"):
        base = op.replace("_e32", "").replace("_e64", "")
        return "trans" if base in TRANS else "valu"
    if op.startswith("ds_"):
        return "ds"
    if op.startswith("buffer_") or op.startswith("global_"):
        if op.startswith("buffer_inv") or op.startswith("buffer_wbl2"):
            return "vm"
        return "vm"
    if op.startswith("s_load") or op.startswith("s_memtime") or op.startswith("s_memrealtime"):
        return "smem"
    if op.startswith("s_"):
        return "salu"
    raise ValueError("unknown instr " + t)


_R = re.compile(r"^(-|\|)?(neg\()?([vas])(\d+)$|^([vas])\[(\d+):(\d+)\]$")


def parse_reg(o):
    o = o.strip()
    o = o.lstrip("-").strip("|")
    m = re.match(r"^([vas])(\d+)$", o)
    if m:
        return {(m.group(1), int(m.group(2)))}
    m = re.match(r"^([vas])\[(\d+):(\d+)\]$", o)
    if m:
        return {(m.group(1), i) for i in range(int(m.group(2)), int(m.group(3)) + 1)}
    if o in ("vcc", "vcc_lo", "vcc_hi"):
        return {("x", "vcc")}
    if o in ("exec", "exec_lo", "exec_hi"):
        return {("x", "exec")}
    if o == "m0":
        return {("x", "m0")}
    return set()


def regs_of(t, kind):
    if kind in ("label", "meta"):
        return set(), set(), set()
    t = t.split(";")[0]
    parts = t.split(None, 1)
    op = parts[0]
    ops = []
    if len(parts) > 1:
        for o in parts[1].split(","):
            o = o.strip()
            if o:
                ops.append(o.split()[0])
    R = [parse_reg(o) for o in ops]
    wr, rd, srcc = set(), set(), set()
    U = lambda l: set().union(*l) if l else set()
    if kind == "mfma":
        wr = R[0]
        rd = R[1] | R[2] | R[3]
        srcc = R[3]
    elif kind in ("valu", "trans"):
        if "swap" in op:
            wr = R[0] | R[1]
            rd = R[0] | R[1]
        elif op.startswith("v_cmp"):
            wr = R[0]
            rd = U(R[1:])
        else:
            wr = R[0]
            rd = U(R[1:])
            if op.startswith(("v_fmac", "v_mac", "v_dot2c", "v_pk_fmac")) or "dpp" in t or "row_" in t or "quad_perm" in t:
                rd = rd | R[0]
            if op.startswith("v_cndmask") and len(R) == 3:
                rd = rd | {("x", "vcc")}
    elif kind == "ds":
        if op.startswith("ds_read") or op.startswith("ds_bpermute") or op.startswith("ds_swizzle"):
            wr = R[0]
            rd = U(R[1:])
        else:
            rd = U(R)
    elif kind == "vm":
        is_lds = bool(re.search(r"\blds\b", t))
        if op.startswith(("buffer_load", "global_load")) and not is_lds:
            wr = R[0]
            rd = U(R[1:])
        elif "atomic" in op and re.search(r"\bsc0\b", t):
            wr = R[0]
            rd = U(R)
        else:
            rd = U(R)
            if is_lds:
                rd = rd | {("x", "m0")}
    elif kind == "smem":
        wr = R[0]
        rd = U(R[1:])
    elif kind == "salu":
        if op.startswith(("s_cmp", "s_waitcnt", "s_barrier", "s_branch", "s_cbranch", "s_nop", "s_endpgm", "s_setprio",
                          "s_sleep", "s_bitcmp")):
            rd = U(R)
        else:
            wr = R[0] if R else set()
            rd = U(R[1:])
            if "saveexec" in op:
                wr = wr | {("x", "exec")}
    return wr, rd, srcc


def interleave(main, side, start=0, end=None, per_gap=None):
    idx = [i for i, ins in enumerate(main) if ins.kind == "mfma"]
    if end is None:
        end = len(idx)
    n = end - start
    assert n > 0
    out = []
    si = 0
    mi = 0
    for i, ins in enumerate(main):
        out.append(ins)
        if ins.kind == "mfma":
            if start <= mi < end:
                target = ((mi - start + 1) * len(side) + n - 1) // n if per_gap is None else min(len(side), (mi - start + 1) * per_gap)
                while si < min(target, len(side)):
                    out.append(side[si])
                    si += 1
                if mi == end - 1:
                    while si < len(side):
                        out.append(side[si])
                        si += 1
            mi += 1
    assert si == len(side)
    return out


def states(ins):
    if ins.kind in ("label", "meta"):
        return 0
    if ins.text.startswith("s_nop"):
        return int(ins.text.split()[1]) + 1
    return 1


def is_wide_store(ins):
    op = ins.text.split()[0]
    return ins.kind == "vm" and op in ("buffer_store_dwordx4", "buffer_store_dwordx3", "global_store_dwordx4", "global_store_dwordx3")


def need_states(p, c):
    n = 0
    pv = p.kind in ("valu", "trans")
    cv = c.kind in ("valu", "trans")
    cop = c.text.split()[0]
    if p.kind == "mfma":
        passes = 4 if "16x16x" in p.text else 8
        big = {4: 8, 8: 12}[passes]
        if c.kind == "mfma":
            ab = c.rd - c.srcc if c.srcc else c.rd
            t = c.text.split(None, 1)[1].split(",")
            abr = parse_reg(t[1].split()[0]) | parse_reg(t[2].split()[0])
            if p.wr & abr:
                n = max(n, big)
            if p.wr & c.srcc and p.wr != c.srcc:
                n = max(n, {4: 6, 8: 10}[passes])
            if p.wr & c.wr and not (p.wr & c.srcc):
                n = max(n, {4: 6, 8: 10}[passes])
        elif c.kind in ("valu", "trans", "vm", "ds"):
            if p.wr & (c.rd | c.wr):
                n = max(n, big)
            if cv and (p.srcc & c.wr):
                n = max(n, {4: 3, 8: 7}[passes])
    if pv:
        vw = {r for r in p.wr if r[0] in "va"}
        sw = {r for r in p.wr if r[0] == "s" or r == ("x", "vcc")}
        if c.kind == "mfma" and vw & c.rd:
            n = max(n, 2)
        if c.kind == "mfma" and ("x", "exec") in p.wr:
            n = max(n, 4)
        if cv and vw & c.rd:
            if "permlane" in cop or "dpp" in c.text or "row_" in c.text or "quad_perm" in c.text:
                n = max(n, 2)
            if cop.startswith(("v_readfirstlane", "v_readlane")):
                n = max(n, 1)
            if p.kind == "trans" and c.kind != "trans":
                n = max(n, 1)
            if p.kind == "trans":
                n = max(n, 1)
            if "op_sel" in p.text or "sdwa" in p.text:
                n = max(n, 1)
        if p.text.startswith("v_dot") and (vw & (c.rd | c.wr)):
            pop = p.text.split()[0]
            if cop != pop:
                n = max(n, 3)
            else:
                t = c.text.split(None, 1)[1].split(",")
                if vw & (parse_reg(t[1].split()[0]) | parse_reg(t[2].split()[0])):
                    n = max(n, 3)
        if sw & c.rd:
            if c.kind == "vm":
                n = max(n, 5)
            elif cv:
                n = max(n, 4 if cop.startswith(("v_readlane", "v_writelane")) else 2)
    if p.kind == "salu" and ("x", "m0") in p.wr and ("x", "m0") in c.rd and c.kind in ("vm", "ds"):
        n = max(n, 1)
    if is_wide_store(p):
        data = parse_reg(p.text.split(None, 1)[1].split(",")[0].split()[0])
        if data & c.wr:
            n = max(n, 2)
    return n


def finalize(instrs, hazard_window=14):
    out = []
    cnt = {"vm": 0, "lgkm": 0}
    done = {"vm": 0, "lgkm": 0}
    mx = {"vm": 63, "lgkm": 15}
    for ins in instrs:
        req = {}
        for t in ins.need:
            assert t.seq is not None, f"token {t.name} needed before issue by: {ins.text}"
            if t.seq + 1 > done[t.cls]:
                req[t.cls] = max(req.get(t.cls, 0), t.seq + 1)
        if req:
            parts = []
            for c in ("vm", "lgkm"):
                if c in req:
                    n = min(cnt[c] - req[c], mx[c])
                    parts.append(f"{'vmcnt' if c == 'vm' else 'lgkmcnt'}({n})")
                    done[c] = max(done[c], cnt[c] - n)
            out.append(I("s_waitcnt " + " ".join(parts)))
        if ins.text.startswith("s_waitcnt") and "raw" not in ins.flags:
            m = re.search(r"vmcnt\((\d+)\)", ins.text)
            if m:
                done["vm"] = max(done["vm"], cnt["vm"] - int(m.group(1)))
            m = re.search(r"lgkmcnt\((\d+)\)", ins.text)
            if m:
                done["lgkm"] = max(done["lgkm"], cnt["lgkm"] - int(m.group(1)))
        if ins.tok is not None and ins.tok.cls != "none":
            ins.tok.seq = cnt[ins.tok.cls]
            cnt[ins.tok.cls] += 1
        if ins.text != "; nop-need":
            out.append(ins)
    res = []
    for ins in out:
        if ins.kind in ("label", "meta"):
            res.append(ins)
            continue
        dist = 0
        pad = 0
        for p in reversed(res):
            if dist >= hazard_window:
                break
            n = need_states(p, ins)
            if n > dist:
                pad = max(pad, n - dist)
            dist += states(p)
        while pad > 0:
            k = min(pad, 16)
            res.append(I(f"s_nop {k - 1}"))
            pad -= k
        res.append(ins)
    return res


def text(instrs):
    L = []
    for i in instrs:
        if i.kind == "label":
            L.append(i.text)
        else:
            L.append("  " + i.text)
    return "\n".join(L) + "\n"


def vr(b, n=1, f="v"):
    return f"{f}{b}" if n == 1 else f"{f}[{b}:{b + n - 1}]"


def ar(b, n=1):
    return vr(b, n, "a")


def sr(b, n=1):
    return vr(b, n, "s")


def wait_for(*toks):
    return I("; nop-need", need=toks)


def cost(ins):
    if isinstance(ins, (list, tuple)):
        return sum(cost(i) for i in ins)
    if ins.kind in ("label", "meta"):
        return 0
    if ins.kind == "trans":
        return 8
    if ins.text.startswith("v_dot"):
        return 8
    return 4


class Sched:
    def __init__(self):
        self.m = []
        self.gap = [[]]
        self.used = [0]

    def n(self):
        return len(self.m)

    def mfma(self, ins):
        self.m.append(ins)
        self.gap.append([])
        self.used.append(0)

    def put(self, g, items, front=False):
        items = [x for it in items for x in (it if isinstance(it, (list, tuple)) else [it])]
        if front:
            self.gap[g] = items + self.gap[g]
        else:
            self.gap[g] += items
        self.used[g] += cost(items)

    def _try(self, stream, start, end, cap, spread):
        used = {}
        free = [max(0, cap - self.used[g]) for g in range(start, end)]
        tot_free = sum(f - f % 4 for f in free)
        tot = cost(stream)
        if tot > tot_free:
            return None
        pos = []
        g = start
        acc_free = 0
        acc_cost = 0
        for it in stream:
            c = cost(it)
            while True:
                if g >= end:
                    return None
                f = free[g - start] - used.get(g, 0)
                ok = f >= c or (c > cap and used.get(g, 0) == 0 and self.used[g] == 0)
                if ok and spread:
                    ok = acc_cost * tot_free <= (acc_free + free[g - start] - free[g - start] % 4) * tot * 1.0 - 1e-9 or acc_cost == 0
                if ok:
                    break
                acc_free += free[g - start] - free[g - start] % 4
                g += 1
            used[g] = used.get(g, 0) + c
            acc_cost += c
            pos.append(g)
        return pos

    def place(self, stream, start, end, cap=8, spread=False):
        if not stream:
            return start
        assert start < end <= len(self.gap), (start, end, len(self.gap))
        while True:
            pos = self._try(stream, start, end, cap, spread)
            if pos is not None:
                break
            cap += 4
            assert cap < 4000
        for it, g in zip(stream, pos):
            self.put(g, [it])
        self.lastpos = pos
        self.lastcap = cap
        return pos[-1]

    def flat(self):
        out = []
        for g, ins in enumerate(self.m):
            out += self.gap[g]
            out.append(ins)
        out += self.gap[len(self.m)]
        return out

    def est_cycles(self, a=0, b=None):
        b = len(self.m) if b is None else b
        return sum(max(16, 8 + self.used[g]) for g in range(a, b))


def _capf(level):
    base, frac = divmod(level, 32)
    return lambda g: 8 + 4 * base + (4 if (g * frac) % 32 < frac else 0)


def place_dag(S, stream, start, end, window=40, level0=0):
    n = len(stream)
    pred = [set() for _ in range(n)]
    for j in range(n):
        for i in range(j):
            a, b = stream[i], stream[j]
            if (a.wr & (b.rd | b.wr)) or (a.rd & b.wr) or (a.kind == "vm" and b.kind == "vm"):
                pred[j].add(i)
    level = level0
    while True:
        cap = _capf(level)
        pos = [None] * n
        order = []
        lo = 0
        g = start
        while g < end and lo < n:
            free = cap(g) - S.used[g]
            while free >= 4:
                cand = []
                for j in range(lo, min(n, lo + window)):
                    if pos[j] is not None:
                        continue
                    ok = True
                    for i in pred[j]:
                        if pos[i] is None or (pos[i] == g and (stream[i].kind == "trans" or stream[i].kind == "vm")):
                            ok = False
                            break
                    if ok and cost(stream[j]) <= free:
                        cand.append(j)
                if not cand:
                    break
                tr = [j for j in cand if cost(stream[j]) == 8]
                j = tr[0] if tr else cand[0]
                pos[j] = g
                order.append(j)
                free -= cost(stream[j])
                while lo < n and pos[lo] is not None:
                    lo += 1
            g += 1
        if lo >= n:
            break
        level += 1
        assert level < 400
    for j in order:
        S.put(pos[j], [stream[j]])
    S.lastpos = pos
    return max(pos), level


class Pipe:
    def __init__(self, ch=4.4, W=56, Q=5, lat=None):
        self.ch, self.W, self.Q = ch, W, Q
        self.lat = dict(h=250, m=600, c=900, s=400)
        self.lat.update(lat or {})
        self.chunks = []
        self.opstart = []
        self.done = {}
        self.log = []

    def can_issue_at(self):
        return self.opstart[-self.Q] if len(self.opstart) >= self.Q else 0.0

    def issue(self, ins, t):
        kind, lines = "h", 8
        for f in ins.flags:
            if f.startswith("M:"):
                kind, lines = f[2], int(f[3:])
        t = max(t, self.can_issue_at())
        while lines > 0:
            n = min(8, lines)
            lines -= n
            st = t
            acc = n
            for (l, s, d) in reversed(self.chunks):
                st = max(st, s + l * self.ch) if acc == n else st
                acc += l
                if acc > self.W:
                    st = max(st, d)
                    break
            pd = self.chunks[-1][2] if self.chunks else 0.0
            dn = max(pd + n * self.ch, st + self.lat[kind])
            self.chunks.append((n, st, dn))
        self.opstart.append(st)
        self.done[id(ins.tok)] = dn
        return t


def M(ins, kind, lines):
    for i in (ins if isinstance(ins, (list, tuple)) else [ins]):
        if isinstance(i, I) and i.kind == "vm":
            i.flags.add(f"M:{kind}{lines}")
    return ins


class Unit:
    def __init__(self, name, items, early, prio, late=None, after=()):
        self.name, self.items, self.early, self.prio, self.late, self.after = name, list(items), early, prio, late, list(after)
        self.n = 0
        self.pos = []

    def fin(self):
        return self.n == len(self.items)


def place_units(S, pipe, t0, units, tm=9.5, cap=8):
    flat = lambda it: it if isinstance(it, (list, tuple)) else [it]
    own = {}
    for u in units:
        for it in u.items:
            for i in flat(it):
                if i.tok is not None:
                    own[id(i.tok)] = u
    t = t0
    times = []
    NG = len(S.gap)
    cur = None
    hz = 0.0

    def needs(ins):
        return [k for k in ins.need if k.cls == "vm"]

    def emit(u, g):
        nonlocal t, cur
        it = u.items[u.n]
        for i in flat(it):
            for k in needs(i):
                t = max(t, pipe.done[id(k)])
            if i.kind == "vm":
                t = pipe.issue(i, t)
        S.put(g, [it])
        u.pos.append(g)
        u.n += 1
        cur = None if u.fin() else u

    def force(u, g):
        if u.fin():
            return
        if cur is not None and cur is not u:
            c = cur
            while not c.fin():
                emit(c, g)
        for a in u.after:
            force(a, g)
        assert u.early <= g, ("forced before early", u.name, u.early, g)
        while not u.fin():
            emit(u, g)

    def tok_ok(it):
        return all(id(k) in pipe.done and pipe.done[id(k)] <= max(t, hz) for i in flat(it) for k in needs(i))

    def has_vm(u):
        return any(i.kind == "vm" for it in u.items for i in flat(it))

    def ready(u, g):
        it = u.items[u.n]
        if S.used[g] + cost(it) > cap and not (cost(it) > cap - 4 and S.used[g] <= 4) and hz <= t + tm * S.used[g] / 16:
            return False
        if not tok_ok(it):
            return False
        return not any(i.kind == "vm" for i in flat(it)) or pipe.can_issue_at() <= max(t, hz)

    def eligible(u, g):
        if u.fin() or u.early > g or not all(a.fin() for a in u.after):
            return False
        ext = [k for it in u.items for i in flat(it) for k in needs(i) if own.get(id(k)) is not u]
        if any(id(k) not in pipe.done or pipe.done[id(k)] > max(t, hz) for k in ext):
            return False
        return not has_vm(u) or pipe.can_issue_at() <= max(t + 2 * tm, hz)
    for g in range(NG):
        for i in S.gap[g]:
            for k in needs(i):
                t = max(t, pipe.done[id(k)])
        times.append(t)
        for u in units:
            if u.late is not None and u.late <= g:
                force(u, g)
        nxt = ([S.m[g]] if g < len(S.m) else []) + (S.gap[g + 1] if g + 1 < NG else [])
        for i in nxt:
            for k in needs(i):
                if id(k) not in pipe.done:
                    force(own[id(k)], g)
        hz = max([0.0] + [pipe.done[id(k)] - tm for i in nxt for k in needs(i)])
        while True:
            if cur is not None:
                if not ready(cur, g):
                    break
                emit(cur, g)
                continue
            cand = [u for u in units if eligible(u, g)]
            if not cand:
                break
            cur = min(cand, key=lambda u: u.prio)
        if g < len(S.m):
            for k in needs(S.m[g]):
                t = max(t, pipe.done[id(k)])
            t += tm * max(16, 8 + S.used[g]) / 16
    for u in units:
        assert u.fin(), u.name
    return times
```

```python
import sys, struct, re
sys.path.insert(0, "work")
from asmlib import *

NAME = "recurrent_scan__spectral_fnet__glu_gated_geglu__prompt"
W0, RF, STAT, CSD = 0, 0x1000, 0x8000, 0x10000
ABF, HF, WDF = 0x40000, 0x60000, 0x50000
WD, ABT, HH, YP, TSB, WS_SIZE = 0x100000, 0x300000, 0x800000, 0xE00000, 0x1900000, 0x1A00000
OOB = 0x7ff00000
SLOT = 36864
SPARE = 4 * SLOT
C1 = -2.0 * 0.7978845608028654 * 1.4426950408889634
L2E = 1.4426950408889634
MF = "v_mfma_f32_16x16x32_bf16"

MF16 = "v_mfma_f32_16x16x16_bf16"
CFG = dict(TS=False, nt_x="", nt_w="", nt_ws="", FS=2, rdsp=False, win=60, tsk=1, show=False, mix=True,
           ch=9.0, W=64, Q=2, lat=dict(h=400, m=900, c=1500, s=700), tm=19.0, dl=30,
           px=True, pgb=(4, 4), j3ld=2, j3st=6, j3fl=10, ini=((4, 38), (4, 38)), stl=(15, 11), st_ck=(18.5, 14),
           pw0=(20, 12), pw1=(24, 16), wdp=(21, 21), pwd=False, ckd=2.5, ab_end=24, ab_flag=27.5, abp=31, pab=False,
           ha_flag=43, epb_end=57, hp0=53, ph0=False, hb_flag=60, hp=65.5, ph1=True, gat=150, xres=19.5)


def f2h(f):
    return hex(struct.unpack("<I", struct.pack("<f", f))[0])


S_AUX, S_WS, S_X, S_GU, S_WA, S_WSQ, S_OUT = 4, 8, 12, 40, 44, 48, 52
sXQ, sRB, sCG, sCB4, sT64, sEB8, sB32, sKS4 = 56, 57, 58, 59, 60, 61, 62, 63
sNON, sSPIN, sW4K, sW5K, sSX, sSW, sSWS, sSWB = 64, 65, 66, 67, 68, 69, 70, 71
sAB = 72
sHB, sWDB, sYPUB, sYGA, sXO, sWDT, sHT, sYT = 76, 77, 78, 79, 80, 81, 82, 83
sU0, sU1 = 100, 101
sT0, sT1, sT2, sT3 = 16, 17, 18, 19
sSO, sSTL, sCSL, sEA0, sEA1, sEB0, sEB1, sFA, sFB = 21, 22, 23, 24, 25, 26, 27, 28, 29
sPAB, sPH, sPWD, sPY, sFY, sJ3D, sFJ, sRF, sLEAD, sSGN = 30, 31, 32, 33, 34, 35, 36, 37, 38, 39
sPG, sPW0, sPW1, sPD, sPA0, sPA1, sPE, sPL, sG1, sG2, sG3 = 88, 89, 90, 91, 92, 93, 94, 95, 96, 97, 99
sC1 = 76
sB0 = 98
sH8 = 4
STS = 84

V_G = 0
V_X, V_GU, V_WD, R_X, R_WD, R_GU = 4, 8, 12, 18, 22, 26
VJ3R, VJ3 = 12, 13
OWN, XU = 4, 24
V_WS, R_WS, R_AB, V_AB = 44, 48, 52, 54
ST, ONES, SEL = 56, 64, 56
V_CA, V_CR, V_NON, V_L0, V_POLL, V_XO, V_ST, V_H, TMP = 68, 69, 71, 72, 73, 74, 75, 76, 80
V_FAB, V_FH, V_FWD, V_FH2, V_DW = 88, 89, 90, 91, 92
V_PF, INI, NMB, V_S0 = 42, 252, 64, 44
V_40, V_D0, V_D1 = 17, 43, 69
XR = [4, 6, 12, 14, 18]
ACCA, ACCB, CSB = 96, 176, 240
FB = 160
ACS = 240
OWQ = SLOT
XCH = SLOT + 10240
STG = [3 * SLOT, 3 * SLOT + 16384, 0, 16384]
STG4 = 3 * SLOT + 32768


def srd(dst, lo, nbytes):
    return [I(f"s_mov_b32 s{dst}, s{lo}"), I(f"s_and_b32 s{dst+1}, s{lo+1}, 0xffff"),
            I(f"s_mov_b32 s{dst+2}, {hex(nbytes)}"), I(f"s_mov_b32 s{dst+3}, 0x20000")]


def srd_sel(dst, lo0, lo1, nbytes):
    return [I(f"s_cselect_b32 s{dst}, s{lo1}, s{lo0}"), I(f"s_cselect_b32 s{dst+1}, s{lo1+1}, s{lo0+1}"),
            I(f"s_and_b32 s{dst+1}, s{dst+1}, 0xffff"), I(f"s_mov_b32 s{dst+2}, {hex(nbytes)}"), I(f"s_mov_b32 s{dst+3}, 0x20000")]


class K:
    def __init__(self):
        self.L = []

    def __call__(self, t, need=(), **kw):
        i = I(t, need=need, **kw)
        self.L.append(i)
        return i.tok

    def ext(self, l):
        self.L.extend(l)


V_TS = 87
V_TS2 = 68


def stamp(i):
    if not CFG["TS"]:
        return []
    L = [I("s_waitcnt lgkmcnt(0)")]
    if i > 0:
        L.append(I(f"v_writelane_b32 v{V_TS if i - 1 < 64 else V_TS2}, s{STS + 2*((i-1) & 1)}, {(i-1) & 63}"))
    L.append(I(f"s_memrealtime s[{STS+2*(i & 1)}:{STS+2*(i & 1)+1}]"))
    return [L]


def ST_(name):
    return [I(f"; STAMP {name}")] if CFG["TS"] else []


def expand_stamps(L, n0):
    out, names = [], []
    for i in L:
        if i.text.startswith("; STAMP"):
            out += flat1(stamp(n0 + len(names)))
            names.append(i.text.split()[2])
        else:
            out.append(i)
    return out, names


def flat1(l):
    return [x for it in l for x in (it if isinstance(it, (list, tuple)) else [it])]


def stamp_end(n):
    if not CFG["TS"]:
        return []
    L = [I("s_waitcnt vmcnt(0)")] + flat1(stamp(n)) + flat1(stamp(n + 1))
    L += [I(f"v_writelane_b32 v{V_TS2}, s{sSPIN}, 63"), I(f"s_mov_b32 s16, {n + 1}"), I(f"v_writelane_b32 v{V_TS2}, s16, 62"),
          I("s_lshl_b32 s16, s2, 2"), I("s_add_u32 s16, s16, s3"), I("s_lshl_b32 s16, s16, 9"), I(f"s_add_u32 s16, s16, {hex(TSB)}"),
          I("v_lshlrev_b32 v1, 2, v2"),
          I(f"buffer_store_dword v{V_TS}, v1, s[8:11], s16 offen"),
          I(f"buffer_store_dword v{V_TS2}, v1, s[8:11], s16 offen offset:256"), I("s_waitcnt vmcnt(0) lgkmcnt(0)")]
    return L


T0, T1, T2, T3 = TMP, TMP + 1, TMP + 2, TMP + 3
SF, SD1, SD2, SA = ACCB, ACCB + 20, ACCB + 24, ACCB + 28
CSR, CSV, NM, VK = ACCB + 32, ACCB + 40, ACCB + 52, ACCB + 60


def gen_head():
    P = K()
    P.ext(flat1(stamp(0)))
    P("s_load_dwordx16 s[16:31], s[0:1], 0")
    P("s_load_dwordx8 s[32:39], s[0:1], 64")
    P("v_lshrrev_b32 v1, 6, v0")
    P("v_and_b32 v2, 63, v0")
    P("v_readfirstlane_b32 s3, v1")
    P("s_cmp_ge_u32 s2, 256")
    P("s_cbranch_scc1 L_end")
    P(f"s_bfe_u32 s{sXQ}, s2, 0x10002")
    P(f"s_bfe_u32 s{sRB}, s2, 0x30003")
    P(f"s_and_b32 s{sU0}, s2, 1")
    P(f"s_lshl3_add_u32 s{sRB}, s{sU0}, s{sRB}")
    P(f"s_lshr_b32 s{sCB4}, s2, 6")
    P(f"s_bfe_u32 s{sKS4}, s2, 0x20001")
    if CFG["mix"]:
        P(f"s_lshr_b32 s{sCG}, s2, 7")
        P(f"s_lshl1_add_u32 s{sCG}, s{sKS4}, s{sCG}")
    else:
        P(f"s_lshl2_add_u32 s{sCG}, s{sXQ}, s{sCB4}")
    P(f"s_and_b32 s{sC1}, s{sCG}, 3")
    P(f"s_lshr_b32 s{sB0}, s{sCG}, 1")
    P(f"s_lshl2_add_u32 s{sB0}, s{sB0}, s{sCG}")
    P(f"s_lshl1_add_u32 s{sT64}, s{sRB}, s{sXQ}")
    P(f"s_and_b32 s{sEB8}, s{sKS4}, 1")
    P(f"s_lshl1_add_u32 s{sEB8}, s{sCB4}, s{sEB8}")
    P(f"s_mov_b32 s{sSPIN}, 30000")
    P(f"s_lshl_b32 s{sW4K}, s3, 12")
    P(f"s_mul_i32 s{sW5K}, s3, 5120")
    P(f"s_lshl2_add_u32 s{sB32}, s{sRB}, s3")
    P(f"s_mul_i32 s{sSX}, s{sB32}, {32*1280}")
    P(f"s_and_b32 s{sU0}, s3, 1")
    P(f"s_mul_i32 s{sSWB}, s{sU0}, {32*3072}")
    P(f"s_lshl_b32 s{sU0}, s{sU0}, 6")
    P("v_lshlrev_b32 v1, 4, v2")
    P("v_add_u32 v3, 0x1000, v1")
    P(f"v_bfe_u32 v{T1}, v2, 4, 1")
    P(f"v_lshlrev_b32 v{T1}, 1, v{T1}")
    P(f"v_and_b32 v{T2}, 7, v2")
    P(f"v_xor_b32 v{T1}, v{T1}, v{T2}")
    P(f"v_lshlrev_b32 v{T1}, 4, v{T1}")
    P(f"v_lshrrev_b32 v{T0}, 3, v2")
    P(f"v_mul_u32_u24 v{V_X}, 1280, v{T0}")
    P(f"v_add_u32 v{V_X}, v{V_X}, v{T1}")
    P(f"v_add_u32 v{V_X+1}, {8*1280-1024}, v{V_X}")
    P(f"v_xor_b32 v{T2}, 64, v{V_X}")
    P(f"v_add_u32 v{V_X+2}, {2*(8*1280-1024)}, v{T2}")
    P(f"v_add_u32 v{V_X+3}, {3*(8*1280-1024)}, v{T2}")
    P(f"v_mul_u32_u24 v{V_GU}, 3072, v{T0}")
    P(f"v_add_u32 v{V_GU}, v{V_GU}, v{T1}")
    P(f"v_xor_b32 v{T3}, 64, v{V_GU}")
    P(f"v_add_u32 v{V_GU+1}, {8*3072-1024}, v{T3}")
    P(f"v_add_u32 v{V_GU+2}, {2*(8*3072-1024)}, v{V_GU}")
    P(f"v_add_u32 v{V_GU+3}, {3*(8*3072-1024)}, v{T3}")
    P(f"v_xor_b32 v{V_WD}, s{sU0}, v{V_X}")
    P(f"v_xor_b32 v{T3}, 64, v{V_WD}")
    P(f"v_add_u32 v{V_WD+1}, {8*1280-1024}, v{T3}")
    P(f"v_add_u32 v{V_WD+2}, {2*(8*1280-1024)}, v{V_WD}")
    P(f"v_add_u32 v{V_WD+3}, {3*(8*1280-1024)}, v{T3}")
    P(f"v_add_u32 v{V_WD+4}, {4*8*1280}, v{V_WD}")
    P(f"v_lshl_add_u32 v{V_WS}, v{T0}, 12, v{T1}")
    P(f"v_bfe_u32 v{T2}, v2, 2, 2")
    P(f"v_and_b32 v{T3}, 3, v2")
    P(f"v_lshrrev_b32 v{T1}, 4, v2")
    P(f"v_mul_u32_u24 v{SA}, 1280, v{T2}")
    P(f"v_lshl_add_u32 v{SA}, v{T3}, 6, v{SA}")
    P(f"v_lshl_add_u32 v{SA}, v{T1}, 4, v{SA}")
    P(f"v_min_u32 v{V_40}, 39, v2")
    P(f"v_lshlrev_b32 v{V_40}, 7, v{V_40}")
    P(f"s_lshl2_add_u32 s{sU1}, s{sRB}, s{sCB4}")
    P(f"s_lshl2_add_u32 s{sU1}, s{sU1}, s3")
    P(f"s_mul_i32 s{sU1}, s{sU1}, {8*1280}")
    P(f"s_add_u32 s{sHT}, s{sU1}, 5120")
    P(f"s_and_b32 s{sPD}, s{sRB}, 7")
    P(f"s_and_b32 s{sPG}, s3, 1")
    P(f"s_lshl1_add_u32 s{sPG}, s{sPD}, s{sPG}")
    P(f"s_mul_i32 s{sPG}, s{sPG}, 3072")
    P(f"s_lshl_b32 s{sYT}, s{sB0}, 7")
    P(f"s_add_u32 s{sPG}, s{sPG}, s{sYT}")
    P(f"s_lshl3_add_u32 s{sYT}, s{sC1}, s{sPD}")
    P(f"s_lshl2_add_u32 s{sYT}, s{sYT}, s3")
    P(f"s_mul_i32 s{sYT}, s{sYT}, {5*1280}")
    P(f"v_mul_u32_u24 v{V_PF}, 384, v{V_40}")
    P(f"v_min_u32 v{V_POLL}, 49, v2")
    P(f"v_lshlrev_b32 v{V_POLL}, 7, v{V_POLL}")
    P("s_waitcnt lgkmcnt(0)")
    P.ext(flat1(stamp(1)))
    P.ext(srd(S_X, 16, 2048 * 1280))
    if CFG["px"]:
        P(f"buffer_load_dword v{V_D0}, v{V_40}, s[{S_X}:{S_X+3}], s{sU1} offen sc1")
        P(f"buffer_load_dword v{V_D0}, v{V_40}, s[{S_X}:{S_X+3}], s{sHT} offen sc1")
    P.ext(srd(S_WS, 38, WS_SIZE))
    P(f"s_bitcmp1_b32 s2, {6 if CFG['mix'] else 1}")
    P("s_cbranch_scc1 O_prog")
    return finalize(P.L)


def gen_prog(typ):
    pf = "O" if typ else "E"
    INI = 252 if typ else 164
    P = K()
    slow = []
    ntx, ntw, ntws = CFG["nt_x"], CFG["nt_w"], CFG["nt_ws"]

    def tag(L, name):
        for i in flat1(L):
            i.flags.add("S:" + name)
        return L

    dma_tok = {}

    def dma_x(s):
        L = [I(f"s_add_u32 m0, s{sW4K}, {(s % 4)*SLOT}")]
        for p in range(4):
            L.append(I(f"buffer_load_dwordx4 v{V_X+p}, s[{S_X}:{S_X+3}], s{sSX} offen offset:{1024*p}{ntx} lds"))
        L.append(I(f"s_add_u32 s{sSX}, s{sSX}, 128"))
        return L

    def dma_gu(lds, sreg):
        L = [I(f"s_add_u32 m0, s{sW4K}, {lds}")]
        for p in range(4):
            L.append(I(f"buffer_load_dwordx4 v{V_GU+p}, s[{S_GU}:{S_GU+3}], s{sreg} offen offset:{1024*p}{ntw} lds"))
        L.append(I(f"s_add_u32 s{sreg}, s{sreg}, {64*3072}"))
        return L

    def dma_wd(s):
        b = (s % 4) * SLOT + 16384
        L = [I(f"s_add_u32 m0, s{sW5K}, {b}")]
        for p in range(4):
            L.append(I(f"buffer_load_dwordx4 v{V_WD+p}, s[{S_WA}:{S_WA+3}], s{sSW} offen offset:{1024*p}{ntw} lds"))
        L.append(I(f"s_add_u32 m0, s{sW5K}, {b + 4096}"))
        L.append(I(f"buffer_load_dwordx4 v{V_WD+4}, s[{S_WA}:{S_WA+3}], s{sSW} offen{ntw} lds"))
        L.append(I(f"s_add_u32 s{sSW}, s{sSW}, 128"))
        return L

    def last_vm(L):
        return [i for i in L if i.kind == "vm"][-1].tok

    def dma_stage(s):
        if s < 10:
            L = dma_x(s) + (dma_wd(s) if typ else dma_gu((s % 4) * SLOT + 16384, sSW))
        else:
            L = dma_gu((s % 4) * SLOT, sSWB) + dma_gu((s % 4) * SLOT + 16384, sSWB)
        dma_tok[s] = last_vm(L)
        return tag(L, f"dma{s}")

    def dma_ws(s):
        L = [I(f"s_add_u32 m0, s{sW4K}, {(s % 4)*SLOT}"), I(f"s_mul_i32 s{sAB + s % 4}, s{sSWS}, 160")]
        for p in range(4):
            L.append(I(f"buffer_load_dwordx4 v{V_WS+p}, s[{S_WSQ}:{S_WSQ+3}], s{sSWS} offen offset:{1024*p}{ntws} lds"))
        L.append(I(f"s_add_u32 s{sSWS}, s{sSWS}, 128"))
        L.append(I(f"s_and_b32 s{sSWS}, s{sSWS}, 0x7ff"))
        return tag(L, f"ws{s}")

    def dma_ab(s):
        b = (s % 4) * SLOT + 16384
        L = [I(f"s_add_u32 m0, s{sW5K}, {b}")]
        for p in range(4):
            L.append(I(f"buffer_load_dwordx4 v{V_AB}, s[8:11], s{sAB + s % 4} offen offset:{1024*p} sc1 lds"))
        L.append(I(f"s_add_u32 m0, s{sW5K}, {b + 4096}"))
        L.append(I(f"buffer_load_dwordx4 v{V_AB+1}, s[8:11], s{sAB + s % 4} offen sc1 lds"))
        dma_tok[s] = L[-1].tok
        return tag(L, f"ab{s}")

    npoll = [0]

    def poll(loads, check):
        k = npoll[0]; npoll[0] += 1
        li = [I(t) for t in loads]
        toks = [i.tok for i in li if i.tok is not None]
        chk = check(toks)
        grp = [chk[-1], I(f"s_cbranch_vccnz {pf}_slow{k}"), I(f"{pf}_ok{k}:")]
        S_ = [I(f"{pf}_slow{k}:")] + [I(t) for t in loads] + [I("s_waitcnt vmcnt(0)")] + check([])
        S_ += [I(f"s_cbranch_vccz {pf}_ok{k}"), I(f"s_sub_u32 s{sSPIN}, s{sSPIN}, 1"), I(f"s_cmp_gt_i32 s{sSPIN}, 0"),
               I(f"s_cbranch_scc1 {pf}_slow{k}"), I(f"s_branch {pf}_ok{k}")]
        slow.extend(finalize(S_))
        return li, chk[:-1] + [grp]

    def flag_poll(voff, soff):
        return poll([f"buffer_load_dword v{V_POLL}, v{voff}, s[8:11], s{soff} offen sc1"],
                    lambda need: [I(f"v_cmp_ne_u32 vcc, s{sNON}, v{V_POLL}", need=need)])

    def tag_check(regs):
        def chk(need):
            L = [I(f"v_xor_b32 v{V_POLL}, s{sNON}, v{regs[0]}", need=need)]
            for r in regs[1:]:
                L.append(I(f"v_xad_u32 v{V_POLL}, v{r}, s{sNON}, v{V_POLL}"))
            L.append(I(f"v_cmp_ne_u32 vcc, 0, v{V_POLL}"))
            return L
        return chk

    def flag_store(sreg, need):
        return I(f"buffer_store_dword v{V_NON}, v{V_L0}, s[8:11], s{sreg} offen sc1", need=need)

    def PF(voff, srd_, soff, kind, lines, off=0, late=False):
        return M(I(f"buffer_load_dword v{V_D1 if late else V_D0}, v{voff}, s[{srd_}:{srd_+3}], s{soff} offen offset:{off} sc1",
                   flags=["pf"]), kind, lines)
    P(f"{pf}_prog:")
    if typ:
        P(f"s_cmp_eq_u32 s{sXQ}, 1")
        P.ext(srd_sel(S_WA, 22, 24, 640 * 1280))
        P.ext([PF(V_POLL, S_WA, sYT, "c", 50)])
        P(f"s_lshl2_add_u32 s{sSW}, s{sC1}, s3")
        P(f"s_mul_i32 s{sSW}, s{sSW}, {40*1280}")
    else:
        P("s_cmp_ge_u32 s3, 2")
        P.ext(srd_sel(S_GU, 28, 30, 640 * 3072))
        P.ext([PF(V_PF, S_GU, sPG, "c", 40)])
        P(f"s_lshl_b32 s{sSW}, s{sB0}, 7")
        P(f"s_add_u32 s{sSW}, s{sSW}, s{sSWB}")
    w0tok = P(f"buffer_load_dword v{V_NON}, off, s[8:11], 0 sc1", flags=["M:c1"])
    if typ:
        P("s_cmp_ge_u32 s3, 2")
        P.ext(srd_sel(S_GU, 28, 30, 640 * 3072))
    else:
        P.ext(srd(S_AUX, 32, 1536 * 1280))
    P(f"s_cmp_eq_u32 s{sXQ}, 1")
    P.ext(srd_sel(S_WSQ, 18, 20, 2048 * 4096))
    P.ext(srd(S_OUT, 34, 2048 * 1280))
    P.ext(ST_("p_ld"))
    if typ:
        P(f"s_mul_i32 s{sU1}, s{sC1}, 40")
        P(f"s_add_u32 s{sU1}, s{sU1}, s{sB32}")
        P(f"s_cmp_lt_u32 s{sB32}, 40")
        P(f"s_cselect_b32 s{sWDT}, 0, {hex(OOB)}")
        P(f"s_mul_i32 s{sHT}, s{sU1}, {4*1280}")
        P(f"s_add_u32 s{sHT}, s{sHT}, s{sWDT}")
        ssrd = S_WA
    else:
        P(f"s_lshl3_add_u32 s{sU1}, s{sRB}, s{sCG}")
        P(f"s_lshl2_add_u32 s{sU1}, s{sU1}, s3")
        P(f"s_mul_i32 s{sHT}, s{sU1}, {4*1280}")
        ssrd = S_X
        P(f"s_mov_b32 s{sYT}, s{sU1}")
        P(f"s_mul_i32 s{sPY}, s{sYT}, 205")
        P(f"s_lshr_b32 s{sPY}, s{sPY}, 11")
        P(f"s_mul_i32 s{sPY}, s{sPY}, {32*1280 - 1280}")
        P(f"s_lshl_b32 s{sWDT}, s{sYT}, 7")
        P(f"s_add_u32 s{sPY}, s{sPY}, s{sWDT}")
        P(f"s_cmp_lt_u32 s{sYT}, 480")
        P(f"s_cselect_b32 s{sWDT}, 0, {hex(OOB)}")
    FS = CFG["FS"]

    def flag_addr(dst, idx, base):
        P(f"s_lshl_b32 s{dst}, s{idx}, {FS}")
        P(f"s_add_u32 s{dst}, s{dst}, {hex(base)}")
    w1, w0 = sT2, sT3
    P(f"s_lshr_b32 s{w1}, s3, 1")
    P(f"s_and_b32 s{w0}, s3, 1")
    if typ:
        P(f"s_mul_i32 s{sCSL}, s{sCG}, 1280")
        P(f"s_add_u32 s{sCSL}, s{sCSL}, {hex(CSD)}")
        P(f"s_lshr_b32 s{sT0}, s{sRB}, 1")
        P(f"s_lshl2_add_u32 s{sT0}, s{sT0}, s3")
        P(f"s_and_b32 s{sT1}, s{sRB}, 1")
        P(f"s_lshl3_add_u32 s{sT0}, s{sT0}, s{sT1}")
        P(f"s_lshl3_add_u32 s{sSO}, s{sT0}, s{sCSL}")
        P(f"s_add_u32 s{sSO}, s{sSO}, s{sWDT}")
        P(f"s_lshl_b32 s{sT0}, s{sCG}, 6")
        P(f"s_add_u32 s{sT0}, s{sT0}, s{sB32}")
        P(f"s_mul_i32 s{sEA0}, s{sT0}, 10240")
        P(f"s_add_u32 s{sEA0}, s{sEA0}, {hex(ABT)}")
        P(f"s_add_u32 s{sEA1}, s{sEA0}, 8192")
        flag_addr(sFA, sT0, ABF)
        P(f"s_lshl_b32 s{sSGN}, s{sXQ}, 31")
        P(f"s_add_u32 s{sT1}, s{sB0}, 4")
    else:
        P(f"s_lshl_b32 s{sSO}, s{sU1}, 6")
        P(f"s_add_u32 s{sSO}, s{sSO}, {hex(STAT)}")
        P(f"s_lshl_b32 s{sJ3D}, s{sYT}, 12")
        P(f"s_add_u32 s{sJ3D}, s{sJ3D}, s{sWDT}")
        P(f"s_add_u32 s{sJ3D}, s{sJ3D}, {hex(WD)}")
        flag_addr(sFJ, sYT, WDF)
        P(f"s_add_u32 s{sFJ}, s{sFJ}, s{sWDT}")
        P(f"s_add_u32 s{sT1}, s{sB0}, 2")
    P(f"s_lshl_b32 s{sT0}, s{sT1}, 7")
    P(f"s_add_u32 s{sSWB}, s{sSWB}, s{sT0}")
    P(f"s_lshl_b32 s{sSTL}, s{sB32}, 9")
    P(f"s_add_u32 s{sSTL}, s{sSTL}, {hex(STAT)}")
    P(f"s_lshr_b32 s{sT0}, s{sB32}, 1")
    P(f"s_mul_i32 s{sEB0}, s{sT0}, 24")
    P(f"s_add_u32 s{sEB0}, s{sEB0}, s{sT1}")
    P(f"s_lshl2_add_u32 s{sEB0}, s{sEB0}, s3")
    P(f"s_lshl_b32 s{sEB0}, s{sEB0}, 11")
    P(f"s_add_u32 s{sEB0}, s{sEB0}, {hex(HH)}")
    P(f"s_xor_b32 s{sEB1}, s{sEB0}, 4096")
    P(f"s_lshl_b32 s{sFB}, s{sT0}, 5")
    P(f"s_add_u32 s{sFB}, s{sFB}, s{sT1}")
    P(f"s_lshl1_add_u32 s{sFB}, s{sFB}, s{w0}")
    flag_addr(sFB, sFB, HF)
    if not typ:
        P(f"s_sub_u32 s{sEA0}, s{sEB0}, 16384")
        P(f"s_sub_u32 s{sEA1}, s{sEB1}, 16384")
        P(f"s_sub_u32 s{sFA}, s{sFB}, {4 << FS}")
    P(f"s_lshl3_add_u32 s{sPA0}, s{sXQ}, s{sEB8}")
    P(f"s_lshl_b32 s{sPAB}, s{sPA0}, {5 + FS}")
    P(f"s_add_u32 s{sPAB}, s{sPAB}, {hex(ABF)}")
    P(f"s_lshl_b32 s{sPH}, s{sT64}, 6")
    P(f"s_mul_i32 s{sT0}, s3, 12")
    P(f"s_add_u32 s{sPH}, s{sPH}, s{sT0}")
    flag_addr(sPH, sPH, HF)
    P(f"s_mul_i32 s{sT1}, s{sEB8}, 5")
    P(f"s_lshr_b32 s{sPWD}, s{sT1}, 2")
    P(f"s_mul_i32 s{sT0}, s3, 120")
    P(f"s_add_u32 s{sPWD}, s{sPWD}, s{sT0}")
    flag_addr(sPWD, sPWD, WDF)
    P(f"s_lshl_b32 s{sT0}, s{sT0}, 2")
    P(f"s_add_u32 s{sWDB}, s{sT0}, s{sT1}")
    P(f"s_lshl_b32 s{sWDB}, s{sWDB}, 10")
    P(f"s_add_u32 s{sWDB}, s{sWDB}, {hex(WD)}")
    P(f"s_lshl2_add_u32 s{sHB}, s{sT64}, s3")
    P(f"s_mul_i32 s{sHB}, s{sHB}, {12*4096}")
    P(f"s_add_u32 s{sHB}, s{sHB}, {hex(HH)}")
    P(f"s_lshl2_add_u32 s{sT0}, s{sRB}, s{sCB4}")
    P(f"s_lshl2_add_u32 s{sT1}, s{sT0}, s3")
    P(f"s_lshl2_add_u32 s{sT1}, s{sT1}, s{sKS4}")
    P(f"s_mul_i32 s{sYPUB}, s{sT1}, 10240")
    P(f"s_add_u32 s{sYPUB}, s{sYPUB}, {hex(YP)}")
    P(f"s_cmp_eq_u32 s3, s{sKS4}")
    P(f"s_cselect_b32 s{sYPUB}, {hex(OOB)}, s{sYPUB}")
    P(f"s_cselect_b32 s{sRF}, 0, 10240")
    P(f"s_lshl2_add_u32 s{sT0}, s{sT0}, s{sKS4}")
    P(f"s_mul_i32 s{sYGA}, s{sT0}, 40960")
    P(f"s_lshl_b32 s{sT1}, s3, 11")
    P(f"s_add_u32 s{sYGA}, s{sYGA}, s{sT1}")
    P(f"s_add_u32 s{sYGA}, s{sYGA}, {hex(YP)}")
    for j, sg in enumerate((sG1, sG2, sG3)):
        P(f"s_xor_b32 s{sg}, s{sKS4}, {j+1}")
        P(f"s_mul_i32 s{sg}, s{sg}, 10240")
        P(f"s_add_u32 s{sg}, s{sg}, s{sYGA}")
    P(f"s_add_u32 s{sYGA}, s{sT1}, {OWQ}")
    P(f"s_lshl_b32 s{sT0}, s{w1}, 10")
    P(f"s_sub_u32 s{sT0}, s{sT0}, s{sT1}")
    P(f"s_add_u32 s{sT0}, s{sT0}, 8192")
    P(f"v_add_u32 v{V_G}, s{sT0}, v1")
    P(f"s_lshl1_add_u32 s{sXO}, s{sT64}, s{w1}")
    P(f"s_lshl3_add_u32 s{sXO}, s{sXO}, s{w0}")
    P(f"s_mul_i32 s{sXO}, s{sXO}, {4*1280}")
    P(f"s_mul_i32 s{sT0}, s{sEB8}, 160")
    P(f"s_add_u32 s{sXO}, s{sXO}, s{sT0}")
    P(f"s_or_b32 s{sT0}, s2, s3")
    P(f"s_cselect_b32 s{sLEAD}, {hex(OOB)}, 0")
    P(f"s_lshl1_add_u32 s{sSWS}, s{sCB4}, s{sRB}")
    P(f"s_lshl_b32 s{sSWS}, s{sSWS}, 8")
    P(f"s_and_b32 s{sSWS}, s{sSWS}, 0x7ff")
    P(f"s_add_u32 s{sPW1}, s{sSWS}, 256")
    P(f"s_and_b32 s{sPW1}, s{sPW1}, 0x7ff")
    P(f"s_lshl_b32 s{sT0}, s{sB32}, 17")
    P(f"s_and_b32 s{sT1}, s{sKS4}, 1")
    P(f"s_lshl_b32 s{sT1}, s{sT1}, 11")
    P(f"s_add_u32 s{sT0}, s{sT0}, s{sT1}")
    P(f"v_add_u32 v{V_WS}, s{sT0}, v{V_WS}")
    P(f"s_add_u32 s{sPW0}, s{sSWS}, s{sT0}")
    P(f"s_add_u32 s{sPW1}, s{sPW1}, s{sT0}")
    P(f"v_add_u32 v{V_WS+1}, {8*4096-1024}, v{V_WS}")
    P(f"v_xor_b32 v{V_WS+3}, 64, v{V_WS}")
    P(f"v_add_u32 v{V_WS+2}, {2*(8*4096-1024)}, v{V_WS+3}")
    P(f"v_add_u32 v{V_WS+3}, {3*(8*4096-1024)}, v{V_WS+3}")
    P(f"s_mul_i32 s{sT0}, s{sPA0}, {32*10240}")
    P(f"s_add_u32 s{sT0}, s{sT0}, s{sW5K}")
    P(f"s_add_u32 s{sT0}, s{sT0}, {hex(ABT)}")
    P(f"v_add_u32 v{V_AB}, s{sT0}, v1")
    P(f"v_add_u32 v{V_AB+1}, s{sT0}, v3")
    P(f"s_add_u32 s{sPA0}, s{sT0}, s{sW5K}")
    P(f"s_mul_i32 s{sT0}, s{sSWS}, 160")
    P(f"s_add_u32 s{sPA0}, s{sPA0}, s{sT0}")
    P(f"s_add_u32 s{sPA1}, s{sPA0}, 5120")
    P(f"s_mul_i32 s{sPD}, s{sPD}, 640")
    P(f"s_add_u32 s{sPD}, s{sPD}, s{sWDB}")
    P(f"s_lshl_b32 s{sPE}, s{sCB4}, 12")
    P(f"s_lshl1_add_u32 s{sPL}, s{sPE}, s{sHB}")
    P(f"s_add_u32 s{sPL}, s{sPL}, 16384")
    P(f"s_add_u32 s{sPE}, s{sPE}, s{sHB}")
    P(f"s_mul_i32 s{sT0}, s{w0}, 5120")
    P(f"s_add_u32 s{sT0}, s{sT0}, 16384")
    P(f"v_add_u32 v{R_AB}, s{sT0}, v1")
    P(f"v_add_u32 v{R_AB+1}, {2*SLOT}, v{R_AB}")
    P(f"v_bfe_u32 v{T0}, v2, 3, 1")
    P(f"v_lshlrev_b32 v{T0}, 2, v{T0}")
    P(f"v_and_b32 v{TMP+4}, 2, v2")
    P(f"v_or_b32 v{T0}, v{T0}, v{TMP+4}")
    P(f"v_xor_b32 v{T0}, v{T0}, v{T1}")
    P(f"v_lshlrev_b32 v{T0}, 4, v{T0}")
    P(f"v_lshl_add_u32 v{V_ST}, v{T2}, 3, v{T3}")
    P(f"v_lshl_add_u32 v{R_WS}, v{V_ST}, 7, v{T0}")
    P(f"v_add_u32 v{R_X}, s{sW4K}, v{R_WS}")
    P(f"v_xor_b32 v{R_X}, s{sU0}, v{R_X}")
    P(f"v_xor_b32 v{R_X+1}, 64, v{R_X}")
    P(f"v_add_u32 v{R_X+2}, {2*SLOT}, v{R_X}")
    P(f"v_add_u32 v{R_X+3}, {2*SLOT}, v{R_X+1}")
    P(f"s_lshl_b32 s{sT0}, s{w1}, 13")
    P(f"v_add_u32 v{R_WS}, s{sT0}, v{R_WS}")
    P(f"v_xor_b32 v{R_WS+1}, 64, v{R_WS}")
    P(f"v_add_u32 v{R_WS+2}, {2*SLOT}, v{R_WS}")
    P(f"v_add_u32 v{R_WS+3}, {2*SLOT}, v{R_WS+1}")
    if typ:
        P(f"v_and_b32 v{R_WD}, 15, v2")
        P(f"v_lshl_add_u32 v{R_WD}, v{R_WD}, 7, v{T0}")
        P(f"v_add_u32 v{R_WD}, 16384, v{R_WD}")
        P(f"v_xor_b32 v{R_WD}, s{sU0}, v{R_WD}")
        P(f"v_xor_b32 v{R_WD+1}, 64, v{R_WD}")
        P(f"v_add_u32 v{R_WD+2}, {2*SLOT}, v{R_WD}")
        P(f"v_add_u32 v{R_WD+3}, {2*SLOT}, v{R_WD+1}")
    P(f"v_lshl_add_u32 v{R_GU}, v{T1}, 3, v{T2}")
    P(f"v_lshlrev_b32 v{R_GU}, 7, v{R_GU}")
    P(f"v_lshl_add_u32 v{R_GU}, v{T3}, 3, v{R_GU}")
    P(f"v_bfe_u32 v{R_GU+1}, v2, 3, 2")
    P(f"v_lshl_add_u32 v{R_GU}, v{R_GU+1}, 5, v{R_GU}")
    P(f"s_lshl_b32 s{sT0}, s{w1}, 6")
    P(f"s_lshl_b32 s{sT1}, s{w0}, 12")
    P(f"s_or_b32 s{sT0}, s{sT0}, s{sT1}")
    P(f"v_xor_b32 v{R_GU}, s{sT0}, v{R_GU}")
    for i in range(1, 8):
        P(f"v_xor_b32 v{R_GU+i}, {32*(i & 3) + 4096*(i >> 2)}, v{R_GU}")
    for i in range(8):
        P(f"v_add_u32 v{R_GU+8+i}, {2*SLOT}, v{R_GU+i}")
    if not typ:
        P(f"v_lshl_add_u32 v{VJ3R}, v{T1}, 2, v{T2}")
        P(f"v_lshlrev_b32 v{VJ3R}, 7, v{VJ3R}")
        P(f"v_lshl_add_u32 v{VJ3R}, v{T3}, 3, v{VJ3R}")
        P(f"v_bfe_u32 v{VJ3}, v2, 3, 1")
        P(f"v_lshl_add_u32 v{VJ3R}, v{VJ3}, 5, v{VJ3R}")
        P(f"v_add_u32 v{VJ3R}, s{sW4K}, v{VJ3R}")
        P(f"v_add_u32 v{VJ3R}, {SPARE}, v{VJ3R}")
        P(f"v_xor_b32 v{VJ3}, 32, v{VJ3R}")
    else:
        P(f"s_add_u32 s{sT0}, s{sW4K}, {SPARE + 1024}")
        P(f"v_lshl_add_u32 v{VK}, v{V_ST}, 2, s{sT0}")
        P(f"v_lshl_add_u32 v{VK+1}, v{T1}, 5, s{sT0}")
        P(f"v_and_b32 v{VK+2}, 15, v2")
        P(f"v_mul_u32_u24 v{SA+3}, 80, v{VK+2}")
        P(f"v_add_u32 v{SA+3}, s{sT0}, v{SA+3}")
        P(f"v_lshl_add_u32 v{SA+2}, v{T1}, 3, v{SA+3}")
        P(f"v_lshlrev_b32 v{VK+2}, 4, v{VK+2}")
    P(f"s_lshl_b32 s{sT0}, s{w1}, 8")
    P(f"s_add_u32 s{sT0}, s{sT0}, {SPARE}")
    P(f"v_and_b32 v{V_CR}, 15, v2")
    P(f"v_lshl_add_u32 v{V_CR}, v{V_CR}, 4, s{sT0}")
    P(f"v_xor_b32 v{V_CR+1}, 256, v{V_CR}")
    P(f"v_lshl_add_u32 v{V_CA}, s{w0}, 2, v{V_CR}")
    P(f"v_bfe_u32 v{TMP+4}, v2, 5, 1")
    P(f"v_lshl_add_u32 v{V_CA}, v{TMP+4}, 9, v{V_CA}")
    P(f"v_bfe_u32 v{TMP+4}, v2, 4, 1")
    P(f"v_lshl_add_u32 v{V_CA}, v{TMP+4}, 3, v{V_CA}")
    for i in range(4):
        P(f"v_mov_b32 v{ONES+i}, 0x3f803f80")
        P(f"v_mov_b32 v{INI+i}, -1")
    for j in range(4):
        P(f"v_cmp_eq_u32 vcc, {j}, v{T2}")
        P(f"v_cndmask_b32 v{TMP+4}, 0, v{ONES}, vcc")
        for i in range(4):
            P(f"v_accvgpr_write_b32 a{ACS + 4*j + i}, v{TMP+4}")
    P(f"v_mul_u32_u24 v{V_XO}, 1280, v{V_ST}")
    P(f"v_lshl_add_u32 v{V_XO}, v{T1}, 3, v{V_XO}")
    P(f"v_lshlrev_b32 v{V_ST}, 4, v{V_ST}")
    for t in range(4):
        P(f"s_add_u32 s{sT0}, s3, {t+1}")
        P(f"s_and_b32 s{sT0}, s{sT0}, 3")
        P(f"v_lshl_add_u32 v{V_H+t}, s{sT0}, 10, v1")
        P(f"s_mul_i32 s{sT0}, s{sT0}, 15360")
        P(f"v_add_u32 v{V_DW+t}, s{sT0}, v1")
    P(f"v_and_b32 v{V_FAB}, 31, v2")
    P(f"v_lshlrev_b32 v{V_FAB}, {FS}, v{V_FAB}")
    P(f"v_lshlrev_b32 v{V_FH}, {FS}, v{T3}")
    P(f"v_and_b32 v{V_FH2}, 7, v2")
    P(f"v_add_lshl_u32 v{V_FH2}, v{V_FH2}, 4, {FS}")
    P(f"v_lshrrev_b32 v{V_FWD}, 1, v2")
    P(f"v_min_u32 v{V_FWD}, 11, v{V_FWD}")
    P(f"v_mul_u32_u24 v{V_FWD}, 10, v{V_FWD}")
    P(f"v_and_b32 v{TMP+4}, 1, v2")
    P(f"v_add_lshl_u32 v{V_FWD}, v{TMP+4}, v{V_FWD}, {FS}")
    P(f"v_mov_b32 v{TMP+4}, {hex(OOB)}")
    P("v_cmp_eq_u32 vcc, 0, v2")
    P(f"v_cndmask_b32 v{V_L0}, v{TMP+4}, v2, vcc")
    P(f"v_mul_u32_u24 v{TMP+5}, 20, v{T1}")
    P(f"v_cmp_eq_u32 vcc, v{TMP+5}, v2")
    P(f"v_lshlrev_b32 v{SA+1}, 4, v{T1}")
    P(f"v_cndmask_b32 v{SA+1}, v{TMP+4}, v{SA+1}, vcc")
    P.ext(ST_("p_set"))
    P.ext(dma_stage(0))
    stok = [P(f"buffer_load_dwordx4 {vr(SF + 4*i, 4)}, v{SA}, s[{ssrd}:{ssrd+3}], s{sHT} offen offset:{256*i}") for i in range(5)]
    P.ext(dma_stage(1))
    P.ext(ST_("p_ld2"))
    P(f"v_readfirstlane_b32 s{sNON}, v{V_NON}", need=[w0tok])
    P(f"s_mul_i32 s{sNON}, s{sNON}, 1664525")
    P(f"s_add_u32 s{sNON}, s{sNON}, 1013904223")
    P(f"v_mov_b32 v{V_NON}, s{sNON}")

    S = Sched()
    CS = 20 if typ else 160
    ksteps = []
    xtok = {}

    def xreg(ks, T):
        return ar(4 * (2 * ks + T), 4)

    def gu_part(rd, m, sl, half, kap, buf, ks, acc):
        for f in (0, 1, 4, 5, 2, 3, 6, 7):
            mat, t = divmod(f, 4)
            tk = []
            for hh in range(2):
                off = (sl & 1) * SLOT + 16384 * half + 8192 * mat + 512 * hh
                i = I(f"ds_read_b64_tr_b16 {ar(buf + 4*f + 2*hh, 2)}, v{R_GU + 8*(sl >> 1) + 4*kap + t} offset:{off}")
                rd.append(i); tk.append(i.tok)
            for T in range(2):
                d = vr(acc + 4 * (2 * f + T), 4)
                m.append(I(f"{MF} {d}, {ar(buf + 4*f, 4)}, {xreg(ks, T)}, {'0' if ks == 0 else d}", need=tk + [xtok[ks, T]]))
            if kap == 0 and t < 2:
                d = vr(CS, 4)
                m.append(I(f"{MF} {d}, {ar(ACS + 4*(2*mat + t), 4)}, {ar(buf + 4*f, 4)}, {'0' if ks == 0 and f == 0 else d}", need=tk))

    def mk_passA(ks):
        s, kap = divmod(ks, 2)
        sl = s % 4
        buf = FB + 40 * (len(ksteps) % 2)
        rd, m = [], []
        for T in range(2):
            i = I(f"ds_read_b128 {xreg(ks, T)}, v{R_X + 2*(sl >> 1) + kap} offset:{(sl & 1)*SLOT + 512*T}")
            rd.append(i); xtok[ks, T] = i.tok
        if typ:
            for t in range(10):
                i = I(f"ds_read_b128 {ar(buf + 4*t, 4)}, v{R_WD + 2*(sl >> 1) + kap} offset:{(sl & 1)*SLOT + 2048*t}")
                rd.append(i)
                for T in range(2):
                    d = vr(ACCA + 4 * (2 * t + T), 4)
                    m.append(I(f"{MF} {d}, {xreg(ks, T)}, {ar(buf + 4*t, 4)}, {'0' if ks == 0 else d}", need=[i.tok, xtok[ks, T]]))
        else:
            gu_part(rd, m, sl, 1, kap, buf, ks, ACCA)
        ksteps.append(dict(rd=rd, m=m, stage=s, first=kap == 0))

    def mk_passB(ks):
        s = 10 + ks // 4
        q = ks % 4
        buf = FB + 40 * (len(ksteps) % 2)
        rd, m = [], []
        gu_part(rd, m, s % 4, q >> 1, q & 1, buf, ks, ACCB)
        ksteps.append(dict(rd=rd, m=m, stage=s, first=q == 0))

    def mk_y(k):
        s, kap = 15 + k // 2, k % 2
        sl = s % 4
        buf = FB + 40 * (len(ksteps) % 2)
        m, wt, ab = [], [], []
        for tt in range(4):
            wt.append(I(f"ds_read_b128 {ar(buf + 4*tt, 4)}, v{R_WS + 2*(sl >> 1) + kap} offset:{(sl & 1)*SLOT + 4096*(tt >> 1) + 512*(tt & 1)}"))
        for e in range(5):
            ab.append(I(f"ds_read_b128 {ar(buf + 16 + 4*e, 4)}, v{R_AB + (sl >> 1)} offset:{(sl & 1)*SLOT + 1024*(10*kap + e)}"))
        rd = [ab[0]] + wt + ab[1:]
        for e in range(5):
            for tt in range(4):
                d = vr(ACCA + 4 * (5 * tt + e), 4)
                m.append(I(f"{MF} {d}, {ar(buf + 16 + 4*e, 4)}, {ar(buf + 4*tt, 4)}, {'0' if k == 0 else d}", need=[ab[e].tok, wt[tt].tok]))
        ksteps.append(dict(rd=rd, m=m, stage=s, first=kap == 0))

    for ks in range(20): mk_passA(ks)
    for ks in range(20): mk_passB(ks)
    for k in range(32): mk_y(k)

    dmaL = {s: dma_stage(s) for s in range(2, 15)}
    wsL = {s: dma_ws(s) for s in range(15, 31)}
    abL = {s: dma_ab(s) for s in range(15, 31)}

    cspub, csrd = {}, {}
    for ps in (0, 1):
        if ps == 0 and typ:
            continue
        cspub[ps] = [I(f"v_cvt_pk_bf16_f32 v{CS+1}, v{CS}, v{CS}"), I(f"v_and_b32 v{CS+1}, 0xffff0000, v{CS+1}"),
                     I(f"v_sub_f32 v{CS+1}, v{CS}, v{CS+1}"), I(f"v_cvt_pk_bf16_f32 v{CS+1}, v{CS}, v{CS+1}"),
                     I(f"ds_write_b32 v{V_CA}, v{CS+1} offset:{4096*ps}")]
        csrd[ps] = {(p, mat): I(f"ds_read_b128 {vr(CSB + 8*p + 4*mat, 4)}, v{V_CR+p} offset:{4096*ps + 512*mat}")
                    for p in range(2) for mat in range(2)}
    ini = [I(f"s_add_u32 s{sYT}, s{sYPUB}, 8192")]
    for u in range(10):
        v, so, off = (1, sYPUB, 1024 * u) if u < 4 else ((3, sYPUB, 1024 * (u - 4)) if u < 8 else (1, sYT, 1024 * (u - 8)))
        ini.append(I(f"buffer_store_dwordx4 {vr(INI, 4)}, v{v}, s[8:11], s{so} offen offset:{off} sc1"))
    tag(ini, "ini")

    bar = {}
    kpos = []
    gC = {}
    pre = ST_("p_non") + [I("s_barrier", need=[dma_tok[0]])] + ST_("p_bar") + ksteps[0]["rd"]
    for K_, ks in enumerate(ksteps):
        g0 = S.n()
        kpos.append(g0)
        for m in ks["m"]:
            S.mfma(m)
        if K_ in (19, 39) and (K_ // 20) in cspub:
            acc = ACCB if K_ == 39 else ACCA
            gC[K_ // 20] = S.n()
            for p in range(2):
                for T in range(2):
                    for t2 in range(2):
                        for mat in range(2):
                            d = vr(acc + 4 * (2 * (4 * mat + 2 * p + t2) + T), 4)
                            S.mfma(I(f"{MF16} {d}, {vr(CSB + 8*p + 4*mat + 2*t2, 2)}, {vr(NMB + 2*T, 2)}, {d}",
                                     need=[csrd[K_ // 20][p, mat].tok]))
        if K_ == 1:
            for i in range(5):
                S.mfma(I(f"{MF} {vr(SD1, 4)}, {vr(ONES, 4)}, {vr(SF + 4*i, 4)}, {'0' if i == 0 else vr(SD1, 4)}", need=[stok[i]]))
                if not typ:
                    S.mfma(I(f"{MF} {vr(SD2, 4)}, {vr(SF + 4*i, 4)}, {vr(SF + 4*i, 4)}, {'0' if i == 0 else vr(SD2, 4)}", need=[stok[i]]))
        gend = S.n()
        nx = ksteps[K_ + 1] if K_ + 1 < len(ksteps) else None
        if nx is not None and nx["first"]:
            need = [dma_tok[nx["stage"]], ks["rd"][-1].tok]
            if K_ in (19, 39) and (K_ // 20) in cspub:
                need.append(cspub[K_ // 20][-1].tok)
            S.put(g0, [I("s_barrier", need=need)])
            bar[nx["stage"]] = g0
        else:
            S.put(g0, [wait_for(ks["rd"][-1].tok)])
            S.used[g0] += 4
        if nx is not None:
            rds = nx["rd"]
            if K_ in (19, 39) and (K_ // 20) in cspub:
                rds = list(csrd[K_ // 20].values()) + rds
            if CFG["rdsp"] and len(rds) > gend - 4 - g0 - 1:
                S.place(rds, g0 + 1, gend - 3, cap=8, spread=True)
            else:
                S.place(rds, g0 + 1, gend - (2 if nx["first"] else 4), cap=4)
        if K_ in (18, 38) and (K_ // 20) in cspub:
            S.place(cspub[K_ // 20], g0 + 14, gend - 2)
    kpos.append(S.n())

    ACCD = FB
    wdreg, hreg, wdtok, htok = {}, {}, {}, {}
    for kk in range(8):
        for e in range(5): wdreg[kk, e] = ar(20 * kk + 4 * e, 4)
    for kk in range(4):
        for t in range(4): hreg[kk, t] = vr(ACCB + 16 * kk + 4 * t, 4)
    for t in range(4):
        hreg[4, t] = vr(240 + 4 * t, 4)
        hreg[5, t] = ar(240 + 4 * t, 4)
        hreg[6, t] = hreg[0, t]
        hreg[7, t] = hreg[1, t]
    for e in range(5):
        wdreg[8, e] = ar(220 + 4 * e, 4)
        for j in range(3): wdreg[9 + j, e] = wdreg[j, e]
    for j in range(4):
        hreg[8 + j, 0] = hreg[2, j]
        hreg[8 + j, 1] = hreg[3, j]
        hreg[8 + j, 2] = wdreg[3, j]
        hreg[8 + j, 3] = wdreg[4, j]

    def wd_load(kk):
        L = [I(f"s_add_u32 s{sWDT}, s{sWDB}, {40960*kk}")]
        for e in range(5):
            v, o = (1, 1024 * e) if e < 4 else (3, 0)
            L.append(I(f"buffer_load_dwordx4 {wdreg[kk, e]}, v{v}, s[8:11], s{sWDT} offen offset:{o} sc1"))
            wdtok[kk, e] = L[-1].tok
        return tag(L, f"wd{kk}")

    def h_load(kk):
        L = [I(f"s_add_u32 s{sHT}, s{sHB}, {4096*kk}")]
        for t in range(4):
            L.append(I(f"buffer_load_dwordx4 {hreg[kk, t]}, v{V_H+t}, s[8:11], s{sHT} offen sc1"))
            htok[kk, t] = L[-1].tok
        return tag(L, f"h{kk}")

    def h_load_t(t):
        L = []
        for j in range(4):
            L.append(I(f"buffer_load_dwordx4 {hreg[8+j, t]}, v{V_H+t}, s[8:11], s{sH8+j} offen sc1"))
            htok[8 + j, t] = L[-1].tok
        return L

    def wd_stage(kk):
        j = kk - 8
        L = [I(f"s_add_u32 s{sWDT}, s{sWDB}, {40960*kk}"), I(f"s_add_u32 m0, s{sW4K}, {STG[j]}")]
        for e in range(4):
            L.append(I(f"buffer_load_dwordx4 v1, s[8:11], s{sWDT} offen offset:{1024*e} sc1 lds"))
        L.append(I(f"s_add_u32 m0, s{sW4K}, {STG4 + 1024*j}"))
        L.append(I(f"buffer_load_dwordx4 v3, s[8:11], s{sWDT} offen sc1 lds"))
        R = []
        for e in range(5):
            a = STG[j] + 1024 * e if e < 4 else STG4 + 1024 * j
            v, o = (V_S0 + 1, a - 3 * SLOT) if a >= 3 * SLOT else (V_S0, a)
            R.append(I(f"ds_read_b128 {wdreg[kk, e]}, v{v} offset:{o}", need=[L[-1].tok]))
            wdtok[kk, e] = R[-1].tok
        return tag(L, f"wd{kk}"), R
    wdL = {kk: wd_load(kk) for kk in range(8)}
    wdS = {kk: wd_stage(kk) for kk in range(8, 12)}
    hL = {kk: h_load(kk) for kk in range(8)}
    htL = {t: h_load_t(t) for t in range(4)}

    def dacc(t, e):
        return ar(ACCD + 4 * (5 * t + e), 4) if t < 3 else vr(OWN + 4 * e, 4)

    def d_mfma(kk, t, e):
        d = dacc(t, e)
        S.mfma(I(f"{MF} {d}, {wdreg[kk, e]}, {hreg[kk, t]}, {'0' if kk == 0 else d}", need=[wdtok[kk, e], htok[kk, t]]))
    gD = S.n()
    for kk in range(8):
        for e in range(5):
            for t in range(4): d_mfma(kk, t, e)
    GA, Y, RED = ACCA, ACCA + 48, ACCB
    gtxt = []
    for s, sg in enumerate((sG1, sG2, sG3)):
        for u in range(3):
            v = 1 if u < 2 else V_G
            gtxt.append(f"buffer_load_dwordx4 {vr(GA + 12*s + 4*u, 4)}, v{v}, s[8:11], s{sg} offen offset:{1024*u if u < 2 else 0} sc1")

    def gat_check(need):
        L = [I(f"v_max3_u32 v{V_POLL}, v{GA}, v{GA+4}, v{GA+8}", need=need[:3])]
        for i in range(3, 9, 2):
            L.append(I(f"v_max3_u32 v{V_POLL}, v{V_POLL}, v{GA+4*i}, v{GA+4*i+4}", need=need[i:i+2]))
        L.append(I(f"v_cmp_eq_u32 vcc, -1, v{V_POLL}"))
        return L
    gown = [I(f"v_add_u32 v{TMP+4}, s{sYGA}, v1"), I(f"v_add_u32 v{TMP+5}, s{sYGA}, v{V_G}")]
    gown += [I(f"ds_read_b128 {vr(GA + 36 + 4*u, 4)}, v{TMP + 4 + u // 2} offset:{1024*(u & 1)}") for u in range(3)]
    gat, gck = poll(gtxt, gat_check)
    tag(gat, "gat")
    gT = {}
    for t in range(3):
        gT[t] = S.n()
        for kk in range(8, 12):
            for e in range(5): d_mfma(kk, t, e)
    gT[3] = S.n()
    for e in range(5):
        for kk in range(8, 12): d_mfma(kk, 3, e)
    gT["ysum"] = S.n()
    for e in range(5):
        for s in range(4):
            sel = vr(SEL + 6, 4) if e == 4 else (vr(SEL + 2, 4) if e % 2 == 0 else vr(SEL, 4))
            d = vr(Y + 4 * e, 4)
            S.mfma(I(f"{MF} {d}, {sel}, {vr(GA + 12*s + 4*(e // 2), 4)}, {'0' if s == 0 else d}", need=[gown[2 + e // 2].tok] if s == 3 else []))
    gEnd = S.n()
    k2 = kpos

    def kof(g):
        k = max(i for i in range(len(k2)) if k2[i] <= g)
        return round(k + (g - k2[k]) / 20, 2)

    C = CFG
    info = {}
    UN = []

    def kg(k):
        a = int(k)
        return k2[a] + int(round((k - a) * (k2[a + 1] - k2[a])))

    def U(name, items, early, prio, late=None, after=()):
        UN.append(Unit(name, items, early, prio, late, after))
        return UN[-1]

    def UA(name, items, at, **kw):
        at = at[typ] if isinstance(at, tuple) else at
        return U(name, items, kg(at) + 1, 0, **kw)
    DL = C["dl"]
    prevD = []
    for s_ in range(2, 15):
        L = dmaL[s_]
        h_ = [n for n, i_ in enumerate(L) if "m0" in i_.text.split(",")[0]][1]
        e_ = bar[s_ - 3] + 1 if s_ >= 4 else 0
        prevD = [U(f"D{s_}a", L[:h_], e_, bar[s_] - DL - 1, after=prevD)]
        prevD = [U(f"D{s_}b", L[h_:], e_, bar[s_] - DL, after=prevD)]
    sf = K()
    a0, a1, a2, a3 = SF, SF + 1, SF + 2, SF + 3
    dp = "row_mask:0xf bank_mask:0xf"
    if typ:
        sf(f"v_add_f32_dpp v{a0}, v{SD1}, v{SD1} quad_perm:[1,0,3,2] {dp}")
        sf(f"v_mov_b32 v{a1}, v{V_NON}")
        sf(f"v_add_f32_dpp v{a0}, v{a0}, v{a0} quad_perm:[2,3,0,1] {dp}")
        sf(f"buffer_store_dwordx2 {vr(a0, 2)}, v{SA+1}, s[8:11], s{sSO} offen sc1")
    else:
        sf(f"v_add_f32_dpp v{a0}, v{SD1}, v{SD1} quad_perm:[1,0,3,2] {dp}")
        sf(f"v_mov_b32_dpp v{a1}, v{SD2} quad_perm:[0,0,0,0] {dp}")
        sf(f"v_add_f32_dpp v{a1}, v{SD2+1}, v{a1} quad_perm:[1,1,1,1] {dp}")
        sf(f"v_add_f32_dpp v{a0}, v{a0}, v{a0} quad_perm:[2,3,0,1] {dp}")
        sf(f"v_add_f32_dpp v{a1}, v{SD2+2}, v{a1} quad_perm:[2,2,2,2] {dp}")
        sf(f"v_mul_f32 v{a0}, {f2h(-1.0/640)}, v{a0}")
        sf(f"v_add_f32_dpp v{a1}, v{SD2+3}, v{a1} quad_perm:[3,3,3,3] {dp}")
        sf(f"v_mul_f32 v{a1}, {f2h(1.0/640)}, v{a1}")
        sf(f"v_fma_f32 v{a1}, -v{a0}, v{a0}, v{a1}")
        sf(f"v_max_f32 v{a1}, 0, v{a1}")
        sf(f"v_cvt_pk_bf16_f32 v{a0}, v{a0}, v{a1}")
        sf(f"v_and_b32 v{a1}, 0xffff0000, v{a0}")
        sf(f"v_lshlrev_b32 v{a0}, 16, v{a0}")
        sf(f"v_add_f32 v{a1}, {f2h(1e-5)}, v{a1}")
        sf(f"v_cvt_pk_bf16_f32 v{a1}, v{a1}, v{a1}")
        sf(f"v_lshlrev_b32 v{a1}, 16, v{a1}")
        sf(f"v_sqrt_f32 v{a1}, v{a1}")
        sf(f"v_mov_b32 v{a3}, v{V_NON}")
        sf(f"v_cvt_pk_bf16_f32 v{a1}, v{a1}, v{a1}")
        sf(f"v_lshlrev_b32 v{a1}, 16, v{a1}")
        sf(f"v_mul_f32 v{a2}, v{a1}, v{a1}")
        sf(f"v_rcp_f32 v{a1}, v{a1}")
        sf("s_nop 0")
        sf(f"buffer_store_dwordx4 {vr(a0, 4)}, v{SA+1}, s[8:11], s{sSO} offen sc1")
    sfe = S.place(sf.L[:-1], k2[2] + 3, k2[3] + 8)
    ustat = U("stat", [M(sf.L[-1], "s", 1)], sfe + 1, 0)
    upf = UA("pgb", [PF(V_PF, S_GU, sPG, "c", 40, off=512 if typ else 256)], C["pgb"])
    M(ini, "s", 6)
    ia, ib = C["ini"][typ]
    prev = []
    for n in range(10):
        prev = [UA(f"ini{n}", ([ini[0]] if n == 8 else []) + [ini[1 + n]], ia + (ib - ia) * n / 9, after=prev, late=k2[40] - 4)]
    uini = prev
    if C["pw0"]:
        pws = [I(f"v_lshrrev_b32 v{V_PF}, 1, v2"), I(f"v_lshlrev_b32 v{V_PF}, 5, v{V_PF}"), I(f"v_and_or_b32 v{V_PF}, v2, 1, v{V_PF}"),
               I(f"v_lshlrev_b32 v{V_PF}, 7, v{V_PF}"), PF(V_PF, S_WSQ, sPW0, "c", 64)]
        upf = UA("pw0", pws, C["pw0"], after=[upf])
        upf = UA("pw1", [PF(V_PF, S_WSQ, sPW1, "c", 64)], C["pw1"], after=[upf])
    else:
        for s_ in range(15, 19): M(wsL[s_], "c", 8)
    ujf = []
    if not typ:
        jl = [I(f"s_add_u32 m0, s{sW4K}, {SPARE}")]
        jl += [I(f"buffer_load_dwordx4 v{V_X+p}, s[{S_AUX}:{S_AUX+3}], s{sPY} offen offset:{1024*p} lds") for p in range(4)]
        jt = jl[-1].tok
        ujl = UA("j3ld", tag(M(jl, "c", 8), "j3"), C["j3ld"])
        JF = 144
        jr, js = [], []
        for tI in range(4):
            for hh in range(2):
                off = 2048 * hh + (64 * ((tI >> 1) ^ hh))
                jr.append(I(f"ds_read_b64_tr_b16 {ar(JF + 4*tI + 2*hh, 2)}, v{VJ3 if tI & 1 else VJ3R} offset:{off}", need=[jt]))
        for tI in range(4):
            js.append(I(f"buffer_store_dwordx4 {ar(JF + 4*tI, 4)}, v1, s[8:11], s{sJ3D} offen offset:{1024*tI} sc1",
                        need=[jr[2*tI].tok, jr[2*tI+1].tok]))
        ujr = U("jr", jr, 0, 0, late=kg(C["j3st"]) - 12, after=[ujl])
        ujs = UA("j3st", M(js, "s", 8), C["j3st"], after=[ujr])
        ujf = [UA("j3fl", [M(flag_store(sFJ, [js[-1].tok]), "s", 1)], C["j3fl"], after=[ujs])]
    lds = [f"buffer_load_dwordx4 {vr(ST + 4*T, 4)}, v{V_ST}, s[8:11], s{sSTL} offen offset:{64*T} sc1" for T in range(2)]
    tags = [ST + 3, ST + 7]
    if typ:
        lds += [f"buffer_load_dwordx4 {vr(CSR, 4)}, v1, s[8:11], s{sCSL} offen sc1",
                f"buffer_load_dwordx4 {vr(CSR + 4, 4)}, v{VK+2}, s[8:11], s{sCSL} offen offset:1024 sc1"]
        tags += [CSR + 1, CSR + 3, CSR + 5, CSR + 7]
    sl_, sc_ = poll(lds, tag_check(tags))
    kc = K()
    RS = CSB
    if typ:
        wt_ = []
        for h in range(2):
            kc(f"ds_write2_b32 v{SA+2}, v{CSR+4*h}, v{CSR+4*h+2} offset0:{64 + 8*h} offset1:{65 + 8*h}")
        for T in range(2):
            kc(f"v_xor_b32 v{ST+4*T+3}, s{sSGN}, v{ST+4*T+1}")
            wt_.append(kc(f"ds_write2_b32 v{VK}, v{ST+4*T}, v{ST+4*T+3} offset0:{4*T} offset1:{32 + 4*T}"))
        cst = [kc(f"ds_read_b128 {vr(CSV + 4*h, 4)}, v{SA+3} offset:{256 + 16*h}") for h in range(2)]
        cst.append(kc(f"ds_read_b64 {vr(CSV + 8, 2)}, v{SA+3} offset:{256 + 32}"))
        nmt = [kc(f"ds_read_b128 {vr(NM + 4*h, 4)}, v{VK+1} offset:{16*h}") for h in range(2)]
        rst = [kc(f"ds_read_b128 {vr(RS + 4*h, 4)}, v{VK+1} offset:{128 + 16*h}") for h in range(2)]
    for T in range(2):
        r = ST + 4 * T
        kc(f"v_mul_f32 v{NMB+2*T}, 0.25, v{r}".replace("0.25", f2h(0.25)))
        kc(f"v_mul_f32 v{r+3}, v{r+1}, v{r+1}", need=wt_ if typ else [])
        kc(f"v_cvt_pk_bf16_f32 v{NMB+2*T}, v{NMB+2*T}, v{NMB+2*T}")
        kc(f"v_mul_f32 v{r+1}, {f2h(C1)}, v{r+1}")
        kc(f"v_mul_f32 v{r+3}, {f2h(0.044715)}, v{r+3}")
        kc(f"v_mov_b32 v{NMB+2*T+1}, v{NMB+2*T}")
        kc(f"v_mul_f32 v{r+3}, v{r+3}, v{r+1}")
    usl = UA("stl", M(sl_, "m", 4), C["stl"], after=[ustat])
    gk = kg(C["st_ck"][typ])
    ust = U("stck", sc_, gk - 12, 0, late=gk - 1, after=[usl])

    def epi_gu(acc, so):
        L, St = [], []
        for p in range(2):
            for T in range(2):
                o = acc + 4 * (2 * (2 * p) + T)
                c = ST + 4 * T
                for t2 in range(2):
                    g = acc + 4 * (2 * (2 * p + t2) + T)
                    u = g + 32
                    R = range(4)
                    for i in R:
                        L.append(I(f"v_mul_f32 v{TMP+i}, v{g+i}, v{g+i}"))
                        L.append(I(f"v_mul_f32 v{u+i}, v{g+i}, v{u+i}"))
                        L.append(I(f"v_fma_f32 v{TMP+i}, v{TMP+i}, v{c+3}, v{c+1}"))
                        L.append(I(f"v_mul_f32 v{g+i}, v{TMP+i}, v{g+i}"))
                    for i in R: L.append(I(f"v_exp_f32 v{g+i}, v{g+i}"))
                    for i in R: L.append(I(f"v_fma_f32 v{g+i}, v{g+i}, v{c+2}, v{c+2}"))
                    for i in R: L.append(I(f"v_rcp_f32 v{g+i}, v{g+i}"))
                    for i in R: L.append(I(f"v_mul_f32 v{u+i}, v{u+i}, v{g+i}"))
                    L.append(I(f"v_cvt_pk_bf16_f32 v{o+2*t2}, v{u}, v{u+1}"))
                    L.append(I(f"v_cvt_pk_bf16_f32 v{o+2*t2+1}, v{u+2}, v{u+3}"))
                St.append(I(f"buffer_store_dwordx4 {vr(o, 4)}, v1, s[8:11], s{so+p} offen offset:{1024*T} sc1"))
        return L, M(St, "s", 8)

    def epi_ab():
        L, St = [], []
        for t in range(10):
            o = ACCA + 8 * t
            for j in range(8):
                L.append(I(f"v_mul_f32 v{o+j}, v{o+j}, v{RS+j}", need=[rst[j // 4]]))
            for j in range(4):
                L.append(I(f"v_cvt_pk_bf16_f32 v{o+j}, v{o+2*j}, v{o+2*j+1}"))
            v, so, off = (1, sEA0, 1024 * t) if t < 4 else ((3, sEA0, 1024 * (t - 4)) if t < 8 else (1, sEA1, 1024 * (t - 8)))
            St.append(I(f"buffer_store_dwordx4 {vr(o, 4)}, v{v}, s[8:11], s{so} offen offset:{off} sc1"))
        return L, M(St, "s", 8)

    def epi_assert(g):
        for q in range(8):
            assert min(S.lastpos[34 * q:]) > g + 2 * q + 2
    xl = K()
    xt = [xl(f"buffer_load_dwordx2 {vr(XR[e], 2)}, v{V_XO}, s[{S_X}:{S_X+3}], s{sXO} offen offset:{32*e}", flags=["M:h16"]) for e in range(5)]
    U("xres", xl.L, kg(C["xres"]), kg(C["xres"] + 3))
    pl, pc = flag_poll(V_FWD, sPWD)
    pwd = [I(f"v_min_u32 v{V_PF}, 59, v2"), I(f"v_mul_u32_u24 v{V_POLL}, 205, v{V_PF}"), I(f"v_lshrrev_b32 v{V_POLL}, 10, v{V_POLL}"),
           I(f"v_mul_u32_u24 v{V_POLL}, {40960 // 128 - 5}, v{V_POLL}"), I(f"v_add_lshl_u32 v{V_PF}, v{V_PF}, v{V_POLL}, 7")]
    if C["pwd"]:
        u5 = UA("wdp", pwd + M(pl, "m", 4) + [PF(V_PF, S_WS, sPD, "m", 60)], C["wdp"], after=[upf, ust] + ujf)
    else:
        u5 = UA("wdp", M(pl, "m", 4), C["wdp"], after=[ust] + ujf)
    uwc = UA("wdck", pc, C["wdp"][typ] + C["ckd"], after=[u5])
    prev = [uwc]
    for kk in range(8):
        prev = [U(f"wd{kk}", wdL[kk], k2[20 + (20 * kk + 20 + 7) // 8], gD - 200 + kk, after=prev)]
    uwd7 = prev

    def chunks(name, L, St, a, b, n, late=None):
        out, prev = [], []
        for q in range(n):
            e_ = a + (b - a) * (q + 1) // n
            out.append((L[len(L) * q // n:len(L) * (q + 1) // n], a + (b - a) * q // n, e_))
            prev = [U(f"{name}{q}", St[len(St) * q // n:len(St) * (q + 1) // n], e_, 0, after=prev, late=late)]
        return out, prev
    if typ:
        LA, St = epi_ab()
        LA, ua = chunks("abst", LA, St, k2[19] + 5, k2[C["ab_end"]], 5)
        uaf = UA("abfl", [M(flag_store(sFA, [St[-1].tok]), "s", 1)], C["ab_flag"], after=ua)
    else:
        LA, St = epi_gu(ACCA, sEA0)
        LA, ua = chunks("hast", LA, St, gC[0] + 5, gC[1] + 2, 4, late=k2[40] - 3)
        uaf = UA("hafl", [M(flag_store(sFA, [St[-1].tok]), "s", 1)], C["ha_flag"], after=ua)
    pl, pc = flag_poll(V_FAB, sPAB)
    if C["pab"]:
        pl = pl + [PF(V_40, S_WS, sPA0, "m", 40), PF(V_40, S_WS, sPA1, "m", 40)]
    else:
        for s_ in (15, 16): M(abL[s_], "m", 8)
    u6 = UA("abp", [M(pl[0], "m", 1)] + pl[1:], C["abp"], after=[uwc] + ([uaf] if typ else []))
    uac = UA("abck", pc, C["abp"] + C["ckd"], after=[u6])
    pw_, pa_ = prevD, [uac]
    for s_ in range(15, 31):
        pw_ = [U(f"ws{s_}", wsL[s_], bar[s_ - 3] + 1, bar[s_] - DL - 1, after=pw_)]
        pa_ = [U(f"ab{s_}", abL[s_], bar[s_ - 3] + 1, bar[s_] - DL, after=pa_ + pw_)]
    e0 = C["epb_end"]
    LB, St = epi_gu(ACCB, sEB0)
    LB, ub = chunks("hbst", LB, St, gC[1] + 5, k2[e0], 4)
    ubf = UA("hbfl", [M(flag_store(sFB, [St[-1].tok]), "s", 1)], C["hb_flag"], after=ub + uini)
    pl, pc0 = flag_poll(V_FH, sPH)
    u8 = UA("hp0", M(pl, "m", 1) + ([PF(V_40, S_WS, sPE, "m", 40, late=True)] if C["ph0"] else []), C["hp0"], after=[uac, uaf])
    uh0 = [UA("h0ck", pc0, C["hp0"] + C["ckd"], after=[u8])]
    prev = uh0 + ub
    for kk in range(4):
        prev = [U(f"h{kk}", hL[kk], 0, gD - 100 + 20 * kk, after=prev)]
    mi = K()
    mi(f"v_and_b32 v{TMP+4}, 15, v2")
    mi(f"v_lshrrev_b32 v{TMP+5}, 4, v2")
    mi(f"v_lshlrev_b32 v{TMP+5}, 2, v{TMP+5}")
    mi(f"v_sub_u32 v{TMP+4}, v{TMP+4}, v{TMP+5}")
    mi(f"v_lshlrev_b32 v{TMP+5}, 4, v{TMP+4}")
    mi(f"v_mov_b32 v{TMP+6}, 0x3f80")
    mi(f"v_lshlrev_b32 v{TMP+5}, v{TMP+5}, v{TMP+6}")
    mi(f"v_lshrrev_b32 v{TMP+4}, 1, v{TMP+4}")
    for r in (0, 1, 4, 5):
        mi(f"v_mov_b32 v{SEL+r}, 0")
    for d in range(2):
        mi.L.append([I(f"v_cmp_eq_u32 vcc, {d}, v{TMP+4}"), I(f"v_cndmask_b32 v{SEL+2+d}, 0, v{TMP+5}, vcc")])
    mi.L.append([I("s_bitcmp1_b32 s3, 0"), I("s_cselect_b64 vcc, -1, 0")] +
                [I(f"v_cndmask_b32 v{SEL+6+i}, v{SEL+2+i}, v{SEL+i}, vcc") for i in range(4)])
    for j in range(4):
        mi(f"s_add_u32 s{sH8+j}, s{sHB}, {4096*(8+j)}")
    pl, pc = flag_poll(V_FH2, sPH)
    u9 = UA("hp", [I(f"v_lshlrev_b32 v{V_FAB}, 7, v2")] + M(pl, "m", 1) + ([PF(V_FAB, S_WS, sPL, "m", 64, late=True)] if C["ph1"] else []),
            C["hp"], after=uh0 + [ubf])
    uhc = UA("hck", pc, C["hp"] + C["ckd"], late=gD + 38, after=[u9])
    prev = prev + [uhc]
    for kk in range(4, 8):
        prev = [U(f"h{kk}", hL[kk], gD + 20 * (kk - 5) if kk >= 6 else 0, gD - DL + 20 * kk, after=prev)]
    for t in range(4):
        prev = [U(f"ht{t}", htL[t], gD + (60, 80, 80, 100)[t], gT[t] - DL, after=prev)]
    prev = uwd7
    for kk in range(8, 12):
        prev = [U(f"wd{kk}", wdS[kk][0], bar[28 + (kk - 8) // 2] + 1, gD + 10 + kk, after=prev)]
    xu = K()
    for e in range(5):
        b = XU + 4 * e
        xu(f"v_lshlrev_b32 v{b}, 16, v{XR[e]}", need=[xt[e]])
        xu(f"v_and_b32 v{b+1}, 0xffff0000, v{XR[e]}")
        xu(f"v_lshlrev_b32 v{b+2}, 16, v{XR[e]+1}")
        xu(f"v_and_b32 v{b+3}, 0xffff0000, v{XR[e]+1}")

    pub = K()
    units = [(ACCA + 4 * (5 * tt + 2 * h), ACCA + 4 * (5 * tt + 2 * h + 1)) for tt in range(4) for h in range(2)]
    units += [(ACCA + 4 * (10 * p + 4), ACCA + 4 * (10 * p + 9)) for p in range(2)]
    pub(f"s_add_u32 s{sYT}, s{sYPUB}, 8192")
    for u, (a, b) in enumerate(units):
        pub(f"v_cvt_pk_bf16_f32 v{a}, v{a}, v{a+1}")
        pub(f"v_cvt_pk_bf16_f32 v{a+1}, v{a+2}, v{a+3}")
        pub(f"v_cvt_pk_bf16_f32 v{a+2}, v{b}, v{b+1}")
        pub(f"v_cvt_pk_bf16_f32 v{a+3}, v{b+2}, v{b+3}")
        v, so, off = (1, sYPUB, 1024 * u) if u < 4 else ((3, sYPUB, 1024 * (u - 4)) if u < 8 else (1, sYT, 1024 * (u - 8)))
        pub(f"buffer_store_dwordx4 {vr(a, 4)}, v{v}, s[8:11], s{so} offen offset:{off} sc1", flags=["M:s6"])
        ow = pub(f"ds_write_b128 v{V_CR+1}, {vr(a, 4)} offset:{OWQ + 1024*u}")
    tag(pub.L, "pub")
    gB = gD + 40
    up = U("pub", pub.L, gD + 1, 0, late=gB - 1)
    S.put(gB, [I("s_barrier", need=[ow])])
    U("lead", [M(flag_store(sLEAD, []), "h", 1)], gB + 1, gEnd)
    U("gat", M(gat, "m", 8), gD + C["gat"], 0, after=[up])
    S.place(gown + wdS[8][1] + wdS[9][1], gD + 100, gD + 130, cap=4)
    S.place(wdS[10][1] + wdS[11][1], gD + 130, gD + 150, cap=4)
    wl = None
    for t in range(3):
        W = [I(f"ds_write_b128 v{V_DW+t}, {dacc(t, e)} offset:{XCH + 5120*t + 1024*e}") for e in range(5)]
        S.place(W, gT[t + 1] + 1, gT[t + 1] + 12, cap=4)
        wl = W[-1].tok
    rr = {}
    R = [I("s_barrier", need=[wl])]
    for e in range(5):
        for j in range(3):
            R.append(I(f"ds_read_b128 {vr(RED + 12*e + 4*j, 4)}, v{V_DW+3} offset:{XCH + 5120*j + 1024*e}"))
            rr[e, j] = R[-1].tok
    S.place(R, gT[3] + 12, gT["ysum"])
    fin = K()
    P2 = lambda r: vr(r, 2)
    fin(f"s_mov_b32 s{sT0}, {f2h(-L2E)}")
    fin(f"s_mov_b32 s{sT1}, {f2h(-L2E)}")
    fin(f"s_mov_b32 s{sT2}, 1.0")
    fin(f"s_mov_b32 s{sT3}, 1.0")
    S.place(fin.L, gT[3], gT[3] + 12)
    fin = K()
    for e in range(5):
        b, d = RED + 12 * e, OWN + 4 * e
        for i in (0, 2): fin(f"v_pk_add_f32 {P2(b+i)}, {P2(b+i)}, {P2(b+4+i)}", need=[rr[e, 0], rr[e, 1]])
        for i in (0, 2): fin(f"v_pk_add_f32 {P2(d+i)}, {P2(d+i)}, {P2(b+8+i)}", need=[rr[e, 2]])
        for i in (0, 2): fin(f"v_pk_add_f32 {P2(d+i)}, {P2(d+i)}, {P2(b+i)}")
        for i in (0, 2): fin(f"v_pk_mul_f32 {P2(b+i)}, {P2(d+i)}, s[{sT0}:{sT1}]")
        for i in range(4): fin(f"v_exp_f32 v{b+i}, v{b+i}")
    for e in range(5):
        b, d = RED + 12 * e, OWN + 4 * e
        for i in (0, 2): fin(f"v_pk_add_f32 {P2(b+i)}, {P2(b+i)}, s[{sT2}:{sT3}]")
        for i in range(4): fin(f"v_rcp_f32 v{b+i}, v{b+i}")
    for e in range(5):
        b, d = RED + 12 * e, OWN + 4 * e
        for i in (0, 2): fin(f"v_pk_mul_f32 {P2(d+i)}, {P2(d+i)}, {P2(b+i)}")
    S.put(gT["ysum"], fin.L + gck)
    pipe = Pipe(C["ch"], C["W"], C["Q"], C["lat"])
    t = 600.0
    for i_ in [PF(V_40, S_X, 0, "c", 40), PF(V_40, S_X, 0, "c", 40)] + P.L + pre:
        for k_ in i_.need:
            if k_.cls == "vm": t = max(t, pipe.done[id(k_)])
        t = pipe.issue(i_, t) + 5 if i_.kind == "vm" else t + 5
    times = place_units(S, pipe, t, UN, tm=C["tm"])
    if C["show"]:
        print(pf, "model", " ".join(f"k{k}:{times[k2[k]]/1e3:.2f}" for k in range(0, 73, 4)), f"end:{times[gEnd]/1e3:.2f}")
        print("  ", " ".join(f"{u.name}:{kof(u.pos[0])}-{kof(u.pos[-1])}" for u in sorted(UN, key=lambda u: u.pos[0])))
    un = {u.name: u for u in UN}
    S.place(kc.L, gk, gk + (20 if typ else 22))
    if typ:
        k0 = int(C["st_ck"][1]) + 1
        nk = 19 - k0
        tiles = list(range(20))
        for kq in range(nk):
            mine = tiles[kq::nk]
            for idx in mine:
                t, T = divmod(idx, 2)
                L = [I(f"v_fmac_f32 v{ACCA + 4*idx + i}, v{NM + 4*T + i}, v{CSV + t}", need=[nmt[T], cst[t // 4]]) for i in range(4)]
                g = k2[k0 + kq]
                if idx < 10:
                    S.place(L, g + idx + 5, g + min(idx + 14, 20))
                else:
                    S.place(L, g + max(idx - 13, 1), g + idx - 2)
        for q, (L, a, b) in enumerate(LA):
            info[f"A{q}"] = place_dag(S, L, a, b, window=6)
            for t in range(2):
                assert min(S.lastpos[12 * t:]) > k2[19] + 2 * (2 * q + t) + 2
    else:
        assert gk + 22 <= gC[0]
        for q, (L, a, b) in enumerate(LA):
            info[f"A{q}"] = place_dag(S, L, a, b, window=C["win"])
            assert min(S.lastpos[34:]) > gC[0] + 4
    for q, (L, a, b) in enumerate(LB):
        info[f"B{q}"] = place_dag(S, L, a, b, window=C["win"])
        assert min(S.lastpos[34:]) > gC[1] + 4
    S.place(mi.L + xu.L + [I(f"v_add_u32 v{V_CR+1}, s{sRF}, v1")], k2[e0], k2[e0 + 6])
    sg = [I(f"v_add_u32 v{V_S0}, s{sW4K}, v1"), I(f"v_add_u32 v{V_S0+1}, {3*SLOT}, v{V_S0}")]
    S.place(sg, un["ws30"].pos[-1] + 1, gD + 90)
    for e in range(5):
        fin2 = K()
        d, y, x = OWN + 4 * e, Y + 4 * e, XU + 4 * e
        for i in range(4): fin2(f"v_fma_f32 v{d+i}, v{d+i}, v{y+i}, v{x+i}")
        fin2(f"v_cvt_pk_bf16_f32 v{d}, v{d}, v{d+1}")
        fin2(f"v_cvt_pk_bf16_f32 v{d+1}, v{d+2}, v{d+3}")
        fin2(f"buffer_store_dwordx2 {vr(d, 2)}, v{V_XO}, s[{S_OUT}:{S_OUT+3}], s{sXO} offen offset:{32*e}")
        a = min(gT["ysum"] + 4 * e + 6, gEnd)
        S.place(fin2.L, a, min(a + 4, gEnd + 1))
    pts = [(k2[k], f"k{k}") for k in range(0, 72, CFG["tsk"])] + [(gD + 20 * i, f"d{i}") for i in range(13)] + [(gT["ysum"] + 1, "ys"), (gEnd, "end")]
    for g, nm in pts:
        n = 1 if g < gD else 0
        S.gap[g] = S.gap[g][:n] + ST_(nm) + S.gap[g][n:]
    info = {k: v[1] for k, v in info.items()}
    info.update(A=S.est_cycles(0, k2[20]), B=S.est_cycles(k2[20], k2[40]), y=S.est_cycles(k2[40], gD), d=S.est_cycles(gD, gEnd),
                tail=S.used[gEnd], nm=gEnd)
    body, names = expand_stamps(P.L + pre + S.flat(), 2)
    body += stamp_end(len(names) + 2) + [I("s_endpgm")]
    if CFG["TS"]:
        body.append(I(f"; NAMES{typ} start karg " + " ".join(names) + " fin"))
    fin_ = finalize(body)
    check(fin_)
    return fin_ + slow, info


def check(L):
    pend = {"vm": [], "lgkm": []}
    lastw = {}
    owner = {}
    for n, ins in enumerate(L):
        if ins.kind in ("label", "meta"):
            continue
        if ins.text.startswith("s_waitcnt"):
            for c, nm in (("vm", "vmcnt"), ("lgkm", "lgkmcnt")):
                m = re.search(nm + r"\((\d+)\)", ins.text)
                if m:
                    k = int(m.group(1))
                    pend[c] = pend[c][len(pend[c]) - k:] if k < len(pend[c]) else pend[c]
                    if k == 0: pend[c] = []
            continue
        touched = ins.rd | ins.wr
        for c in pend:
            for p in pend[c]:
                if p.wr & touched and not ("pf" in p.flags and "pf" in ins.flags):
                    raise SystemExit(f"PENDING hazard at {n}: {ins.text}  <- {p.text}")
        for t in ins.need:
            o = owner.get(id(t))
            if o is not None:
                for r in o.wr & ins.rd:
                    if lastw.get(r) is not o:
                        raise SystemExit(f"CLOBBER at {n}: {ins.text} expects {o.text} but last writer {lastw[r].text}")
        st = [f for f in ins.flags if f.startswith("S:")]
        if st and ins.kind == "vm":
            for r in ins.rd:
                if (r == ("x", "m0") or r in (("s", sWDT), ("s", sHT), ("s", sYT))) and r in lastw:
                    st2 = [f for f in lastw[r].flags if f.startswith("S:")]
                    if st2 != st:
                        raise SystemExit(f"STREAM clash at {n}: {ins.text} {st} vs {lastw[r].text} {st2}")
        if ins.tok is not None and ins.tok.cls in pend:
            pend[ins.tok.cls].append(ins)
            owner[id(ins.tok)] = ins
            assert len(pend["vm"]) <= 63, f"vm overflow at {n}"
        for r in ins.wr:
            lastw[r] = ins


def build(path, verbose=True):
    lab = NAME + "_kernel"
    s = f"; generated by work/gen5.py mix={int(CFG['mix'])}\n; @launch grid=(256,1,1) block=(256,1,1) lds=163840\n"
    s += '.amdgcn_target "amdgcn-amd-amdhsa--gfx950"\n.text\n'
    s += f".globl {lab}\n.p2align 8\n.type {lab},@function\n{lab}:\n" + text(gen_head())
    for typ in (0, 1):
        L, info = gen_prog(typ)
        if verbose:
            nn = sum(1 for i in L if i.text.startswith("s_nop"))
            nw = sum(1 for i in L if i.text.startswith("s_waitcnt"))
            print("EO"[typ], info, "instrs", len(L), "nops", nn, "waits", nw)
        s += text(L)
    s += "L_end:\n  s_endpgm\n"
    s += '.section .rodata,"a"\n.p2align 6\n'
    s += (f".amdhsa_kernel {lab}\n  .amdhsa_next_free_vgpr 512\n  .amdhsa_next_free_sgpr 102\n  .amdhsa_accum_offset 256\n"
          "  .amdhsa_group_segment_fixed_size 0\n  .amdhsa_kernarg_size 96\n  .amdhsa_user_sgpr_count 2\n"
          "  .amdhsa_user_sgpr_kernarg_segment_ptr 1\n  .amdhsa_system_sgpr_workgroup_id_x 1\n.end_amdhsa_kernel\n")
    open(path, "w").write(s)


if __name__ == "__main__":
    for a in sys.argv[2:]:
        if a == "ts":
            CFG["TS"] = True
        else:
            k, v = a.split("=", 1)
            CFG[k] = eval(v)
    build(sys.argv[1] if len(sys.argv) > 1 else "v5.s")
```

```python
import sys, struct, re
sys.path.insert(0, "work")
from asmlib import *

NAME = "recurrent_scan__spectral_fnet__glu_gated_geglu__prompt"
W0, RF, STAT, CSD = 0, 0x1000, 0x8000, 0x10000
ABF, HF, WDF = 0x40000, 0x60000, 0x50000
WD, ABT, HH, YP, TSB, WS_SIZE = 0x100000, 0x300000, 0x800000, 0xE00000, 0x1900000, 0x1A00000
OOB = 0x7ff00000
SLOT = 36864
SPARE = 4 * SLOT
C1 = -2.0 * 0.7978845608028654 * 1.4426950408889634
L2E = 1.4426950408889634
MF = "v_mfma_f32_16x16x32_bf16"

MF16 = "v_mfma_f32_16x16x16_bf16"
CFG = dict(TS=False, nt_x="", nt_w="", nt_ws="", FS=2, rdsp=True, win=60, tsk=1, show=False, mix=True,
           ch=9.0, W=64, Q=2, lat=dict(h=400, m=900, c=1500, s=700), tm=22.0, dl=30,
           px=True, pgb=(4, 4), j3ld=2, j3st=6, j3fl=10, ini=((4, 38), (4, 38)), stl=(15, 11), st_ck=(18.5, 14),
           pw0=None, pw1=(24, 16), wdp=(21, 21), pwd=False, ckd=2.5, ab_end=24, ab_flag=27.5, abp=31, pab=False,
           ha_flag=43, epb_end=57, hp0=53, ph0=False, hb_flag=60, hp=65.5, ph1=True, gat=150, xres=19.5,
           rotd=True, ntf_ws=0, nt_pf=' sc1', nt_px=' sc1', nt_j3=' nt', wsoff=0, rotw=True, wdm=(0, 4), hm=(0, 4, 5))


def f2h(f):
    return hex(struct.unpack("<I", struct.pack("<f", f))[0])


S_AUX, S_WS, S_X, S_GU, S_WA, S_WSQ, S_OUT = 4, 8, 12, 40, 44, 48, 52
sXQ, sRB, sCG, sCB4, sT64, sEB8, sB32, sKS4 = 56, 57, 58, 59, 60, 61, 62, 63
sNON, sSPIN, sW4K, sW5K, sSX, sSW, sSWS, sSWB = 64, 65, 66, 67, 68, 69, 70, 71
sAB = 72
sHB, sWDB, sYPUB, sYGA, sXO, sWDT, sHT, sYT = 76, 77, 78, 79, 80, 81, 82, 83
sU0, sU1 = 100, 101
sT0, sT1, sT2, sT3 = 16, 17, 18, 19
sSO, sSTL, sCSL, sEA0, sEA1, sEB0, sEB1, sFA, sFB = 21, 22, 23, 24, 25, 26, 27, 28, 29
sPAB, sPH, sPWD, sPY, sFY, sJ3D, sFJ, sRF, sLEAD, sSGN = 30, 31, 32, 33, 34, 35, 36, 37, 38, 39
sPG, sPW0, sPW1, sPD, sPA0, sPA1, sPE, sPL, sG1, sG2, sG3 = 88, 89, 90, 91, 92, 93, 94, 95, 96, 97, 99
sRE, sRL = sPW0, sPW1
sC1 = 76
sB0 = 98
sH8 = 4
STS = 84

V_G = 0
V_X, V_GU, V_WD, R_X, R_WD, R_GU = 4, 8, 12, 18, 22, 26
VJ3R, VJ3 = 12, 13
OWN, XU = 4, 24
V_WS, R_WS, R_AB, V_AB = 44, 48, 52, 54
ST, ONES, SEL = 56, 64, 56
V_CA, V_CR, V_NON, V_L0, V_POLL, V_XO, V_ST, V_H, TMP = 68, 69, 71, 72, 73, 74, 75, 76, 80
V_FAB, V_FH, V_FWD, V_FH2, V_DW = 88, 89, 90, 91, 92
V_PF, INI, NMB, V_S0 = 42, 252, 64, 44
V_40, V_D0, V_D1 = 17, 43, 69
XR = [4, 6, 12, 14, 18]
ACCA, ACCB, CSB = 96, 176, 240
FB = 160
ACS = 240
OWQ = SLOT
XCH = SLOT + 10240
STG = [3 * SLOT, 3 * SLOT + 16384, 0, 16384]
STG4 = 3 * SLOT + 32768


def srd(dst, lo, nbytes):
    return [I(f"s_mov_b32 s{dst}, s{lo}"), I(f"s_and_b32 s{dst+1}, s{lo+1}, 0xffff"),
            I(f"s_mov_b32 s{dst+2}, {hex(nbytes)}"), I(f"s_mov_b32 s{dst+3}, 0x20000")]


def srd_sel(dst, lo0, lo1, nbytes):
    return [I(f"s_cselect_b32 s{dst}, s{lo1}, s{lo0}"), I(f"s_cselect_b32 s{dst+1}, s{lo1+1}, s{lo0+1}"),
            I(f"s_and_b32 s{dst+1}, s{dst+1}, 0xffff"), I(f"s_mov_b32 s{dst+2}, {hex(nbytes)}"), I(f"s_mov_b32 s{dst+3}, 0x20000")]


class K:
    def __init__(self):
        self.L = []

    def __call__(self, t, need=(), **kw):
        i = I(t, need=need, **kw)
        self.L.append(i)
        return i.tok

    def ext(self, l):
        self.L.extend(l)


V_TS = 87
V_TS2 = 68


def stamp(i):
    if not CFG["TS"]:
        return []
    L = [I("s_waitcnt lgkmcnt(0)")]
    if i > 0:
        L.append(I(f"v_writelane_b32 v{V_TS if i - 1 < 64 else V_TS2}, s{STS + 2*((i-1) & 1)}, {(i-1) & 63}"))
    L.append(I(f"s_memrealtime s[{STS+2*(i & 1)}:{STS+2*(i & 1)+1}]"))
    return [L]


def ST_(name):
    return [I(f"; STAMP {name}")] if CFG["TS"] else []


def expand_stamps(L, n0):
    out, names = [], []
    for i in L:
        if i.text.startswith("; STAMP"):
            out += flat1(stamp(n0 + len(names)))
            names.append(i.text.split()[2])
        else:
            out.append(i)
    return out, names


def flat1(l):
    return [x for it in l for x in (it if isinstance(it, (list, tuple)) else [it])]


def stamp_end(n):
    if not CFG["TS"]:
        return []
    L = [I("s_waitcnt vmcnt(0)")] + flat1(stamp(n)) + flat1(stamp(n + 1))
    L += [I(f"v_writelane_b32 v{V_TS2}, s{sSPIN}, 63"), I(f"s_mov_b32 s16, {n + 1}"), I(f"v_writelane_b32 v{V_TS2}, s16, 62"),
          I("s_lshl_b32 s16, s2, 2"), I("s_add_u32 s16, s16, s3"), I("s_lshl_b32 s16, s16, 9"), I(f"s_add_u32 s16, s16, {hex(TSB)}"),
          I("v_lshlrev_b32 v1, 2, v2"),
          I(f"buffer_store_dword v{V_TS}, v1, s[8:11], s16 offen"),
          I(f"buffer_store_dword v{V_TS2}, v1, s[8:11], s16 offen offset:256"), I("s_waitcnt vmcnt(0) lgkmcnt(0)")]
    return L


T0, T1, T2, T3 = TMP, TMP + 1, TMP + 2, TMP + 3
SF, SD1, SD2, SA = ACCB, ACCB + 20, ACCB + 24, ACCB + 28
CSR, CSV, NM, VK = ACCB + 32, ACCB + 40, ACCB + 52, ACCB + 60


def gen_head():
    P = K()
    P.ext(flat1(stamp(0)))
    P("s_load_dwordx16 s[16:31], s[0:1], 0")
    P("s_load_dwordx8 s[32:39], s[0:1], 64")
    P("v_lshrrev_b32 v1, 6, v0")
    P("v_and_b32 v2, 63, v0")
    P("v_readfirstlane_b32 s3, v1")
    P("s_cmp_ge_u32 s2, 256")
    P("s_cbranch_scc1 L_end")
    P(f"s_bfe_u32 s{sXQ}, s2, 0x10002")
    P(f"s_bfe_u32 s{sRB}, s2, 0x30003")
    P(f"s_and_b32 s{sU0}, s2, 1")
    P(f"s_lshl3_add_u32 s{sRB}, s{sU0}, s{sRB}")
    P(f"s_lshr_b32 s{sCB4}, s2, 6")
    P(f"s_bfe_u32 s{sKS4}, s2, 0x20001")
    if CFG["mix"]:
        P(f"s_lshr_b32 s{sCG}, s2, 7")
        P(f"s_lshl1_add_u32 s{sCG}, s{sKS4}, s{sCG}")
    else:
        P(f"s_lshl2_add_u32 s{sCG}, s{sXQ}, s{sCB4}")
    P(f"s_and_b32 s{sC1}, s{sCG}, 3")
    P(f"s_lshr_b32 s{sB0}, s{sCG}, 1")
    P(f"s_lshl2_add_u32 s{sB0}, s{sB0}, s{sCG}")
    P(f"s_lshl1_add_u32 s{sT64}, s{sRB}, s{sXQ}")
    P(f"s_and_b32 s{sEB8}, s{sKS4}, 1")
    P(f"s_lshl1_add_u32 s{sEB8}, s{sCB4}, s{sEB8}")
    P(f"s_mov_b32 s{sSPIN}, 30000")
    P(f"s_lshl_b32 s{sW4K}, s3, 12")
    P(f"s_mul_i32 s{sW5K}, s3, 5120")
    P(f"s_lshl2_add_u32 s{sB32}, s{sRB}, s3")
    P(f"s_mul_i32 s{sSX}, s{sB32}, {32*1280}")
    P(f"s_and_b32 s{sU0}, s3, 1")
    P(f"s_mul_i32 s{sSWB}, s{sU0}, {32*3072}")
    P(f"s_lshl_b32 s{sU0}, s{sU0}, 6")
    P("v_lshlrev_b32 v1, 4, v2")
    P("v_add_u32 v3, 0x1000, v1")
    P(f"v_bfe_u32 v{T1}, v2, 4, 1")
    P(f"v_lshlrev_b32 v{T1}, 1, v{T1}")
    P(f"v_and_b32 v{T2}, 7, v2")
    P(f"v_xor_b32 v{T1}, v{T1}, v{T2}")
    P(f"v_lshlrev_b32 v{T1}, 4, v{T1}")
    P(f"v_lshrrev_b32 v{T0}, 3, v2")
    P(f"v_mul_u32_u24 v{V_X}, 1280, v{T0}")
    P(f"v_add_u32 v{V_X}, v{V_X}, v{T1}")
    P(f"v_add_u32 v{V_X+1}, {8*1280-1024}, v{V_X}")
    P(f"v_xor_b32 v{T2}, 64, v{V_X}")
    P(f"v_add_u32 v{V_X+2}, {2*(8*1280-1024)}, v{T2}")
    P(f"v_add_u32 v{V_X+3}, {3*(8*1280-1024)}, v{T2}")
    P(f"v_mul_u32_u24 v{V_GU}, 3072, v{T0}")
    P(f"v_add_u32 v{V_GU}, v{V_GU}, v{T1}")
    P(f"v_xor_b32 v{T3}, 64, v{V_GU}")
    P(f"v_add_u32 v{V_GU+1}, {8*3072-1024}, v{T3}")
    P(f"v_add_u32 v{V_GU+2}, {2*(8*3072-1024)}, v{V_GU}")
    P(f"v_add_u32 v{V_GU+3}, {3*(8*3072-1024)}, v{T3}")
    P(f"v_xor_b32 v{V_WD}, s{sU0}, v{V_X}")
    P(f"v_xor_b32 v{T3}, 64, v{V_WD}")
    P(f"v_add_u32 v{V_WD+1}, {8*1280-1024}, v{T3}")
    P(f"v_add_u32 v{V_WD+2}, {2*(8*1280-1024)}, v{V_WD}")
    P(f"v_add_u32 v{V_WD+3}, {3*(8*1280-1024)}, v{T3}")
    P(f"v_add_u32 v{V_WD+4}, {4*8*1280}, v{V_WD}")
    P(f"v_lshl_add_u32 v{V_WS}, v{T0}, 12, v{T1}")
    P(f"v_bfe_u32 v{T2}, v2, 2, 2")
    P(f"v_and_b32 v{T3}, 3, v2")
    P(f"v_lshrrev_b32 v{T1}, 4, v2")
    P(f"v_mul_u32_u24 v{SA}, 1280, v{T2}")
    P(f"v_lshl_add_u32 v{SA}, v{T3}, 6, v{SA}")
    P(f"v_lshl_add_u32 v{SA}, v{T1}, 4, v{SA}")
    P(f"v_min_u32 v{V_40}, 39, v2")
    P(f"v_lshlrev_b32 v{V_40}, 7, v{V_40}")
    P(f"s_lshl2_add_u32 s{sU1}, s{sRB}, s{sCB4}")
    P(f"s_lshl2_add_u32 s{sU1}, s{sU1}, s3")
    P(f"s_mul_i32 s{sU1}, s{sU1}, {8*1280}")
    P(f"s_add_u32 s{sHT}, s{sU1}, 5120")
    P(f"s_and_b32 s{sPD}, s{sRB}, 7")
    P(f"s_and_b32 s{sPG}, s3, 1")
    P(f"s_lshl1_add_u32 s{sPG}, s{sPD}, s{sPG}")
    P(f"s_mul_i32 s{sPG}, s{sPG}, 3072")
    P(f"s_lshl_b32 s{sYT}, s{sB0}, 7")
    P(f"s_add_u32 s{sPG}, s{sPG}, s{sYT}")
    P(f"s_lshl3_add_u32 s{sYT}, s{sC1}, s{sPD}")
    P(f"s_lshl2_add_u32 s{sYT}, s{sYT}, s3")
    P(f"s_mul_i32 s{sYT}, s{sYT}, {5*1280}")
    P(f"v_mul_u32_u24 v{V_PF}, 384, v{V_40}")
    P(f"v_min_u32 v{V_POLL}, 49, v2")
    P(f"v_lshlrev_b32 v{V_POLL}, 7, v{V_POLL}")
    P("s_waitcnt lgkmcnt(0)")
    P.ext(flat1(stamp(1)))
    P.ext(srd(S_X, 16, 2048 * 1280))
    if CFG["px"]:
        P(f"buffer_load_dword v{V_D0}, v{V_40}, s[{S_X}:{S_X+3}], s{sU1} offen{CFG['nt_px']}")
        P(f"buffer_load_dword v{V_D0}, v{V_40}, s[{S_X}:{S_X+3}], s{sHT} offen{CFG['nt_px']}")
    if CFG["wsoff"]:
        P(f"s_add_u32 s38, s38, {hex(CFG['wsoff'])}")
        P("s_addc_u32 s39, s39, 0")
    P.ext(srd(S_WS, 38, WS_SIZE))
    P(f"s_bitcmp1_b32 s2, {6 if CFG['mix'] else 1}")
    P("s_cbranch_scc1 O_prog")
    return finalize(P.L)


def gen_prog(typ):
    pf = "O" if typ else "E"
    INI = 252 if typ else 164
    P = K()
    slow = []
    ntx, ntw, ntws = CFG["nt_x"], CFG["nt_w"], CFG["nt_ws"]

    def tag(L, name):
        for i in flat1(L):
            i.flags.add("S:" + name)
        return L

    dma_tok = {}

    def dma_x(s):
        L = [I(f"s_add_u32 m0, s{sW4K}, {(s % 4)*SLOT}")]
        for p in range(4):
            L.append(I(f"buffer_load_dwordx4 v{V_X+p}, s[{S_X}:{S_X+3}], s{sSX} offen offset:{1024*p}{ntx} lds"))
        L.append(I(f"s_add_u32 s{sSX}, s{sSX}, 128"))
        return L

    def dma_gu(lds, sreg):
        L = [I(f"s_add_u32 m0, s{sW4K}, {lds}")]
        for p in range(4):
            L.append(I(f"buffer_load_dwordx4 v{V_GU+p}, s[{S_GU}:{S_GU+3}], s{sreg} offen offset:{1024*p}{ntw} lds"))
        L.append(I(f"s_add_u32 s{sreg}, s{sreg}, {64*3072}"))
        return L

    def dma_wd(s):
        b = (s % 4) * SLOT + 16384
        L = [I(f"s_add_u32 m0, s{sW5K}, {b}")]
        for p in range(4):
            L.append(I(f"buffer_load_dwordx4 v{V_WD+p}, s[{S_WA}:{S_WA+3}], s{sSW} offen offset:{1024*p}{ntw} lds"))
        L.append(I(f"s_add_u32 m0, s{sW5K}, {b + 4096}"))
        L.append(I(f"buffer_load_dwordx4 v{V_WD+4}, s[{S_WA}:{S_WA+3}], s{sSW} offen{ntw} lds"))
        L.append(I(f"s_add_u32 s{sSW}, s{sSW}, 128"))
        return L

    def last_vm(L):
        return [i for i in L if i.kind == "vm"][-1].tok

    def dma_stage(s):
        if s < 10:
            L = dma_x(s) + (dma_wd(s) if typ else dma_gu((s % 4) * SLOT + 16384, sSW))
        else:
            L = dma_gu((s % 4) * SLOT, sSWB) + dma_gu((s % 4) * SLOT + 16384, sSWB)
        dma_tok[s] = last_vm(L)
        return tag(L, f"dma{s}")

    def dma_ws(s):
        L = [I(f"s_add_u32 m0, s{sW4K}, {(s % 4)*SLOT}"), I(f"s_mul_i32 s{sAB + s % 4}, s{sSWS}, 160")]
        for p in range(4):
            L.append(I(f"buffer_load_dwordx4 v{V_WS+p}, s[{S_WSQ}:{S_WSQ+3}], s{sSWS} offen offset:{1024*p}{' nt' if s - 15 < CFG['ntf_ws'] else ntws} lds"))
        L.append(I(f"s_add_u32 s{sSWS}, s{sSWS}, 128"))
        L.append(I(f"s_and_b32 s{sSWS}, s{sSWS}, 0x7ff"))
        return tag(L, f"ws{s}")

    def dma_ab(s):
        b = (s % 4) * SLOT + 16384
        L = [I(f"s_add_u32 m0, s{sW5K}, {b}")]
        for p in range(4):
            L.append(I(f"buffer_load_dwordx4 v{V_AB}, s[8:11], s{sAB + s % 4} offen offset:{1024*p} sc1 lds"))
        L.append(I(f"s_add_u32 m0, s{sW5K}, {b + 4096}"))
        L.append(I(f"buffer_load_dwordx4 v{V_AB+1}, s[8:11], s{sAB + s % 4} offen sc1 lds"))
        dma_tok[s] = L[-1].tok
        return tag(L, f"ab{s}")

    npoll = [0]

    def poll(loads, check):
        k = npoll[0]; npoll[0] += 1
        li = [I(t) for t in loads]
        toks = [i.tok for i in li if i.tok is not None]
        chk = check(toks)
        grp = [chk[-1], I(f"s_cbranch_vccnz {pf}_slow{k}"), I(f"{pf}_ok{k}:")]
        S_ = [I(f"{pf}_slow{k}:")] + [I(t) for t in loads] + [I("s_waitcnt vmcnt(0)")] + check([])
        S_ += [I(f"s_cbranch_vccz {pf}_ok{k}"), I(f"s_sub_u32 s{sSPIN}, s{sSPIN}, 1"), I(f"s_cmp_gt_i32 s{sSPIN}, 0"),
               I(f"s_cbranch_scc1 {pf}_slow{k}"), I(f"s_branch {pf}_ok{k}")]
        slow.extend(finalize(S_))
        return li, chk[:-1] + [grp]

    def flag_poll(voff, soff):
        return poll([f"buffer_load_dword v{V_POLL}, v{voff}, s[8:11], s{soff} offen sc1"],
                    lambda need: [I(f"v_cmp_ne_u32 vcc, s{sNON}, v{V_POLL}", need=need)])

    def tag_check(regs):
        def chk(need):
            L = [I(f"v_xor_b32 v{V_POLL}, s{sNON}, v{regs[0]}", need=need)]
            for r in regs[1:]:
                L.append(I(f"v_xad_u32 v{V_POLL}, v{r}, s{sNON}, v{V_POLL}"))
            L.append(I(f"v_cmp_ne_u32 vcc, 0, v{V_POLL}"))
            return L
        return chk

    def flag_store(sreg, need):
        return I(f"buffer_store_dword v{V_NON}, v{V_L0}, s[8:11], s{sreg} offen sc1", need=need)

    def PF(voff, srd_, soff, kind, lines, off=0, late=False):
        return M(I(f"buffer_load_dword v{V_D1 if late else V_D0}, v{voff}, s[{srd_}:{srd_+3}], s{soff} offen offset:{off}{CFG['nt_pf'] if kind == 'c' else ' sc1'}",
                   flags=["pf"]), kind, lines)
    P(f"{pf}_prog:")
    if typ:
        P(f"s_cmp_eq_u32 s{sXQ}, 1")
        P.ext(srd_sel(S_WA, 22, 24, 640 * 1280))
        P.ext([PF(V_POLL, S_WA, sYT, "c", 50)])
        P(f"s_lshl2_add_u32 s{sSW}, s{sC1}, s3")
        P(f"s_mul_i32 s{sSW}, s{sSW}, {40*1280}")
    else:
        P("s_cmp_ge_u32 s3, 2")
        P.ext(srd_sel(S_GU, 28, 30, 640 * 3072))
        P.ext([PF(V_PF, S_GU, sPG, "c", 40)])
        P(f"s_lshl_b32 s{sSW}, s{sB0}, 7")
        P(f"s_add_u32 s{sSW}, s{sSW}, s{sSWB}")
    w0tok = P(f"buffer_load_dword v{V_NON}, off, s[8:11], 0 sc1", flags=["M:c1"])
    if typ:
        P("s_cmp_ge_u32 s3, 2")
        P.ext(srd_sel(S_GU, 28, 30, 640 * 3072))
    else:
        P.ext(srd(S_AUX, 32, 1536 * 1280))
    P(f"s_cmp_eq_u32 s{sXQ}, 1")
    P.ext(srd_sel(S_WSQ, 18, 20, 2048 * 4096))
    P.ext(srd(S_OUT, 34, 2048 * 1280))
    P.ext(ST_("p_ld"))
    if typ:
        P(f"s_mul_i32 s{sU1}, s{sC1}, 40")
        P(f"s_add_u32 s{sU1}, s{sU1}, s{sB32}")
        P(f"s_cmp_lt_u32 s{sB32}, 40")
        P(f"s_cselect_b32 s{sWDT}, 0, {hex(OOB)}")
        P(f"s_mul_i32 s{sHT}, s{sU1}, {4*1280}")
        P(f"s_add_u32 s{sHT}, s{sHT}, s{sWDT}")
        ssrd = S_WA
    else:
        P(f"s_lshl3_add_u32 s{sU1}, s{sRB}, s{sCG}")
        P(f"s_lshl2_add_u32 s{sU1}, s{sU1}, s3")
        P(f"s_mul_i32 s{sHT}, s{sU1}, {4*1280}")
        ssrd = S_X
        P(f"s_mov_b32 s{sYT}, s{sU1}")
        P(f"s_mul_i32 s{sPY}, s{sYT}, 205")
        P(f"s_lshr_b32 s{sPY}, s{sPY}, 11")
        P(f"s_mul_i32 s{sPY}, s{sPY}, {32*1280 - 1280}")
        P(f"s_lshl_b32 s{sWDT}, s{sYT}, 7")
        P(f"s_add_u32 s{sPY}, s{sPY}, s{sWDT}")
        P(f"s_cmp_lt_u32 s{sYT}, 480")
        P(f"s_cselect_b32 s{sWDT}, 0, {hex(OOB)}")
    FS = CFG["FS"]

    def flag_addr(dst, idx, base):
        P(f"s_lshl_b32 s{dst}, s{idx}, {FS}")
        P(f"s_add_u32 s{dst}, s{dst}, {hex(base)}")
    w1, w0 = sT2, sT3
    P(f"s_lshr_b32 s{w1}, s3, 1")
    P(f"s_and_b32 s{w0}, s3, 1")
    if typ:
        P(f"s_mul_i32 s{sCSL}, s{sCG}, 1280")
        P(f"s_add_u32 s{sCSL}, s{sCSL}, {hex(CSD)}")
        P(f"s_lshr_b32 s{sT0}, s{sRB}, 1")
        P(f"s_lshl2_add_u32 s{sT0}, s{sT0}, s3")
        P(f"s_and_b32 s{sT1}, s{sRB}, 1")
        P(f"s_lshl3_add_u32 s{sT0}, s{sT0}, s{sT1}")
        P(f"s_lshl3_add_u32 s{sSO}, s{sT0}, s{sCSL}")
        P(f"s_add_u32 s{sSO}, s{sSO}, s{sWDT}")
        P(f"s_lshl_b32 s{sT0}, s{sCG}, 6")
        P(f"s_add_u32 s{sT0}, s{sT0}, s{sB32}")
        P(f"s_mul_i32 s{sEA0}, s{sT0}, 10240")
        P(f"s_add_u32 s{sEA0}, s{sEA0}, {hex(ABT)}")
        P(f"s_add_u32 s{sEA1}, s{sEA0}, 8192")
        flag_addr(sFA, sT0, ABF)
        P(f"s_lshl_b32 s{sSGN}, s{sXQ}, 31")
        P(f"s_add_u32 s{sT1}, s{sB0}, 4")
    else:
        P(f"s_lshl_b32 s{sSO}, s{sU1}, 6")
        P(f"s_add_u32 s{sSO}, s{sSO}, {hex(STAT)}")
        P(f"s_lshl_b32 s{sJ3D}, s{sYT}, 12")
        P(f"s_add_u32 s{sJ3D}, s{sJ3D}, s{sWDT}")
        P(f"s_add_u32 s{sJ3D}, s{sJ3D}, {hex(WD)}")
        flag_addr(sFJ, sYT, WDF)
        P(f"s_add_u32 s{sFJ}, s{sFJ}, s{sWDT}")
        P(f"s_add_u32 s{sT1}, s{sB0}, 2")
    P(f"s_lshl_b32 s{sT0}, s{sT1}, 7")
    P(f"s_add_u32 s{sSWB}, s{sSWB}, s{sT0}")
    P(f"s_lshl_b32 s{sSTL}, s{sB32}, 9")
    P(f"s_add_u32 s{sSTL}, s{sSTL}, {hex(STAT)}")
    P(f"s_lshr_b32 s{sT0}, s{sB32}, 1")
    P(f"s_mul_i32 s{sEB0}, s{sT0}, 24")
    P(f"s_add_u32 s{sEB0}, s{sEB0}, s{sT1}")
    P(f"s_lshl2_add_u32 s{sEB0}, s{sEB0}, s3")
    P(f"s_lshl_b32 s{sEB0}, s{sEB0}, 11")
    P(f"s_add_u32 s{sEB0}, s{sEB0}, {hex(HH)}")
    P(f"s_xor_b32 s{sEB1}, s{sEB0}, 4096")
    P(f"s_lshl_b32 s{sFB}, s{sT0}, 5")
    P(f"s_add_u32 s{sFB}, s{sFB}, s{sT1}")
    P(f"s_lshl1_add_u32 s{sFB}, s{sFB}, s{w0}")
    flag_addr(sFB, sFB, HF)
    if not typ:
        P(f"s_sub_u32 s{sEA0}, s{sEB0}, 16384")
        P(f"s_sub_u32 s{sEA1}, s{sEB1}, 16384")
        P(f"s_sub_u32 s{sFA}, s{sFB}, {4 << FS}")
    P(f"s_lshl3_add_u32 s{sPA0}, s{sXQ}, s{sEB8}")
    P(f"s_lshl_b32 s{sPAB}, s{sPA0}, {5 + FS}")
    P(f"s_add_u32 s{sPAB}, s{sPAB}, {hex(ABF)}")
    P(f"s_lshl_b32 s{sPH}, s{sT64}, 6")
    P(f"s_mul_i32 s{sT0}, s3, 12")
    P(f"s_add_u32 s{sPH}, s{sPH}, s{sT0}")
    flag_addr(sPH, sPH, HF)
    P(f"s_mul_i32 s{sT1}, s{sEB8}, 5")
    P(f"s_lshr_b32 s{sPWD}, s{sT1}, 2")
    P(f"s_mul_i32 s{sT0}, s3, 120")
    P(f"s_add_u32 s{sPWD}, s{sPWD}, s{sT0}")
    flag_addr(sPWD, sPWD, WDF)
    P(f"s_lshl_b32 s{sT0}, s{sT0}, 2")
    P(f"s_add_u32 s{sWDB}, s{sT0}, s{sT1}")
    P(f"s_lshl_b32 s{sWDB}, s{sWDB}, 10")
    P(f"s_add_u32 s{sWDB}, s{sWDB}, {hex(WD)}")
    P(f"s_lshl2_add_u32 s{sHB}, s{sT64}, s3")
    P(f"s_mul_i32 s{sHB}, s{sHB}, {12*4096}")
    P(f"s_add_u32 s{sHB}, s{sHB}, {hex(HH)}")
    P(f"s_lshl2_add_u32 s{sT0}, s{sRB}, s{sCB4}")
    P(f"s_lshl2_add_u32 s{sT1}, s{sT0}, s3")
    P(f"s_lshl2_add_u32 s{sT1}, s{sT1}, s{sKS4}")
    P(f"s_mul_i32 s{sYPUB}, s{sT1}, 10240")
    P(f"s_add_u32 s{sYPUB}, s{sYPUB}, {hex(YP)}")
    P(f"s_cmp_eq_u32 s3, s{sKS4}")
    P(f"s_cselect_b32 s{sYPUB}, {hex(OOB)}, s{sYPUB}")
    P(f"s_cselect_b32 s{sRF}, 0, 10240")
    P(f"s_lshl2_add_u32 s{sT0}, s{sT0}, s{sKS4}")
    P(f"s_mul_i32 s{sYGA}, s{sT0}, 40960")
    P(f"s_lshl_b32 s{sT1}, s3, 11")
    P(f"s_add_u32 s{sYGA}, s{sYGA}, s{sT1}")
    P(f"s_add_u32 s{sYGA}, s{sYGA}, {hex(YP)}")
    for j, sg in enumerate((sG1, sG2, sG3)):
        P(f"s_xor_b32 s{sg}, s{sKS4}, {j+1}")
        P(f"s_mul_i32 s{sg}, s{sg}, 10240")
        P(f"s_add_u32 s{sg}, s{sg}, s{sYGA}")
    P(f"s_add_u32 s{sYGA}, s{sT1}, {OWQ}")
    P(f"s_lshl_b32 s{sT0}, s{w1}, 10")
    P(f"s_sub_u32 s{sT0}, s{sT0}, s{sT1}")
    P(f"s_add_u32 s{sT0}, s{sT0}, 8192")
    P(f"v_add_u32 v{V_G}, s{sT0}, v1")
    P(f"s_lshl1_add_u32 s{sXO}, s{sT64}, s{w1}")
    P(f"s_lshl3_add_u32 s{sXO}, s{sXO}, s{w0}")
    P(f"s_mul_i32 s{sXO}, s{sXO}, {4*1280}")
    P(f"s_mul_i32 s{sT0}, s{sEB8}, 160")
    P(f"s_add_u32 s{sXO}, s{sXO}, s{sT0}")
    P(f"s_or_b32 s{sT0}, s2, s3")
    P(f"s_cselect_b32 s{sLEAD}, {hex(OOB)}, 0")
    P(f"s_lshl1_add_u32 s{sSWS}, s{sCB4}, s{sRB}" if CFG["rotw"] else f"s_mov_b32 s{sSWS}, s{sRB}")
    P(f"s_lshl_b32 s{sSWS}, s{sSWS}, 8")
    P(f"s_and_b32 s{sSWS}, s{sSWS}, 0x7ff")
    P(f"s_add_u32 s{sPW1}, s{sSWS}, 256")
    P(f"s_and_b32 s{sPW1}, s{sPW1}, 0x7ff")
    P(f"s_lshl_b32 s{sT0}, s{sB32}, 17")
    P(f"s_and_b32 s{sT1}, s{sKS4}, 1")
    P(f"s_lshl_b32 s{sT1}, s{sT1}, 11")
    P(f"s_add_u32 s{sT0}, s{sT0}, s{sT1}")
    P(f"v_add_u32 v{V_WS}, s{sT0}, v{V_WS}")
    P(f"s_add_u32 s{sPW0}, s{sSWS}, s{sT0}")
    P(f"s_add_u32 s{sPW1}, s{sPW1}, s{sT0}")
    P(f"v_add_u32 v{V_WS+1}, {8*4096-1024}, v{V_WS}")
    P(f"v_xor_b32 v{V_WS+3}, 64, v{V_WS}")
    P(f"v_add_u32 v{V_WS+2}, {2*(8*4096-1024)}, v{V_WS+3}")
    P(f"v_add_u32 v{V_WS+3}, {3*(8*4096-1024)}, v{V_WS+3}")
    P(f"s_mul_i32 s{sT0}, s{sPA0}, {32*10240}")
    P(f"s_add_u32 s{sT0}, s{sT0}, s{sW5K}")
    P(f"s_add_u32 s{sT0}, s{sT0}, {hex(ABT)}")
    P(f"v_add_u32 v{V_AB}, s{sT0}, v1")
    P(f"v_add_u32 v{V_AB+1}, s{sT0}, v3")
    P(f"s_add_u32 s{sPA0}, s{sT0}, s{sW5K}")
    P(f"s_mul_i32 s{sT0}, s{sSWS}, 160")
    P(f"s_add_u32 s{sPA0}, s{sPA0}, s{sT0}")
    P(f"s_add_u32 s{sPA1}, s{sPA0}, 5120")
    P(f"s_mul_i32 s{sPD}, s{sPD}, 640")
    P(f"s_add_u32 s{sPD}, s{sPD}, s{sWDB}")
    P(f"s_lshl_b32 s{sPE}, s{sCB4}, 12")
    P(f"s_lshl1_add_u32 s{sPL}, s{sPE}, s{sHB}")
    P(f"s_add_u32 s{sPL}, s{sPL}, 16384")
    P(f"s_add_u32 s{sPE}, s{sPE}, s{sHB}")
    if CFG["rotd"]:
        assert not CFG["pw0"]
        P(f"s_xor_b32 s{sRE}, s{sRB}, s{sCB4}")
        P(f"s_and_b32 s{sRE}, s{sRE}, 3")
        P(f"s_lshl_b32 s{sRE}, s{sRE}, 12")
        P(f"s_lshl_b32 s{sRL}, s{sCB4}, 1")
        P(f"s_xor_b32 s{sRL}, s{sRL}, s{sRB}")
        P(f"s_and_b32 s{sRL}, s{sRL}, 7")
        P(f"s_lshl_b32 s{sRL}, s{sRL}, 12")
        P(f"s_sub_u32 s{sHB}, s{sHB}, 16384")
        P(f"s_sub_u32 s{sWDB}, s{sWDB}, 163840")
    P(f"s_mul_i32 s{sT0}, s{w0}, 5120")
    P(f"s_add_u32 s{sT0}, s{sT0}, 16384")
    P(f"v_add_u32 v{R_AB}, s{sT0}, v1")
    P(f"v_add_u32 v{R_AB+1}, {2*SLOT}, v{R_AB}")
    P(f"v_bfe_u32 v{T0}, v2, 3, 1")
    P(f"v_lshlrev_b32 v{T0}, 2, v{T0}")
    P(f"v_and_b32 v{TMP+4}, 2, v2")
    P(f"v_or_b32 v{T0}, v{T0}, v{TMP+4}")
    P(f"v_xor_b32 v{T0}, v{T0}, v{T1}")
    P(f"v_lshlrev_b32 v{T0}, 4, v{T0}")
    P(f"v_lshl_add_u32 v{V_ST}, v{T2}, 3, v{T3}")
    P(f"v_lshl_add_u32 v{R_WS}, v{V_ST}, 7, v{T0}")
    P(f"v_add_u32 v{R_X}, s{sW4K}, v{R_WS}")
    P(f"v_xor_b32 v{R_X}, s{sU0}, v{R_X}")
    P(f"v_xor_b32 v{R_X+1}, 64, v{R_X}")
    P(f"v_add_u32 v{R_X+2}, {2*SLOT}, v{R_X}")
    P(f"v_add_u32 v{R_X+3}, {2*SLOT}, v{R_X+1}")
    P(f"s_lshl_b32 s{sT0}, s{w1}, 13")
    P(f"v_add_u32 v{R_WS}, s{sT0}, v{R_WS}")
    P(f"v_xor_b32 v{R_WS+1}, 64, v{R_WS}")
    P(f"v_add_u32 v{R_WS+2}, {2*SLOT}, v{R_WS}")
    P(f"v_add_u32 v{R_WS+3}, {2*SLOT}, v{R_WS+1}")
    if typ:
        P(f"v_and_b32 v{R_WD}, 15, v2")
        P(f"v_lshl_add_u32 v{R_WD}, v{R_WD}, 7, v{T0}")
        P(f"v_add_u32 v{R_WD}, 16384, v{R_WD}")
        P(f"v_xor_b32 v{R_WD}, s{sU0}, v{R_WD}")
        P(f"v_xor_b32 v{R_WD+1}, 64, v{R_WD}")
        P(f"v_add_u32 v{R_WD+2}, {2*SLOT}, v{R_WD}")
        P(f"v_add_u32 v{R_WD+3}, {2*SLOT}, v{R_WD+1}")
    P(f"v_lshl_add_u32 v{R_GU}, v{T1}, 3, v{T2}")
    P(f"v_lshlrev_b32 v{R_GU}, 7, v{R_GU}")
    P(f"v_lshl_add_u32 v{R_GU}, v{T3}, 3, v{R_GU}")
    P(f"v_bfe_u32 v{R_GU+1}, v2, 3, 2")
    P(f"v_lshl_add_u32 v{R_GU}, v{R_GU+1}, 5, v{R_GU}")
    P(f"s_lshl_b32 s{sT0}, s{w1}, 6")
    P(f"s_lshl_b32 s{sT1}, s{w0}, 12")
    P(f"s_or_b32 s{sT0}, s{sT0}, s{sT1}")
    P(f"v_xor_b32 v{R_GU}, s{sT0}, v{R_GU}")
    for i in range(1, 8):
        P(f"v_xor_b32 v{R_GU+i}, {32*(i & 3) + 4096*(i >> 2)}, v{R_GU}")
    for i in range(8):
        P(f"v_add_u32 v{R_GU+8+i}, {2*SLOT}, v{R_GU+i}")
    if not typ:
        P(f"v_lshl_add_u32 v{VJ3R}, v{T1}, 2, v{T2}")
        P(f"v_lshlrev_b32 v{VJ3R}, 7, v{VJ3R}")
        P(f"v_lshl_add_u32 v{VJ3R}, v{T3}, 3, v{VJ3R}")
        P(f"v_bfe_u32 v{VJ3}, v2, 3, 1")
        P(f"v_lshl_add_u32 v{VJ3R}, v{VJ3}, 5, v{VJ3R}")
        P(f"v_add_u32 v{VJ3R}, s{sW4K}, v{VJ3R}")
        P(f"v_add_u32 v{VJ3R}, {SPARE}, v{VJ3R}")
        P(f"v_xor_b32 v{VJ3}, 32, v{VJ3R}")
    else:
        P(f"s_add_u32 s{sT0}, s{sW4K}, {SPARE + 1024}")
        P(f"v_lshl_add_u32 v{VK}, v{V_ST}, 2, s{sT0}")
        P(f"v_lshl_add_u32 v{VK+1}, v{T1}, 5, s{sT0}")
        P(f"v_and_b32 v{VK+2}, 15, v2")
        P(f"v_mul_u32_u24 v{SA+3}, 80, v{VK+2}")
        P(f"v_add_u32 v{SA+3}, s{sT0}, v{SA+3}")
        P(f"v_lshl_add_u32 v{SA+2}, v{T1}, 3, v{SA+3}")
        P(f"v_lshlrev_b32 v{VK+2}, 4, v{VK+2}")
    P(f"s_lshl_b32 s{sT0}, s{w1}, 8")
    P(f"s_add_u32 s{sT0}, s{sT0}, {SPARE}")
    P(f"v_and_b32 v{V_CR}, 15, v2")
    P(f"v_lshl_add_u32 v{V_CR}, v{V_CR}, 4, s{sT0}")
    P(f"v_xor_b32 v{V_CR+1}, 256, v{V_CR}")
    P(f"v_lshl_add_u32 v{V_CA}, s{w0}, 2, v{V_CR}")
    P(f"v_bfe_u32 v{TMP+4}, v2, 5, 1")
    P(f"v_lshl_add_u32 v{V_CA}, v{TMP+4}, 9, v{V_CA}")
    P(f"v_bfe_u32 v{TMP+4}, v2, 4, 1")
    P(f"v_lshl_add_u32 v{V_CA}, v{TMP+4}, 3, v{V_CA}")
    for i in range(4):
        P(f"v_mov_b32 v{ONES+i}, 0x3f803f80")
        P(f"v_mov_b32 v{INI+i}, -1")
    for j in range(4):
        P(f"v_cmp_eq_u32 vcc, {j}, v{T2}")
        P(f"v_cndmask_b32 v{TMP+4}, 0, v{ONES}, vcc")
        for i in range(4):
            P(f"v_accvgpr_write_b32 a{ACS + 4*j + i}, v{TMP+4}")
    P(f"v_mul_u32_u24 v{V_XO}, 1280, v{V_ST}")
    P(f"v_lshl_add_u32 v{V_XO}, v{T1}, 3, v{V_XO}")
    P(f"v_lshlrev_b32 v{V_ST}, 4, v{V_ST}")
    for t in range(4):
        P(f"s_add_u32 s{sT0}, s3, {t+1}")
        P(f"s_and_b32 s{sT0}, s{sT0}, 3")
        P(f"v_lshl_add_u32 v{V_H+t}, s{sT0}, 10, v1")
        P(f"s_mul_i32 s{sT0}, s{sT0}, 15360")
        P(f"v_add_u32 v{V_DW+t}, s{sT0}, v1")
    P(f"v_and_b32 v{V_FAB}, 31, v2")
    P(f"v_lshlrev_b32 v{V_FAB}, {FS}, v{V_FAB}")
    P(f"v_lshlrev_b32 v{V_FH}, {FS}, v{T3}")
    P(f"v_and_b32 v{V_FH2}, 7, v2")
    P(f"v_add_lshl_u32 v{V_FH2}, v{V_FH2}, 4, {FS}")
    P(f"v_lshrrev_b32 v{V_FWD}, 1, v2")
    P(f"v_min_u32 v{V_FWD}, 11, v{V_FWD}")
    P(f"v_mul_u32_u24 v{V_FWD}, 10, v{V_FWD}")
    P(f"v_and_b32 v{TMP+4}, 1, v2")
    P(f"v_add_lshl_u32 v{V_FWD}, v{TMP+4}, v{V_FWD}, {FS}")
    P(f"v_mov_b32 v{TMP+4}, {hex(OOB)}")
    P("v_cmp_eq_u32 vcc, 0, v2")
    P(f"v_cndmask_b32 v{V_L0}, v{TMP+4}, v2, vcc")
    P(f"v_mul_u32_u24 v{TMP+5}, 20, v{T1}")
    P(f"v_cmp_eq_u32 vcc, v{TMP+5}, v2")
    P(f"v_lshlrev_b32 v{SA+1}, 4, v{T1}")
    P(f"v_cndmask_b32 v{SA+1}, v{TMP+4}, v{SA+1}, vcc")
    P.ext(ST_("p_set"))
    P.ext(dma_stage(0))
    stok = [P(f"buffer_load_dwordx4 {vr(SF + 4*i, 4)}, v{SA}, s[{ssrd}:{ssrd+3}], s{sHT} offen offset:{256*i}") for i in range(5)]
    P.ext(dma_stage(1))
    P.ext(ST_("p_ld2"))
    P(f"v_readfirstlane_b32 s{sNON}, v{V_NON}", need=[w0tok])
    P(f"s_mul_i32 s{sNON}, s{sNON}, 1664525")
    P(f"s_add_u32 s{sNON}, s{sNON}, 1013904223")
    P(f"v_mov_b32 v{V_NON}, s{sNON}")

    S = Sched()
    CS = 20 if typ else 160
    ksteps = []
    xtok = {}

    def xreg(ks, T):
        return ar(4 * (2 * ks + T), 4)

    def gu_part(rd, m, sl, half, kap, buf, ks, acc):
        for f in (0, 1, 4, 5, 2, 3, 6, 7):
            mat, t = divmod(f, 4)
            tk = []
            for hh in range(2):
                off = (sl & 1) * SLOT + 16384 * half + 8192 * mat + 512 * hh
                i = I(f"ds_read_b64_tr_b16 {ar(buf + 4*f + 2*hh, 2)}, v{R_GU + 8*(sl >> 1) + 4*kap + t} offset:{off}")
                rd.append(i); tk.append(i.tok)
            for T in range(2):
                d = vr(acc + 4 * (2 * f + T), 4)
                m.append(I(f"{MF} {d}, {ar(buf + 4*f, 4)}, {xreg(ks, T)}, {'0' if ks == 0 else d}", need=tk + [xtok[ks, T]]))
            if kap == 0 and t < 2:
                d = vr(CS, 4)
                m.append(I(f"{MF} {d}, {ar(ACS + 4*(2*mat + t), 4)}, {ar(buf + 4*f, 4)}, {'0' if ks == 0 and f == 0 else d}", need=tk))

    def mk_passA(ks):
        s, kap = divmod(ks, 2)
        sl = s % 4
        buf = FB + 40 * (len(ksteps) % 2)
        rd, m = [], []
        for T in range(2):
            i = I(f"ds_read_b128 {xreg(ks, T)}, v{R_X + 2*(sl >> 1) + kap} offset:{(sl & 1)*SLOT + 512*T}")
            rd.append(i); xtok[ks, T] = i.tok
        if typ:
            for t in range(10):
                i = I(f"ds_read_b128 {ar(buf + 4*t, 4)}, v{R_WD + 2*(sl >> 1) + kap} offset:{(sl & 1)*SLOT + 2048*t}")
                rd.append(i)
                for T in range(2):
                    d = vr(ACCA + 4 * (2 * t + T), 4)
                    m.append(I(f"{MF} {d}, {xreg(ks, T)}, {ar(buf + 4*t, 4)}, {'0' if ks == 0 else d}", need=[i.tok, xtok[ks, T]]))
        else:
            gu_part(rd, m, sl, 1, kap, buf, ks, ACCA)
        ksteps.append(dict(rd=rd, m=m, stage=s, first=kap == 0))

    def mk_passB(ks):
        s = 10 + ks // 4
        q = ks % 4
        buf = FB + 40 * (len(ksteps) % 2)
        rd, m = [], []
        gu_part(rd, m, s % 4, q >> 1, q & 1, buf, ks, ACCB)
        ksteps.append(dict(rd=rd, m=m, stage=s, first=q == 0))

    def mk_y(k):
        s, kap = 15 + k // 2, k % 2
        sl = s % 4
        buf = FB + 40 * (len(ksteps) % 2)
        m, wt, ab = [], [], []
        for tt in range(4):
            wt.append(I(f"ds_read_b128 {ar(buf + 4*tt, 4)}, v{R_WS + 2*(sl >> 1) + kap} offset:{(sl & 1)*SLOT + 4096*(tt >> 1) + 512*(tt & 1)}"))
        for e in range(5):
            ab.append(I(f"ds_read_b128 {ar(buf + 16 + 4*e, 4)}, v{R_AB + (sl >> 1)} offset:{(sl & 1)*SLOT + 1024*(10*kap + e)}"))
        rd = [ab[0]] + wt + ab[1:]
        for e in range(5):
            for tt in range(4):
                d = vr(ACCA + 4 * (5 * tt + e), 4)
                m.append(I(f"{MF} {d}, {ar(buf + 16 + 4*e, 4)}, {ar(buf + 4*tt, 4)}, {'0' if k == 0 else d}", need=[ab[e].tok, wt[tt].tok]))
        ksteps.append(dict(rd=rd, m=m, stage=s, first=kap == 0))

    for ks in range(20): mk_passA(ks)
    for ks in range(20): mk_passB(ks)
    for k in range(32): mk_y(k)

    dmaL = {s: dma_stage(s) for s in range(2, 15)}
    wsL = {s: dma_ws(s) for s in range(15, 31)}
    abL = {s: dma_ab(s) for s in range(15, 31)}

    cspub, csrd = {}, {}
    for ps in (0, 1):
        if ps == 0 and typ:
            continue
        cspub[ps] = [I(f"v_cvt_pk_bf16_f32 v{CS+1}, v{CS}, v{CS}"), I(f"v_and_b32 v{CS+1}, 0xffff0000, v{CS+1}"),
                     I(f"v_sub_f32 v{CS+1}, v{CS}, v{CS+1}"), I(f"v_cvt_pk_bf16_f32 v{CS+1}, v{CS}, v{CS+1}"),
                     I(f"ds_write_b32 v{V_CA}, v{CS+1} offset:{4096*ps}")]
        csrd[ps] = {(p, mat): I(f"ds_read_b128 {vr(CSB + 8*p + 4*mat, 4)}, v{V_CR+p} offset:{4096*ps + 512*mat}")
                    for p in range(2) for mat in range(2)}
    ini = [I(f"s_add_u32 s{sYT}, s{sYPUB}, 8192")]
    for u in range(10):
        v, so, off = (1, sYPUB, 1024 * u) if u < 4 else ((3, sYPUB, 1024 * (u - 4)) if u < 8 else (1, sYT, 1024 * (u - 8)))
        ini.append(I(f"buffer_store_dwordx4 {vr(INI, 4)}, v{v}, s[8:11], s{so} offen offset:{off} sc1"))
    tag(ini, "ini")

    bar = {}
    kpos = []
    gC = {}
    pre = ST_("p_non") + [I("s_barrier", need=[dma_tok[0]])] + ST_("p_bar") + ksteps[0]["rd"]
    for K_, ks in enumerate(ksteps):
        g0 = S.n()
        kpos.append(g0)
        for m in ks["m"]:
            S.mfma(m)
        if K_ in (19, 39) and (K_ // 20) in cspub:
            acc = ACCB if K_ == 39 else ACCA
            gC[K_ // 20] = S.n()
            for p in range(2):
                for T in range(2):
                    for t2 in range(2):
                        for mat in range(2):
                            d = vr(acc + 4 * (2 * (4 * mat + 2 * p + t2) + T), 4)
                            S.mfma(I(f"{MF16} {d}, {vr(CSB + 8*p + 4*mat + 2*t2, 2)}, {vr(NMB + 2*T, 2)}, {d}",
                                     need=[csrd[K_ // 20][p, mat].tok]))
        if K_ == 1:
            for i in range(5):
                S.mfma(I(f"{MF} {vr(SD1, 4)}, {vr(ONES, 4)}, {vr(SF + 4*i, 4)}, {'0' if i == 0 else vr(SD1, 4)}", need=[stok[i]]))
                if not typ:
                    S.mfma(I(f"{MF} {vr(SD2, 4)}, {vr(SF + 4*i, 4)}, {vr(SF + 4*i, 4)}, {'0' if i == 0 else vr(SD2, 4)}", need=[stok[i]]))
        gend = S.n()
        nx = ksteps[K_ + 1] if K_ + 1 < len(ksteps) else None
        if nx is not None and nx["first"]:
            need = [dma_tok[nx["stage"]], ks["rd"][-1].tok]
            if K_ in (19, 39) and (K_ // 20) in cspub:
                need.append(cspub[K_ // 20][-1].tok)
            S.put(g0, [I("s_barrier", need=need)])
            bar[nx["stage"]] = g0
        else:
            S.put(g0, [wait_for(ks["rd"][-1].tok)])
            S.used[g0] += 4
        if nx is not None:
            rds = nx["rd"]
            if K_ in (19, 39) and (K_ // 20) in cspub:
                rds = list(csrd[K_ // 20].values()) + rds
            if CFG["rdsp"] and len(rds) > gend - 4 - g0 - 1:
                S.place(rds, g0 + 1, gend - 3, cap=8, spread=True)
            else:
                S.place(rds, g0 + 1, gend - (2 if nx["first"] else 4), cap=4)
        if K_ in (18, 38) and (K_ // 20) in cspub:
            S.place(cspub[K_ // 20], g0 + 14, gend - 2)
    kpos.append(S.n())

    ACCD = FB
    wdreg, hreg, wdtok, htok = {}, {}, {}, {}
    for kk in range(8):
        for e in range(5): wdreg[kk, e] = ar(20 * kk + 4 * e, 4)
    for kk in range(4):
        for t in range(4): hreg[kk, t] = vr(ACCB + 16 * kk + 4 * t, 4)
    for t in range(4):
        hreg[4, t] = vr(240 + 4 * t, 4)
        hreg[5, t] = ar(240 + 4 * t, 4)
        hreg[6, t] = hreg[0, t]
        hreg[7, t] = hreg[1, t]
    for e in range(5):
        wdreg[8, e] = ar(220 + 4 * e, 4)
        for j in range(3): wdreg[9 + j, e] = wdreg[j, e]
    for j in range(4):
        hreg[8 + j, 0] = hreg[2, j]
        hreg[8 + j, 1] = hreg[3, j]
        hreg[8 + j, 2] = wdreg[3, j]
        hreg[8 + j, 3] = wdreg[4, j]

    def kaddr(dst, base, kk, mul):
        if not CFG["rotd"]:
            return [I(f"s_add_u32 s{dst}, s{base}, {4096*mul*kk}")]
        L = [I(f"s_xor_b32 s{dst}, s{sRE if kk < 4 else sRL}, {4096*(kk+4)}")]
        if mul != 1:
            L.append(I(f"s_mul_i32 s{dst}, s{dst}, {mul}"))
        return L + [I(f"s_add_u32 s{dst}, s{dst}, s{base}")]

    def wd_load(kk):
        L = kaddr(sWDT, sWDB, kk, 10)
        for e in range(5):
            v, o = (1, 1024 * e) if e < 4 else (3, 0)
            L.append(I(f"buffer_load_dwordx4 {wdreg[kk, e]}, v{v}, s[8:11], s{sWDT} offen offset:{o} sc1"))
            wdtok[kk, e] = L[-1].tok
        return tag(L, f"wd{kk}")

    def h_load(kk):
        L = kaddr(sHT, sHB, kk, 1)
        for t in range(4):
            L.append(I(f"buffer_load_dwordx4 {hreg[kk, t]}, v{V_H+t}, s[8:11], s{sHT} offen sc1"))
            htok[kk, t] = L[-1].tok
        return tag(L, f"h{kk}")

    def h_load_t(t):
        L = []
        for j in range(4):
            L.append(I(f"buffer_load_dwordx4 {hreg[8+j, t]}, v{V_H+t}, s[8:11], s{sH8+j} offen sc1"))
            htok[8 + j, t] = L[-1].tok
        return L

    def wd_stage(kk):
        j = kk - 8
        L = kaddr(sWDT, sWDB, kk, 10) + [I(f"s_add_u32 m0, s{sW4K}, {STG[j]}")]
        for e in range(4):
            L.append(I(f"buffer_load_dwordx4 v1, s[8:11], s{sWDT} offen offset:{1024*e} sc1 lds"))
        L.append(I(f"s_add_u32 m0, s{sW4K}, {STG4 + 1024*j}"))
        L.append(I(f"buffer_load_dwordx4 v3, s[8:11], s{sWDT} offen sc1 lds"))
        R = []
        for e in range(5):
            a = STG[j] + 1024 * e if e < 4 else STG4 + 1024 * j
            v, o = (V_S0 + 1, a - 3 * SLOT) if a >= 3 * SLOT else (V_S0, a)
            R.append(I(f"ds_read_b128 {wdreg[kk, e]}, v{v} offset:{o}", need=[L[-1].tok]))
            wdtok[kk, e] = R[-1].tok
        return tag(L, f"wd{kk}"), R
    wdL = {kk: wd_load(kk) for kk in range(8)}
    wdS = {kk: wd_stage(kk) for kk in range(8, 12)}
    hL = {kk: h_load(kk) for kk in range(8)}
    htL = {t: h_load_t(t) for t in range(4)}

    def dacc(t, e):
        return ar(ACCD + 4 * (5 * t + e), 4) if t < 3 else vr(OWN + 4 * e, 4)

    def d_mfma(kk, t, e):
        d = dacc(t, e)
        S.mfma(I(f"{MF} {d}, {wdreg[kk, e]}, {hreg[kk, t]}, {'0' if kk == 0 else d}", need=[wdtok[kk, e], htok[kk, t]]))
    gD = S.n()
    for kk in range(8):
        for e in range(5):
            for t in range(4): d_mfma(kk, t, e)
    GA, Y, RED = ACCA, ACCA + 48, ACCB
    gtxt = []
    for s, sg in enumerate((sG1, sG2, sG3)):
        for u in range(3):
            v = 1 if u < 2 else V_G
            gtxt.append(f"buffer_load_dwordx4 {vr(GA + 12*s + 4*u, 4)}, v{v}, s[8:11], s{sg} offen offset:{1024*u if u < 2 else 0} sc1")

    def gat_check(need):
        L = [I(f"v_max3_u32 v{V_POLL}, v{GA}, v{GA+4}, v{GA+8}", need=need[:3])]
        for i in range(3, 9, 2):
            L.append(I(f"v_max3_u32 v{V_POLL}, v{V_POLL}, v{GA+4*i}, v{GA+4*i+4}", need=need[i:i+2]))
        L.append(I(f"v_cmp_eq_u32 vcc, -1, v{V_POLL}"))
        return L
    gown = [I(f"v_add_u32 v{TMP+4}, s{sYGA}, v1"), I(f"v_add_u32 v{TMP+5}, s{sYGA}, v{V_G}")]
    gown += [I(f"ds_read_b128 {vr(GA + 36 + 4*u, 4)}, v{TMP + 4 + u // 2} offset:{1024*(u & 1)}") for u in range(3)]
    gat, gck = poll(gtxt, gat_check)
    tag(gat, "gat")
    gT = {}
    for t in range(3):
        gT[t] = S.n()
        for kk in range(8, 12):
            for e in range(5): d_mfma(kk, t, e)
    gT[3] = S.n()
    for e in range(5):
        for kk in range(8, 12): d_mfma(kk, 3, e)
    gT["ysum"] = S.n()
    for e in range(5):
        for s in range(4):
            sel = vr(SEL + 6, 4) if e == 4 else (vr(SEL + 2, 4) if e % 2 == 0 else vr(SEL, 4))
            d = vr(Y + 4 * e, 4)
            S.mfma(I(f"{MF} {d}, {sel}, {vr(GA + 12*s + 4*(e // 2), 4)}, {'0' if s == 0 else d}", need=[gown[2 + e // 2].tok] if s == 3 else []))
    gEnd = S.n()
    k2 = kpos

    def kof(g):
        k = max(i for i in range(len(k2)) if k2[i] <= g)
        return round(k + (g - k2[k]) / 20, 2)

    C = CFG
    info = {}
    UN = []

    def kg(k):
        a = int(k)
        return k2[a] + int(round((k - a) * (k2[a + 1] - k2[a])))

    def U(name, items, early, prio, late=None, after=()):
        UN.append(Unit(name, items, early, prio, late, after))
        return UN[-1]

    def UA(name, items, at, **kw):
        at = at[typ] if isinstance(at, tuple) else at
        return U(name, items, kg(at) + 1, 0, **kw)
    DL = C["dl"]
    prevD = []
    for s_ in range(2, 15):
        L = dmaL[s_]
        h_ = [n for n, i_ in enumerate(L) if "m0" in i_.text.split(",")[0]][1]
        e_ = bar[s_ - 3] + 1 if s_ >= 4 else 0
        prevD = [U(f"D{s_}a", L[:h_], e_, bar[s_] - DL - 1, after=prevD)]
        prevD = [U(f"D{s_}b", L[h_:], e_, bar[s_] - DL, after=prevD)]
    sf = K()
    a0, a1, a2, a3 = SF, SF + 1, SF + 2, SF + 3
    dp = "row_mask:0xf bank_mask:0xf"
    if typ:
        sf(f"v_add_f32_dpp v{a0}, v{SD1}, v{SD1} quad_perm:[1,0,3,2] {dp}")
        sf(f"v_mov_b32 v{a1}, v{V_NON}")
        sf(f"v_add_f32_dpp v{a0}, v{a0}, v{a0} quad_perm:[2,3,0,1] {dp}")
        sf(f"buffer_store_dwordx2 {vr(a0, 2)}, v{SA+1}, s[8:11], s{sSO} offen sc1")
    else:
        sf(f"v_add_f32_dpp v{a0}, v{SD1}, v{SD1} quad_perm:[1,0,3,2] {dp}")
        sf(f"v_mov_b32_dpp v{a1}, v{SD2} quad_perm:[0,0,0,0] {dp}")
        sf(f"v_add_f32_dpp v{a1}, v{SD2+1}, v{a1} quad_perm:[1,1,1,1] {dp}")
        sf(f"v_add_f32_dpp v{a0}, v{a0}, v{a0} quad_perm:[2,3,0,1] {dp}")
        sf(f"v_add_f32_dpp v{a1}, v{SD2+2}, v{a1} quad_perm:[2,2,2,2] {dp}")
        sf(f"v_mul_f32 v{a0}, {f2h(-1.0/640)}, v{a0}")
        sf(f"v_add_f32_dpp v{a1}, v{SD2+3}, v{a1} quad_perm:[3,3,3,3] {dp}")
        sf(f"v_mul_f32 v{a1}, {f2h(1.0/640)}, v{a1}")
        sf(f"v_fma_f32 v{a1}, -v{a0}, v{a0}, v{a1}")
        sf(f"v_max_f32 v{a1}, 0, v{a1}")
        sf(f"v_cvt_pk_bf16_f32 v{a0}, v{a0}, v{a1}")
        sf(f"v_and_b32 v{a1}, 0xffff0000, v{a0}")
        sf(f"v_lshlrev_b32 v{a0}, 16, v{a0}")
        sf(f"v_add_f32 v{a1}, {f2h(1e-5)}, v{a1}")
        sf(f"v_cvt_pk_bf16_f32 v{a1}, v{a1}, v{a1}")
        sf(f"v_lshlrev_b32 v{a1}, 16, v{a1}")
        sf(f"v_sqrt_f32 v{a1}, v{a1}")
        sf(f"v_mov_b32 v{a3}, v{V_NON}")
        sf(f"v_cvt_pk_bf16_f32 v{a1}, v{a1}, v{a1}")
        sf(f"v_lshlrev_b32 v{a1}, 16, v{a1}")
        sf(f"v_mul_f32 v{a2}, v{a1}, v{a1}")
        sf(f"v_rcp_f32 v{a1}, v{a1}")
        sf("s_nop 0")
        sf(f"buffer_store_dwordx4 {vr(a0, 4)}, v{SA+1}, s[8:11], s{sSO} offen sc1")
    sfe = S.place(sf.L[:-1], k2[2] + 3, k2[3] + 8)
    ustat = U("stat", [M(sf.L[-1], "s", 1)], sfe + 1, 0)
    upf = UA("pgb", [PF(V_PF, S_GU, sPG, "c", 40, off=512 if typ else 256)], C["pgb"])
    M(ini, "s", 6)
    ia, ib = C["ini"][typ]
    prev = []
    for n in range(10):
        prev = [UA(f"ini{n}", ([ini[0]] if n == 8 else []) + [ini[1 + n]], ia + (ib - ia) * n / 9, after=prev, late=k2[39] - 1)]
    uini = prev
    if C["pw0"]:
        pws = [I(f"v_lshrrev_b32 v{V_PF}, 1, v2"), I(f"v_lshlrev_b32 v{V_PF}, 5, v{V_PF}"), I(f"v_and_or_b32 v{V_PF}, v2, 1, v{V_PF}"),
               I(f"v_lshlrev_b32 v{V_PF}, 7, v{V_PF}"), PF(V_PF, S_WSQ, sPW0, "c", 64)]
        upf = UA("pw0", pws, C["pw0"], after=[upf])
        upf = UA("pw1", [PF(V_PF, S_WSQ, sPW1, "c", 64)], C["pw1"], after=[upf])
    else:
        for s_ in range(15, 19 if C["rotw"] else 15): M(wsL[s_], "c", 8)
    ujf = []
    if not typ:
        jl = [I(f"s_add_u32 m0, s{sW4K}, {SPARE}")]
        jl += [I(f"buffer_load_dwordx4 v{V_X+p}, s[{S_AUX}:{S_AUX+3}], s{sPY} offen offset:{1024*p}{CFG['nt_j3']} lds") for p in range(4)]
        jt = jl[-1].tok
        ujl = UA("j3ld", tag(M(jl, "c", 8), "j3"), C["j3ld"])
        JF = 144
        jr, js = [], []
        for tI in range(4):
            for hh in range(2):
                off = 2048 * hh + (64 * ((tI >> 1) ^ hh))
                jr.append(I(f"ds_read_b64_tr_b16 {ar(JF + 4*tI + 2*hh, 2)}, v{VJ3 if tI & 1 else VJ3R} offset:{off}", need=[jt]))
        for tI in range(4):
            js.append(I(f"buffer_store_dwordx4 {ar(JF + 4*tI, 4)}, v1, s[8:11], s{sJ3D} offen offset:{1024*tI} sc1",
                        need=[jr[2*tI].tok, jr[2*tI+1].tok]))
        ujr = U("jr", jr, 0, 0, late=kg(C["j3st"]) - 12, after=[ujl])
        ujs = UA("j3st", M(js, "s", 8), C["j3st"], after=[ujr])
        ujf = [UA("j3fl", [M(flag_store(sFJ, [js[-1].tok]), "s", 1)], C["j3fl"], after=[ujs])]
    lds = [f"buffer_load_dwordx4 {vr(ST + 4*T, 4)}, v{V_ST}, s[8:11], s{sSTL} offen offset:{64*T} sc1" for T in range(2)]
    tags = [ST + 3, ST + 7]
    if typ:
        lds += [f"buffer_load_dwordx4 {vr(CSR, 4)}, v1, s[8:11], s{sCSL} offen sc1",
                f"buffer_load_dwordx4 {vr(CSR + 4, 4)}, v{VK+2}, s[8:11], s{sCSL} offen offset:1024 sc1"]
        tags += [CSR + 1, CSR + 3, CSR + 5, CSR + 7]
    sl_, sc_ = poll(lds, tag_check(tags))
    kc = K()
    RS = CSB
    if typ:
        wt_ = []
        for h in range(2):
            kc(f"ds_write2_b32 v{SA+2}, v{CSR+4*h}, v{CSR+4*h+2} offset0:{64 + 8*h} offset1:{65 + 8*h}")
        for T in range(2):
            kc(f"v_xor_b32 v{ST+4*T+3}, s{sSGN}, v{ST+4*T+1}")
            wt_.append(kc(f"ds_write2_b32 v{VK}, v{ST+4*T}, v{ST+4*T+3} offset0:{4*T} offset1:{32 + 4*T}"))
        cst = [kc(f"ds_read_b128 {vr(CSV + 4*h, 4)}, v{SA+3} offset:{256 + 16*h}") for h in range(2)]
        cst.append(kc(f"ds_read_b64 {vr(CSV + 8, 2)}, v{SA+3} offset:{256 + 32}"))
        nmt = [kc(f"ds_read_b128 {vr(NM + 4*h, 4)}, v{VK+1} offset:{16*h}") for h in range(2)]
        rst = [kc(f"ds_read_b128 {vr(RS + 4*h, 4)}, v{VK+1} offset:{128 + 16*h}") for h in range(2)]
    for T in range(2):
        r = ST + 4 * T
        kc(f"v_mul_f32 v{NMB+2*T}, 0.25, v{r}".replace("0.25", f2h(0.25)))
        kc(f"v_mul_f32 v{r+3}, v{r+1}, v{r+1}", need=wt_ if typ else [])
        kc(f"v_cvt_pk_bf16_f32 v{NMB+2*T}, v{NMB+2*T}, v{NMB+2*T}")
        kc(f"v_mul_f32 v{r+1}, {f2h(C1)}, v{r+1}")
        kc(f"v_mul_f32 v{r+3}, {f2h(0.044715)}, v{r+3}")
        kc(f"v_mov_b32 v{NMB+2*T+1}, v{NMB+2*T}")
        kc(f"v_mul_f32 v{r+3}, v{r+3}, v{r+1}")
    usl = UA("stl", M(sl_, "m", 4), C["stl"], after=[ustat])
    gk = kg(C["st_ck"][typ])
    ust = U("stck", sc_, gk - 12, 0, late=gk - 1, after=[usl])

    def epi_gu(acc, so):
        L, St = [], []
        for p in range(2):
            for T in range(2):
                o = acc + 4 * (2 * (2 * p) + T)
                c = ST + 4 * T
                for t2 in range(2):
                    g = acc + 4 * (2 * (2 * p + t2) + T)
                    u = g + 32
                    R = range(4)
                    for i in R:
                        L.append(I(f"v_mul_f32 v{TMP+i}, v{g+i}, v{g+i}"))
                        L.append(I(f"v_mul_f32 v{u+i}, v{g+i}, v{u+i}"))
                        L.append(I(f"v_fma_f32 v{TMP+i}, v{TMP+i}, v{c+3}, v{c+1}"))
                        L.append(I(f"v_mul_f32 v{g+i}, v{TMP+i}, v{g+i}"))
                    for i in R: L.append(I(f"v_exp_f32 v{g+i}, v{g+i}"))
                    for i in R: L.append(I(f"v_fma_f32 v{g+i}, v{g+i}, v{c+2}, v{c+2}"))
                    for i in R: L.append(I(f"v_rcp_f32 v{g+i}, v{g+i}"))
                    for i in R: L.append(I(f"v_mul_f32 v{u+i}, v{u+i}, v{g+i}"))
                    L.append(I(f"v_cvt_pk_bf16_f32 v{o+2*t2}, v{u}, v{u+1}"))
                    L.append(I(f"v_cvt_pk_bf16_f32 v{o+2*t2+1}, v{u+2}, v{u+3}"))
                St.append(I(f"buffer_store_dwordx4 {vr(o, 4)}, v1, s[8:11], s{so+p} offen offset:{1024*T} sc1"))
        return L, M(St, "s", 8)

    def epi_ab():
        L, St = [], []
        for t in range(10):
            o = ACCA + 8 * t
            for j in range(8):
                L.append(I(f"v_mul_f32 v{o+j}, v{o+j}, v{RS+j}", need=[rst[j // 4]]))
            for j in range(4):
                L.append(I(f"v_cvt_pk_bf16_f32 v{o+j}, v{o+2*j}, v{o+2*j+1}"))
            v, so, off = (1, sEA0, 1024 * t) if t < 4 else ((3, sEA0, 1024 * (t - 4)) if t < 8 else (1, sEA1, 1024 * (t - 8)))
            St.append(I(f"buffer_store_dwordx4 {vr(o, 4)}, v{v}, s[8:11], s{so} offen offset:{off} sc1"))
        return L, M(St, "s", 8)

    def epi_assert(g):
        for q in range(8):
            assert min(S.lastpos[34 * q:]) > g + 2 * q + 2
    xl = K()
    xt = [xl(f"buffer_load_dwordx2 {vr(XR[e], 2)}, v{V_XO}, s[{S_X}:{S_X+3}], s{sXO} offen offset:{32*e}", flags=["M:h16"]) for e in range(5)]
    U("xres", xl.L, kg(C["xres"]), kg(C["xres"] + 3))
    pl, pc = flag_poll(V_FWD, sPWD)
    pwd = [I(f"v_min_u32 v{V_PF}, 59, v2"), I(f"v_mul_u32_u24 v{V_POLL}, 205, v{V_PF}"), I(f"v_lshrrev_b32 v{V_POLL}, 10, v{V_POLL}"),
           I(f"v_mul_u32_u24 v{V_POLL}, {40960 // 128 - 5}, v{V_POLL}"), I(f"v_add_lshl_u32 v{V_PF}, v{V_PF}, v{V_POLL}, 7")]
    if C["pwd"]:
        u5 = UA("wdp", pwd + M(pl, "m", 4) + [PF(V_PF, S_WS, sPD, "m", 60)], C["wdp"], after=[upf, ust] + ujf)
    else:
        u5 = UA("wdp", M(pl, "m", 4), C["wdp"], after=[ust] + ujf)
    uwc = UA("wdck", pc, C["wdp"][typ] + C["ckd"], after=[u5])
    prev = [uwc]
    for kk in C["wdm"]: M(wdL[kk], "m", 8)
    for kk in C["hm"]: M(hL[kk], "m", 8)
    for kk in range(8):
        prev = [U(f"wd{kk}", wdL[kk], k2[20 + (20 * kk + 20 + 7) // 8], gD - 200 + kk, after=prev)]
    uwd7 = prev

    def chunks(name, L, St, a, b, n, late=None):
        out, prev = [], []
        for q in range(n):
            e_ = a + (b - a) * (q + 1) // n
            out.append((L[len(L) * q // n:len(L) * (q + 1) // n], a + (b - a) * q // n, e_))
            prev = [U(f"{name}{q}", St[len(St) * q // n:len(St) * (q + 1) // n], e_, 0, after=prev, late=late)]
        return out, prev
    if typ:
        LA, St = epi_ab()
        LA, ua = chunks("abst", LA, St, k2[19] + 5, k2[C["ab_end"]], 5)
        uaf = UA("abfl", [M(flag_store(sFA, [St[-1].tok]), "s", 1)], C["ab_flag"], after=ua)
    else:
        LA, St = epi_gu(ACCA, sEA0)
        LA, ua = chunks("hast", LA, St, gC[0] + 5, gC[1] + 2, 4, late=k2[40] - 3)
        uaf = UA("hafl", [M(flag_store(sFA, [St[-1].tok]), "s", 1)], C["ha_flag"], after=ua)
    pl, pc = flag_poll(V_FAB, sPAB)
    if C["pab"]:
        pl = pl + [PF(V_40, S_WS, sPA0, "m", 40), PF(V_40, S_WS, sPA1, "m", 40)]
    else:
        for s_ in (15, 16): M(abL[s_], "m", 8)
    u6 = UA("abp", [M(pl[0], "m", 1)] + pl[1:], C["abp"], after=[uwc] + ([uaf] if typ else []))
    uac = UA("abck", pc, C["abp"] + C["ckd"], after=[u6])
    pw_, pa_ = prevD, [uac]
    for s_ in range(15, 31):
        pw_ = [U(f"ws{s_}", wsL[s_], bar[s_ - 3] + 1, bar[s_] - DL - 1, after=pw_)]
        pa_ = [U(f"ab{s_}", abL[s_], bar[s_ - 3] + 1, bar[s_] - DL, after=pa_ + pw_)]
    e0 = C["epb_end"]
    LB, St = epi_gu(ACCB, sEB0)
    LB, ub = chunks("hbst", LB, St, gC[1] + 5, k2[e0], 4)
    ubf = UA("hbfl", [M(flag_store(sFB, [St[-1].tok]), "s", 1)], C["hb_flag"], after=ub + uini)
    pl, pc0 = flag_poll(V_FH, sPH)
    u8 = UA("hp0", M(pl, "m", 1) + ([PF(V_40, S_WS, sPE, "m", 40, late=True)] if C["ph0"] else []), C["hp0"], after=[uac, uaf])
    uh0 = [UA("h0ck", pc0, C["hp0"] + C["ckd"], after=[u8])]
    prev = uh0 + ub
    for kk in range(4):
        prev = [U(f"h{kk}", hL[kk], 0, gD - 100 + 20 * kk, after=prev)]
    mi = K()
    mi(f"v_and_b32 v{TMP+4}, 15, v2")
    mi(f"v_lshrrev_b32 v{TMP+5}, 4, v2")
    mi(f"v_lshlrev_b32 v{TMP+5}, 2, v{TMP+5}")
    mi(f"v_sub_u32 v{TMP+4}, v{TMP+4}, v{TMP+5}")
    mi(f"v_lshlrev_b32 v{TMP+5}, 4, v{TMP+4}")
    mi(f"v_mov_b32 v{TMP+6}, 0x3f80")
    mi(f"v_lshlrev_b32 v{TMP+5}, v{TMP+5}, v{TMP+6}")
    mi(f"v_lshrrev_b32 v{TMP+4}, 1, v{TMP+4}")
    for r in (0, 1, 4, 5):
        mi(f"v_mov_b32 v{SEL+r}, 0")
    for d in range(2):
        mi.L.append([I(f"v_cmp_eq_u32 vcc, {d}, v{TMP+4}"), I(f"v_cndmask_b32 v{SEL+2+d}, 0, v{TMP+5}, vcc")])
    mi.L.append([I("s_bitcmp1_b32 s3, 0"), I("s_cselect_b64 vcc, -1, 0")] +
                [I(f"v_cndmask_b32 v{SEL+6+i}, v{SEL+2+i}, v{SEL+i}, vcc") for i in range(4)])
    for j in range(4):
        mi.ext(kaddr(sH8 + j, sHB, 8 + j, 1))
    pl, pc = flag_poll(V_FH2, sPH)
    u9 = UA("hp", [I(f"v_lshlrev_b32 v{V_FAB}, 7, v2")] + M(pl, "m", 1) + ([PF(V_FAB, S_WS, sPL, "m", 64, late=True)] if C["ph1"] else []),
            C["hp"], after=uh0 + [ubf])
    uhc = UA("hck", pc, C["hp"] + C["ckd"], late=gD + 38, after=[u9])
    prev = prev + [uhc]
    for kk in range(4, 8):
        prev = [U(f"h{kk}", hL[kk], gD + 20 * (kk - 5) if kk >= 6 else 0, gD - DL + 20 * kk, after=prev)]
    for t in range(4):
        prev = [U(f"ht{t}", htL[t], gD + (60, 80, 80, 100)[t], gT[t] - DL, after=prev)]
    prev = uwd7
    for kk in range(8, 12):
        prev = [U(f"wd{kk}", wdS[kk][0], bar[28 + (kk - 8) // 2] + 1, gD + 10 + kk, after=prev)]
    xu = K()
    for e in range(5):
        b = XU + 4 * e
        xu(f"v_lshlrev_b32 v{b}, 16, v{XR[e]}", need=[xt[e]])
        xu(f"v_and_b32 v{b+1}, 0xffff0000, v{XR[e]}")
        xu(f"v_lshlrev_b32 v{b+2}, 16, v{XR[e]+1}")
        xu(f"v_and_b32 v{b+3}, 0xffff0000, v{XR[e]+1}")

    pub = K()
    units = [(ACCA + 4 * (5 * tt + 2 * h), ACCA + 4 * (5 * tt + 2 * h + 1)) for tt in range(4) for h in range(2)]
    units += [(ACCA + 4 * (10 * p + 4), ACCA + 4 * (10 * p + 9)) for p in range(2)]
    pub(f"s_add_u32 s{sYT}, s{sYPUB}, 8192")
    for u, (a, b) in enumerate(units):
        pub(f"v_cvt_pk_bf16_f32 v{a}, v{a}, v{a+1}")
        pub(f"v_cvt_pk_bf16_f32 v{a+1}, v{a+2}, v{a+3}")
        pub(f"v_cvt_pk_bf16_f32 v{a+2}, v{b}, v{b+1}")
        pub(f"v_cvt_pk_bf16_f32 v{a+3}, v{b+2}, v{b+3}")
        v, so, off = (1, sYPUB, 1024 * u) if u < 4 else ((3, sYPUB, 1024 * (u - 4)) if u < 8 else (1, sYT, 1024 * (u - 8)))
        pub(f"buffer_store_dwordx4 {vr(a, 4)}, v{v}, s[8:11], s{so} offen offset:{off} sc1", flags=["M:s6"])
        ow = pub(f"ds_write_b128 v{V_CR+1}, {vr(a, 4)} offset:{OWQ + 1024*u}")
    tag(pub.L, "pub")
    gB = gD + 40
    up = U("pub", pub.L, gD + 1, 0, late=gB - 1)
    S.put(gB, [I("s_barrier", need=[ow])])
    U("lead", [M(flag_store(sLEAD, []), "h", 1)], gB + 1, gEnd)
    U("gat", M(gat, "m", 8), gD + C["gat"], 0, after=[up])
    S.place(gown + wdS[8][1] + wdS[9][1], gD + 100, gD + 130, cap=4)
    S.place(wdS[10][1] + wdS[11][1], gD + 130, gD + 150, cap=4)
    wl = None
    for t in range(3):
        W = [I(f"ds_write_b128 v{V_DW+t}, {dacc(t, e)} offset:{XCH + 5120*t + 1024*e}") for e in range(5)]
        S.place(W, gT[t + 1] + 1, gT[t + 1] + 12, cap=4)
        wl = W[-1].tok
    rr = {}
    R = [I("s_barrier", need=[wl])]
    for e in range(5):
        for j in range(3):
            R.append(I(f"ds_read_b128 {vr(RED + 12*e + 4*j, 4)}, v{V_DW+3} offset:{XCH + 5120*j + 1024*e}"))
            rr[e, j] = R[-1].tok
    S.place(R, gT[3] + 12, gT["ysum"])
    fin = K()
    P2 = lambda r: vr(r, 2)
    fin(f"s_mov_b32 s{sT0}, {f2h(-L2E)}")
    fin(f"s_mov_b32 s{sT1}, {f2h(-L2E)}")
    fin(f"s_mov_b32 s{sT2}, 1.0")
    fin(f"s_mov_b32 s{sT3}, 1.0")
    S.place(fin.L, gT[3], gT[3] + 12)
    fin = K()
    for e in range(5):
        b, d = RED + 12 * e, OWN + 4 * e
        for i in (0, 2): fin(f"v_pk_add_f32 {P2(b+i)}, {P2(b+i)}, {P2(b+4+i)}", need=[rr[e, 0], rr[e, 1]])
        for i in (0, 2): fin(f"v_pk_add_f32 {P2(d+i)}, {P2(d+i)}, {P2(b+8+i)}", need=[rr[e, 2]])
        for i in (0, 2): fin(f"v_pk_add_f32 {P2(d+i)}, {P2(d+i)}, {P2(b+i)}")
        for i in (0, 2): fin(f"v_pk_mul_f32 {P2(b+i)}, {P2(d+i)}, s[{sT0}:{sT1}]")
        for i in range(4): fin(f"v_exp_f32 v{b+i}, v{b+i}")
    for e in range(5):
        b, d = RED + 12 * e, OWN + 4 * e
        for i in (0, 2): fin(f"v_pk_add_f32 {P2(b+i)}, {P2(b+i)}, s[{sT2}:{sT3}]")
        for i in range(4): fin(f"v_rcp_f32 v{b+i}, v{b+i}")
    for e in range(5):
        b, d = RED + 12 * e, OWN + 4 * e
        for i in (0, 2): fin(f"v_pk_mul_f32 {P2(d+i)}, {P2(d+i)}, {P2(b+i)}")
    S.put(gT["ysum"], fin.L + gck)
    pipe = Pipe(C["ch"], C["W"], C["Q"], C["lat"])
    t = 600.0
    for i_ in [PF(V_40, S_X, 0, "c", 40), PF(V_40, S_X, 0, "c", 40)] + P.L + pre:
        for k_ in i_.need:
            if k_.cls == "vm": t = max(t, pipe.done[id(k_)])
        t = pipe.issue(i_, t) + 5 if i_.kind == "vm" else t + 5
    times = place_units(S, pipe, t, UN, tm=C["tm"])
    if C["show"]:
        print(pf, "model", " ".join(f"k{k}:{times[k2[k]]/1e3:.2f}" for k in range(0, 73, 4)), f"end:{times[gEnd]/1e3:.2f}")
        print("  ", " ".join(f"{u.name}:{kof(u.pos[0])}-{kof(u.pos[-1])}" for u in sorted(UN, key=lambda u: u.pos[0])))
    un = {u.name: u for u in UN}
    S.place(kc.L, gk, gk + (20 if typ else 22))
    if typ:
        k0 = int(C["st_ck"][1]) + 1
        nk = 19 - k0
        tiles = list(range(20))
        for kq in range(nk):
            mine = tiles[kq::nk]
            for idx in mine:
                t, T = divmod(idx, 2)
                L = [I(f"v_fmac_f32 v{ACCA + 4*idx + i}, v{NM + 4*T + i}, v{CSV + t}", need=[nmt[T], cst[t // 4]]) for i in range(4)]
                g = k2[k0 + kq]
                if idx < 10:
                    S.place(L, g + idx + 5, g + min(idx + 14, 20))
                else:
                    S.place(L, g + max(idx - 13, 1), g + idx - 2)
        for q, (L, a, b) in enumerate(LA):
            info[f"A{q}"] = place_dag(S, L, a, b, window=6)
            for t in range(2):
                assert min(S.lastpos[12 * t:]) > k2[19] + 2 * (2 * q + t) + 2
    else:
        assert gk + 22 <= gC[0]
        for q, (L, a, b) in enumerate(LA):
            info[f"A{q}"] = place_dag(S, L, a, b, window=C["win"])
            assert min(S.lastpos[34:]) > gC[0] + 4
    for q, (L, a, b) in enumerate(LB):
        info[f"B{q}"] = place_dag(S, L, a, b, window=C["win"])
        assert min(S.lastpos[34:]) > gC[1] + 4
    S.place(mi.L + xu.L + [I(f"v_add_u32 v{V_CR+1}, s{sRF}, v1")], k2[e0], k2[e0 + 6])
    sg = [I(f"v_add_u32 v{V_S0}, s{sW4K}, v1"), I(f"v_add_u32 v{V_S0+1}, {3*SLOT}, v{V_S0}")]
    S.place(sg, un["ws30"].pos[-1] + 1, gD + 90)
    for e in range(5):
        fin2 = K()
        d, y, x = OWN + 4 * e, Y + 4 * e, XU + 4 * e
        for i in range(4): fin2(f"v_fma_f32 v{d+i}, v{d+i}, v{y+i}, v{x+i}")
        fin2(f"v_cvt_pk_bf16_f32 v{d}, v{d}, v{d+1}")
        fin2(f"v_cvt_pk_bf16_f32 v{d+1}, v{d+2}, v{d+3}")
        fin2(f"buffer_store_dwordx2 {vr(d, 2)}, v{V_XO}, s[{S_OUT}:{S_OUT+3}], s{sXO} offen offset:{32*e}")
        a = min(gT["ysum"] + 4 * e + 6, gEnd)
        S.place(fin2.L, a, min(a + 4, gEnd + 1))
    pts = [(k2[k], f"k{k}") for k in range(0, 72, CFG["tsk"])] + [(gD + 20 * i, f"d{i}") for i in range(13)] + [(gT["ysum"] + 1, "ys"), (gEnd, "end")]
    for g, nm in pts:
        n = 1 if g < gD else 0
        S.gap[g] = S.gap[g][:n] + ST_(nm) + S.gap[g][n:]
    info = {k: v[1] for k, v in info.items()}
    info.update(A=S.est_cycles(0, k2[20]), B=S.est_cycles(k2[20], k2[40]), y=S.est_cycles(k2[40], gD), d=S.est_cycles(gD, gEnd),
                tail=S.used[gEnd], nm=gEnd)
    body, names = expand_stamps(P.L + pre + S.flat(), 2)
    body += stamp_end(len(names) + 2) + [I("s_endpgm")]
    if CFG["TS"]:
        body.append(I(f"; NAMES{typ} start karg " + " ".join(names) + " fin"))
    fin_ = finalize(body)
    check(fin_)
    return fin_ + slow, info


def check(L):
    pend = {"vm": [], "lgkm": []}
    lastw = {}
    owner = {}
    for n, ins in enumerate(L):
        if ins.kind in ("label", "meta"):
            continue
        if ins.text.startswith("s_waitcnt"):
            for c, nm in (("vm", "vmcnt"), ("lgkm", "lgkmcnt")):
                m = re.search(nm + r"\((\d+)\)", ins.text)
                if m:
                    k = int(m.group(1))
                    pend[c] = pend[c][len(pend[c]) - k:] if k < len(pend[c]) else pend[c]
                    if k == 0: pend[c] = []
            continue
        touched = ins.rd | ins.wr
        for c in pend:
            for p in pend[c]:
                if p.wr & touched and not ("pf" in p.flags and "pf" in ins.flags):
                    raise SystemExit(f"PENDING hazard at {n}: {ins.text}  <- {p.text}")
        for t in ins.need:
            o = owner.get(id(t))
            if o is not None:
                for r in o.wr & ins.rd:
                    if lastw.get(r) is not o:
                        raise SystemExit(f"CLOBBER at {n}: {ins.text} expects {o.text} but last writer {lastw[r].text}")
        st = [f for f in ins.flags if f.startswith("S:")]
        if st and ins.kind == "vm":
            for r in ins.rd:
                if (r == ("x", "m0") or r in (("s", sWDT), ("s", sHT), ("s", sYT))) and r in lastw:
                    st2 = [f for f in lastw[r].flags if f.startswith("S:")]
                    if st2 != st:
                        raise SystemExit(f"STREAM clash at {n}: {ins.text} {st} vs {lastw[r].text} {st2}")
        if ins.tok is not None and ins.tok.cls in pend:
            pend[ins.tok.cls].append(ins)
            owner[id(ins.tok)] = ins
            assert len(pend["vm"]) <= 63, f"vm overflow at {n}"
        for r in ins.wr:
            lastw[r] = ins


def build(path, verbose=True):
    lab = NAME + "_kernel"
    s = f"; generated by work/gen5.py mix={int(CFG['mix'])}\n; @launch grid=(256,1,1) block=(256,1,1) lds=163840\n"
    s += '.amdgcn_target "amdgcn-amd-amdhsa--gfx950"\n.text\n'
    s += f".globl {lab}\n.p2align 8\n.type {lab},@function\n{lab}:\n" + text(gen_head())
    for typ in (0, 1):
        L, info = gen_prog(typ)
        if verbose:
            nn = sum(1 for i in L if i.text.startswith("s_nop"))
            nw = sum(1 for i in L if i.text.startswith("s_waitcnt"))
            print("EO"[typ], info, "instrs", len(L), "nops", nn, "waits", nw)
        s += text(L)
    s += "L_end:\n  s_endpgm\n"
    s += '.section .rodata,"a"\n.p2align 6\n'
    s += (f".amdhsa_kernel {lab}\n  .amdhsa_next_free_vgpr 512\n  .amdhsa_next_free_sgpr 102\n  .amdhsa_accum_offset 256\n"
          "  .amdhsa_group_segment_fixed_size 0\n  .amdhsa_kernarg_size 96\n  .amdhsa_user_sgpr_count 2\n"
          "  .amdhsa_user_sgpr_kernarg_segment_ptr 1\n  .amdhsa_system_sgpr_workgroup_id_x 1\n.end_amdhsa_kernel\n")
    open(path, "w").write(s)


if __name__ == "__main__":
    for a in sys.argv[2:]:
        if a == "ts":
            CFG["TS"] = True
        else:
            k, v = a.split("=", 1)
            CFG[k] = eval(v)
    build(sys.argv[1] if len(sys.argv) > 1 else "v5.s")
```

```python
import sys, struct, re
sys.path.insert(0, "work")
from asmlib import *

NAME = "recurrent_scan__spectral_fnet__glu_gated_geglu__prompt"
W0, RF, STAT, CSD = 0, 0x1000, 0x8000, 0x10000
ABF, HF, WDF = 0x40000, 0x60000, 0x50000
WD, ABT, HH, YP, TSB, WS_SIZE = 0x100000, 0x300000, 0x800000, 0xE00000, 0x1900000, 0x1A00000
OOB = 0x7ff00000
SLOT = 36864
SPARE = 4 * SLOT
C1 = -2.0 * 0.7978845608028654 * 1.4426950408889634
L2E = 1.4426950408889634
MF = "v_mfma_f32_16x16x32_bf16"

MF16 = "v_mfma_f32_16x16x16_bf16"
CFG = dict(TS=False, nt_x="", nt_w="", nt_ws="", FS=2, rdsp=True, win=60, tsk=1, show=False, mix=True,
           ch=9.0, W=64, Q=2, lat=dict(h=400, m=900, c=1500, s=700), tm=22.0, dl=30,
           px=True, pgb=(4, 4), j3ld=2, j3st=6, j3fl=10, ini=((4, 38), (4, 38)), stl=(15, 11), st_ck=(18.5, 14),
           pw0=None, pw1=(24, 16), wdp=(21, 21), pwd=False, ckd=2.5, ab_end=24, ab_flag=27.5, abp=31, pab=False,
           ha_flag=43, epb_end=57, hp0=53, ph0=False, hb_flag=60, hp=65.5, ph1=True, gat=150, xres=19.5,
           rotd=True, ntf_ws=0, nt_pf=' sc1', nt_px=' sc1', nt_j3=' nt', wsoff=0, rotw=True, pc=0, wdm=(0, 4), hm=(0, 4, 5))


def f2h(f):
    return hex(struct.unpack("<I", struct.pack("<f", f))[0])


S_AUX, S_WS, S_X, S_GU, S_WA, S_WSQ, S_OUT = 4, 8, 12, 40, 44, 48, 52
sXQ, sRB, sCG, sCB4, sT64, sEB8, sB32, sKS4 = 56, 57, 58, 59, 60, 61, 62, 63
sNON, sSPIN, sW4K, sW5K, sSX, sSW, sSWS, sSWB = 64, 65, 66, 67, 68, 69, 70, 71
sAB = 72
sHB, sWDB, sYPUB, sYGA, sXO, sWDT, sHT, sYT = 76, 77, 78, 79, 80, 81, 82, 83
sU0, sU1 = 100, 101
sT0, sT1, sT2, sT3 = 16, 17, 18, 19
sSO, sSTL, sCSL, sEA0, sEA1, sEB0, sEB1, sFA, sFB = 21, 22, 23, 24, 25, 26, 27, 28, 29
sPAB, sPH, sPWD, sPY, sFY, sJ3D, sFJ, sRF, sLEAD, sSGN = 30, 31, 32, 33, 34, 35, 36, 37, 38, 39
sPG, sPW0, sPW1, sPD, sPA0, sPA1, sPE, sPL, sG1, sG2, sG3 = 88, 89, 90, 91, 92, 93, 94, 95, 96, 97, 99
sRE, sRL = sPW0, sPW1
sC1 = 76
sB0 = 98
sH8 = 4
STS = 84

V_G = 0
V_X, V_GU, V_WD, R_X, R_WD, R_GU = 4, 8, 12, 18, 22, 26
VJ3R, VJ3 = 12, 13
OWN, XU = 4, 24
V_WS, R_WS, R_AB, V_AB = 44, 48, 52, 54
ST, ONES, SEL = 56, 64, 56
V_CA, V_CR, V_NON, V_L0, V_POLL, V_XO, V_ST, V_H, TMP = 68, 69, 71, 72, 73, 74, 75, 76, 80
V_FAB, V_FH, V_FWD, V_FH2, V_DW = 88, 89, 90, 91, 92
V_PF, INI, NMB, V_S0 = 42, 252, 64, 44
V_40, V_D0, V_D1 = 17, 43, 69
XR = [4, 6, 12, 14, 18]
ACCA, ACCB, CSB = 96, 176, 240
FB = 160
ACS = 240
OWQ = SLOT
XCH = SLOT + 10240
STG = [3 * SLOT, 3 * SLOT + 16384, 0, 16384]
STG4 = 3 * SLOT + 32768


def srd(dst, lo, nbytes):
    return [I(f"s_mov_b32 s{dst}, s{lo}"), I(f"s_and_b32 s{dst+1}, s{lo+1}, 0xffff"),
            I(f"s_mov_b32 s{dst+2}, {hex(nbytes)}"), I(f"s_mov_b32 s{dst+3}, 0x20000")]


def srd_sel(dst, lo0, lo1, nbytes):
    return [I(f"s_cselect_b32 s{dst}, s{lo1}, s{lo0}"), I(f"s_cselect_b32 s{dst+1}, s{lo1+1}, s{lo0+1}"),
            I(f"s_and_b32 s{dst+1}, s{dst+1}, 0xffff"), I(f"s_mov_b32 s{dst+2}, {hex(nbytes)}"), I(f"s_mov_b32 s{dst+3}, 0x20000")]


class K:
    def __init__(self):
        self.L = []

    def __call__(self, t, need=(), **kw):
        i = I(t, need=need, **kw)
        self.L.append(i)
        return i.tok

    def ext(self, l):
        self.L.extend(l)


V_TS = 87
V_TS2 = 68


def stamp(i):
    if not CFG["TS"]:
        return []
    L = [I("s_waitcnt lgkmcnt(0)")]
    if i > 0:
        L.append(I(f"v_writelane_b32 v{V_TS if i - 1 < 64 else V_TS2}, s{STS + 2*((i-1) & 1)}, {(i-1) & 63}"))
    L.append(I(f"s_memrealtime s[{STS+2*(i & 1)}:{STS+2*(i & 1)+1}]"))
    return [L]


def ST_(name):
    return [I(f"; STAMP {name}")] if CFG["TS"] else []


def expand_stamps(L, n0):
    out, names = [], []
    for i in L:
        if i.text.startswith("; STAMP"):
            out += flat1(stamp(n0 + len(names)))
            names.append(i.text.split()[2])
        else:
            out.append(i)
    return out, names


def flat1(l):
    return [x for it in l for x in (it if isinstance(it, (list, tuple)) else [it])]


def stamp_end(n):
    if not CFG["TS"]:
        return []
    L = [I("s_waitcnt vmcnt(0)")] + flat1(stamp(n)) + flat1(stamp(n + 1))
    L += [I(f"v_writelane_b32 v{V_TS2}, s{sSPIN}, 63"), I(f"s_mov_b32 s16, {n + 1}"), I(f"v_writelane_b32 v{V_TS2}, s16, 62"),
          I("s_lshl_b32 s16, s2, 2"), I("s_add_u32 s16, s16, s3"), I("s_lshl_b32 s16, s16, 9"), I(f"s_add_u32 s16, s16, {hex(TSB)}"),
          I("v_lshlrev_b32 v1, 2, v2"),
          I(f"buffer_store_dword v{V_TS}, v1, s[8:11], s16 offen"),
          I(f"buffer_store_dword v{V_TS2}, v1, s[8:11], s16 offen offset:256"), I("s_waitcnt vmcnt(0) lgkmcnt(0)")]
    return L


T0, T1, T2, T3 = TMP, TMP + 1, TMP + 2, TMP + 3
SF, SD1, SD2, SA = ACCB, ACCB + 20, ACCB + 24, ACCB + 28
CSR, CSV, NM, VK = ACCB + 32, ACCB + 40, ACCB + 52, ACCB + 60


def gen_head():
    P = K()
    P.ext(flat1(stamp(0)))
    P("s_load_dwordx16 s[16:31], s[0:1], 0")
    P("s_load_dwordx8 s[32:39], s[0:1], 64")
    P("v_lshrrev_b32 v1, 6, v0")
    P("v_and_b32 v2, 63, v0")
    P("v_readfirstlane_b32 s3, v1")
    P("s_cmp_ge_u32 s2, 256")
    P("s_cbranch_scc1 L_end")
    if CFG["pc"]:
        n = CFG["pc"]
        P("s_getpc_b64 s[4:5]")
        P("s_lshr_b32 s6, s2, 3")
        P("s_lshl2_add_u32 s6, s6, s3")
        P(f"v_min_u32 v3, {n-1}, v2")
        P(f"s_mul_i32 s6, s6, {n}")
        P("v_add_lshl_u32 v3, v3, s6, 7")
        P("v_min_u32 v3, CODE_MAX, v3")
        P(f"global_load_dword v{V_D0}, v3, s[4:5]")
    P(f"s_bfe_u32 s{sXQ}, s2, 0x10002")
    P(f"s_bfe_u32 s{sRB}, s2, 0x30003")
    P(f"s_and_b32 s{sU0}, s2, 1")
    P(f"s_lshl3_add_u32 s{sRB}, s{sU0}, s{sRB}")
    P(f"s_lshr_b32 s{sCB4}, s2, 6")
    P(f"s_bfe_u32 s{sKS4}, s2, 0x20001")
    if CFG["mix"]:
        P(f"s_lshr_b32 s{sCG}, s2, 7")
        P(f"s_lshl1_add_u32 s{sCG}, s{sKS4}, s{sCG}")
    else:
        P(f"s_lshl2_add_u32 s{sCG}, s{sXQ}, s{sCB4}")
    P(f"s_and_b32 s{sC1}, s{sCG}, 3")
    P(f"s_lshr_b32 s{sB0}, s{sCG}, 1")
    P(f"s_lshl2_add_u32 s{sB0}, s{sB0}, s{sCG}")
    P(f"s_lshl1_add_u32 s{sT64}, s{sRB}, s{sXQ}")
    P(f"s_and_b32 s{sEB8}, s{sKS4}, 1")
    P(f"s_lshl1_add_u32 s{sEB8}, s{sCB4}, s{sEB8}")
    P(f"s_mov_b32 s{sSPIN}, 30000")
    P(f"s_lshl_b32 s{sW4K}, s3, 12")
    P(f"s_mul_i32 s{sW5K}, s3, 5120")
    P(f"s_lshl2_add_u32 s{sB32}, s{sRB}, s3")
    P(f"s_mul_i32 s{sSX}, s{sB32}, {32*1280}")
    P(f"s_and_b32 s{sU0}, s3, 1")
    P(f"s_mul_i32 s{sSWB}, s{sU0}, {32*3072}")
    P(f"s_lshl_b32 s{sU0}, s{sU0}, 6")
    P("v_lshlrev_b32 v1, 4, v2")
    P("v_add_u32 v3, 0x1000, v1")
    P(f"v_bfe_u32 v{T1}, v2, 4, 1")
    P(f"v_lshlrev_b32 v{T1}, 1, v{T1}")
    P(f"v_and_b32 v{T2}, 7, v2")
    P(f"v_xor_b32 v{T1}, v{T1}, v{T2}")
    P(f"v_lshlrev_b32 v{T1}, 4, v{T1}")
    P(f"v_lshrrev_b32 v{T0}, 3, v2")
    P(f"v_mul_u32_u24 v{V_X}, 1280, v{T0}")
    P(f"v_add_u32 v{V_X}, v{V_X}, v{T1}")
    P(f"v_add_u32 v{V_X+1}, {8*1280-1024}, v{V_X}")
    P(f"v_xor_b32 v{T2}, 64, v{V_X}")
    P(f"v_add_u32 v{V_X+2}, {2*(8*1280-1024)}, v{T2}")
    P(f"v_add_u32 v{V_X+3}, {3*(8*1280-1024)}, v{T2}")
    P(f"v_mul_u32_u24 v{V_GU}, 3072, v{T0}")
    P(f"v_add_u32 v{V_GU}, v{V_GU}, v{T1}")
    P(f"v_xor_b32 v{T3}, 64, v{V_GU}")
    P(f"v_add_u32 v{V_GU+1}, {8*3072-1024}, v{T3}")
    P(f"v_add_u32 v{V_GU+2}, {2*(8*3072-1024)}, v{V_GU}")
    P(f"v_add_u32 v{V_GU+3}, {3*(8*3072-1024)}, v{T3}")
    P(f"v_xor_b32 v{V_WD}, s{sU0}, v{V_X}")
    P(f"v_xor_b32 v{T3}, 64, v{V_WD}")
    P(f"v_add_u32 v{V_WD+1}, {8*1280-1024}, v{T3}")
    P(f"v_add_u32 v{V_WD+2}, {2*(8*1280-1024)}, v{V_WD}")
    P(f"v_add_u32 v{V_WD+3}, {3*(8*1280-1024)}, v{T3}")
    P(f"v_add_u32 v{V_WD+4}, {4*8*1280}, v{V_WD}")
    P(f"v_lshl_add_u32 v{V_WS}, v{T0}, 12, v{T1}")
    P(f"v_bfe_u32 v{T2}, v2, 2, 2")
    P(f"v_and_b32 v{T3}, 3, v2")
    P(f"v_lshrrev_b32 v{T1}, 4, v2")
    P(f"v_mul_u32_u24 v{SA}, 1280, v{T2}")
    P(f"v_lshl_add_u32 v{SA}, v{T3}, 6, v{SA}")
    P(f"v_lshl_add_u32 v{SA}, v{T1}, 4, v{SA}")
    P(f"v_min_u32 v{V_40}, 39, v2")
    P(f"v_lshlrev_b32 v{V_40}, 7, v{V_40}")
    P(f"s_lshl2_add_u32 s{sU1}, s{sRB}, s{sCB4}")
    P(f"s_lshl2_add_u32 s{sU1}, s{sU1}, s3")
    P(f"s_mul_i32 s{sU1}, s{sU1}, {8*1280}")
    P(f"s_add_u32 s{sHT}, s{sU1}, 5120")
    P(f"s_and_b32 s{sPD}, s{sRB}, 7")
    P(f"s_and_b32 s{sPG}, s3, 1")
    P(f"s_lshl1_add_u32 s{sPG}, s{sPD}, s{sPG}")
    P(f"s_mul_i32 s{sPG}, s{sPG}, 3072")
    P(f"s_lshl_b32 s{sYT}, s{sB0}, 7")
    P(f"s_add_u32 s{sPG}, s{sPG}, s{sYT}")
    P(f"s_lshl3_add_u32 s{sYT}, s{sC1}, s{sPD}")
    P(f"s_lshl2_add_u32 s{sYT}, s{sYT}, s3")
    P(f"s_mul_i32 s{sYT}, s{sYT}, {5*1280}")
    P(f"v_mul_u32_u24 v{V_PF}, 384, v{V_40}")
    P(f"v_min_u32 v{V_POLL}, 49, v2")
    P(f"v_lshlrev_b32 v{V_POLL}, 7, v{V_POLL}")
    P("s_waitcnt lgkmcnt(0)")
    P.ext(flat1(stamp(1)))
    P.ext(srd(S_X, 16, 2048 * 1280))
    if CFG["px"]:
        P(f"buffer_load_dword v{V_D0}, v{V_40}, s[{S_X}:{S_X+3}], s{sU1} offen{CFG['nt_px']}")
        P(f"buffer_load_dword v{V_D0}, v{V_40}, s[{S_X}:{S_X+3}], s{sHT} offen{CFG['nt_px']}")
    if CFG["wsoff"]:
        P(f"s_add_u32 s38, s38, {hex(CFG['wsoff'])}")
        P("s_addc_u32 s39, s39, 0")
    P.ext(srd(S_WS, 38, WS_SIZE))
    P(f"s_bitcmp1_b32 s2, {6 if CFG['mix'] else 1}")
    P("s_cbranch_scc1 O_prog")
    return finalize(P.L)


def gen_prog(typ):
    pf = "O" if typ else "E"
    INI = 252 if typ else 164
    P = K()
    slow = []
    ntx, ntw, ntws = CFG["nt_x"], CFG["nt_w"], CFG["nt_ws"]

    def tag(L, name):
        for i in flat1(L):
            i.flags.add("S:" + name)
        return L

    dma_tok = {}

    def dma_x(s):
        L = [I(f"s_add_u32 m0, s{sW4K}, {(s % 4)*SLOT}")]
        for p in range(4):
            L.append(I(f"buffer_load_dwordx4 v{V_X+p}, s[{S_X}:{S_X+3}], s{sSX} offen offset:{1024*p}{ntx} lds"))
        L.append(I(f"s_add_u32 s{sSX}, s{sSX}, 128"))
        return L

    def dma_gu(lds, sreg):
        L = [I(f"s_add_u32 m0, s{sW4K}, {lds}")]
        for p in range(4):
            L.append(I(f"buffer_load_dwordx4 v{V_GU+p}, s[{S_GU}:{S_GU+3}], s{sreg} offen offset:{1024*p}{ntw} lds"))
        L.append(I(f"s_add_u32 s{sreg}, s{sreg}, {64*3072}"))
        return L

    def dma_wd(s):
        b = (s % 4) * SLOT + 16384
        L = [I(f"s_add_u32 m0, s{sW5K}, {b}")]
        for p in range(4):
            L.append(I(f"buffer_load_dwordx4 v{V_WD+p}, s[{S_WA}:{S_WA+3}], s{sSW} offen offset:{1024*p}{ntw} lds"))
        L.append(I(f"s_add_u32 m0, s{sW5K}, {b + 4096}"))
        L.append(I(f"buffer_load_dwordx4 v{V_WD+4}, s[{S_WA}:{S_WA+3}], s{sSW} offen{ntw} lds"))
        L.append(I(f"s_add_u32 s{sSW}, s{sSW}, 128"))
        return L

    def last_vm(L):
        return [i for i in L if i.kind == "vm"][-1].tok

    def dma_stage(s):
        if s < 10:
            L = dma_x(s) + (dma_wd(s) if typ else dma_gu((s % 4) * SLOT + 16384, sSW))
        else:
            L = dma_gu((s % 4) * SLOT, sSWB) + dma_gu((s % 4) * SLOT + 16384, sSWB)
        dma_tok[s] = last_vm(L)
        return tag(L, f"dma{s}")

    def dma_ws(s):
        L = [I(f"s_add_u32 m0, s{sW4K}, {(s % 4)*SLOT}"), I(f"s_mul_i32 s{sAB + s % 4}, s{sSWS}, 160")]
        for p in range(4):
            L.append(I(f"buffer_load_dwordx4 v{V_WS+p}, s[{S_WSQ}:{S_WSQ+3}], s{sSWS} offen offset:{1024*p}{' nt' if s - 15 < CFG['ntf_ws'] else ntws} lds"))
        L.append(I(f"s_add_u32 s{sSWS}, s{sSWS}, 128"))
        L.append(I(f"s_and_b32 s{sSWS}, s{sSWS}, 0x7ff"))
        return tag(L, f"ws{s}")

    def dma_ab(s):
        b = (s % 4) * SLOT + 16384
        L = [I(f"s_add_u32 m0, s{sW5K}, {b}")]
        for p in range(4):
            L.append(I(f"buffer_load_dwordx4 v{V_AB}, s[8:11], s{sAB + s % 4} offen offset:{1024*p} sc1 lds"))
        L.append(I(f"s_add_u32 m0, s{sW5K}, {b + 4096}"))
        L.append(I(f"buffer_load_dwordx4 v{V_AB+1}, s[8:11], s{sAB + s % 4} offen sc1 lds"))
        dma_tok[s] = L[-1].tok
        return tag(L, f"ab{s}")

    npoll = [0]

    def poll(loads, check):
        k = npoll[0]; npoll[0] += 1
        li = [I(t) for t in loads]
        toks = [i.tok for i in li if i.tok is not None]
        chk = check(toks)
        grp = [chk[-1], I(f"s_cbranch_vccnz {pf}_slow{k}"), I(f"{pf}_ok{k}:")]
        S_ = [I(f"{pf}_slow{k}:")] + [I(t) for t in loads] + [I("s_waitcnt vmcnt(0)")] + check([])
        S_ += [I(f"s_cbranch_vccz {pf}_ok{k}"), I(f"s_sub_u32 s{sSPIN}, s{sSPIN}, 1"), I(f"s_cmp_gt_i32 s{sSPIN}, 0"),
               I(f"s_cbranch_scc1 {pf}_slow{k}"), I(f"s_branch {pf}_ok{k}")]
        slow.extend(finalize(S_))
        return li, chk[:-1] + [grp]

    def flag_poll(voff, soff):
        return poll([f"buffer_load_dword v{V_POLL}, v{voff}, s[8:11], s{soff} offen sc1"],
                    lambda need: [I(f"v_cmp_ne_u32 vcc, s{sNON}, v{V_POLL}", need=need)])

    def tag_check(regs):
        def chk(need):
            L = [I(f"v_xor_b32 v{V_POLL}, s{sNON}, v{regs[0]}", need=need)]
            for r in regs[1:]:
                L.append(I(f"v_xad_u32 v{V_POLL}, v{r}, s{sNON}, v{V_POLL}"))
            L.append(I(f"v_cmp_ne_u32 vcc, 0, v{V_POLL}"))
            return L
        return chk

    def flag_store(sreg, need):
        return I(f"buffer_store_dword v{V_NON}, v{V_L0}, s[8:11], s{sreg} offen sc1", need=need)

    def PF(voff, srd_, soff, kind, lines, off=0, late=False):
        return M(I(f"buffer_load_dword v{V_D1 if late else V_D0}, v{voff}, s[{srd_}:{srd_+3}], s{soff} offen offset:{off}{CFG['nt_pf'] if kind == 'c' else ' sc1'}",
                   flags=["pf"]), kind, lines)
    P(f"{pf}_prog:")
    if typ:
        P(f"s_cmp_eq_u32 s{sXQ}, 1")
        P.ext(srd_sel(S_WA, 22, 24, 640 * 1280))
        P.ext([PF(V_POLL, S_WA, sYT, "c", 50)])
        P(f"s_lshl2_add_u32 s{sSW}, s{sC1}, s3")
        P(f"s_mul_i32 s{sSW}, s{sSW}, {40*1280}")
    else:
        P("s_cmp_ge_u32 s3, 2")
        P.ext(srd_sel(S_GU, 28, 30, 640 * 3072))
        P.ext([PF(V_PF, S_GU, sPG, "c", 40)])
        P(f"s_lshl_b32 s{sSW}, s{sB0}, 7")
        P(f"s_add_u32 s{sSW}, s{sSW}, s{sSWB}")
    w0tok = P(f"buffer_load_dword v{V_NON}, off, s[8:11], 0 sc1", flags=["M:c1"])
    if typ:
        P("s_cmp_ge_u32 s3, 2")
        P.ext(srd_sel(S_GU, 28, 30, 640 * 3072))
    else:
        P.ext(srd(S_AUX, 32, 1536 * 1280))
    P(f"s_cmp_eq_u32 s{sXQ}, 1")
    P.ext(srd_sel(S_WSQ, 18, 20, 2048 * 4096))
    P.ext(srd(S_OUT, 34, 2048 * 1280))
    P.ext(ST_("p_ld"))
    if typ:
        P(f"s_mul_i32 s{sU1}, s{sC1}, 40")
        P(f"s_add_u32 s{sU1}, s{sU1}, s{sB32}")
        P(f"s_cmp_lt_u32 s{sB32}, 40")
        P(f"s_cselect_b32 s{sWDT}, 0, {hex(OOB)}")
        P(f"s_mul_i32 s{sHT}, s{sU1}, {4*1280}")
        P(f"s_add_u32 s{sHT}, s{sHT}, s{sWDT}")
        ssrd = S_WA
    else:
        P(f"s_lshl3_add_u32 s{sU1}, s{sRB}, s{sCG}")
        P(f"s_lshl2_add_u32 s{sU1}, s{sU1}, s3")
        P(f"s_mul_i32 s{sHT}, s{sU1}, {4*1280}")
        ssrd = S_X
        P(f"s_mov_b32 s{sYT}, s{sU1}")
        P(f"s_mul_i32 s{sPY}, s{sYT}, 205")
        P(f"s_lshr_b32 s{sPY}, s{sPY}, 11")
        P(f"s_mul_i32 s{sPY}, s{sPY}, {32*1280 - 1280}")
        P(f"s_lshl_b32 s{sWDT}, s{sYT}, 7")
        P(f"s_add_u32 s{sPY}, s{sPY}, s{sWDT}")
        P(f"s_cmp_lt_u32 s{sYT}, 480")
        P(f"s_cselect_b32 s{sWDT}, 0, {hex(OOB)}")
    FS = CFG["FS"]

    def flag_addr(dst, idx, base):
        P(f"s_lshl_b32 s{dst}, s{idx}, {FS}")
        P(f"s_add_u32 s{dst}, s{dst}, {hex(base)}")
    w1, w0 = sT2, sT3
    P(f"s_lshr_b32 s{w1}, s3, 1")
    P(f"s_and_b32 s{w0}, s3, 1")
    if typ:
        P(f"s_mul_i32 s{sCSL}, s{sCG}, 1280")
        P(f"s_add_u32 s{sCSL}, s{sCSL}, {hex(CSD)}")
        P(f"s_lshr_b32 s{sT0}, s{sRB}, 1")
        P(f"s_lshl2_add_u32 s{sT0}, s{sT0}, s3")
        P(f"s_and_b32 s{sT1}, s{sRB}, 1")
        P(f"s_lshl3_add_u32 s{sT0}, s{sT0}, s{sT1}")
        P(f"s_lshl3_add_u32 s{sSO}, s{sT0}, s{sCSL}")
        P(f"s_add_u32 s{sSO}, s{sSO}, s{sWDT}")
        P(f"s_lshl_b32 s{sT0}, s{sCG}, 6")
        P(f"s_add_u32 s{sT0}, s{sT0}, s{sB32}")
        P(f"s_mul_i32 s{sEA0}, s{sT0}, 10240")
        P(f"s_add_u32 s{sEA0}, s{sEA0}, {hex(ABT)}")
        P(f"s_add_u32 s{sEA1}, s{sEA0}, 8192")
        flag_addr(sFA, sT0, ABF)
        P(f"s_lshl_b32 s{sSGN}, s{sXQ}, 31")
        P(f"s_add_u32 s{sT1}, s{sB0}, 4")
    else:
        P(f"s_lshl_b32 s{sSO}, s{sU1}, 6")
        P(f"s_add_u32 s{sSO}, s{sSO}, {hex(STAT)}")
        P(f"s_lshl_b32 s{sJ3D}, s{sYT}, 12")
        P(f"s_add_u32 s{sJ3D}, s{sJ3D}, s{sWDT}")
        P(f"s_add_u32 s{sJ3D}, s{sJ3D}, {hex(WD)}")
        flag_addr(sFJ, sYT, WDF)
        P(f"s_add_u32 s{sFJ}, s{sFJ}, s{sWDT}")
        P(f"s_add_u32 s{sT1}, s{sB0}, 2")
    P(f"s_lshl_b32 s{sT0}, s{sT1}, 7")
    P(f"s_add_u32 s{sSWB}, s{sSWB}, s{sT0}")
    P(f"s_lshl_b32 s{sSTL}, s{sB32}, 9")
    P(f"s_add_u32 s{sSTL}, s{sSTL}, {hex(STAT)}")
    P(f"s_lshr_b32 s{sT0}, s{sB32}, 1")
    P(f"s_mul_i32 s{sEB0}, s{sT0}, 24")
    P(f"s_add_u32 s{sEB0}, s{sEB0}, s{sT1}")
    P(f"s_lshl2_add_u32 s{sEB0}, s{sEB0}, s3")
    P(f"s_lshl_b32 s{sEB0}, s{sEB0}, 11")
    P(f"s_add_u32 s{sEB0}, s{sEB0}, {hex(HH)}")
    P(f"s_xor_b32 s{sEB1}, s{sEB0}, 4096")
    P(f"s_lshl_b32 s{sFB}, s{sT0}, 5")
    P(f"s_add_u32 s{sFB}, s{sFB}, s{sT1}")
    P(f"s_lshl1_add_u32 s{sFB}, s{sFB}, s{w0}")
    flag_addr(sFB, sFB, HF)
    if not typ:
        P(f"s_sub_u32 s{sEA0}, s{sEB0}, 16384")
        P(f"s_sub_u32 s{sEA1}, s{sEB1}, 16384")
        P(f"s_sub_u32 s{sFA}, s{sFB}, {4 << FS}")
    P(f"s_lshl3_add_u32 s{sPA0}, s{sXQ}, s{sEB8}")
    P(f"s_lshl_b32 s{sPAB}, s{sPA0}, {5 + FS}")
    P(f"s_add_u32 s{sPAB}, s{sPAB}, {hex(ABF)}")
    P(f"s_lshl_b32 s{sPH}, s{sT64}, 6")
    P(f"s_mul_i32 s{sT0}, s3, 12")
    P(f"s_add_u32 s{sPH}, s{sPH}, s{sT0}")
    flag_addr(sPH, sPH, HF)
    P(f"s_mul_i32 s{sT1}, s{sEB8}, 5")
    P(f"s_lshr_b32 s{sPWD}, s{sT1}, 2")
    P(f"s_mul_i32 s{sT0}, s3, 120")
    P(f"s_add_u32 s{sPWD}, s{sPWD}, s{sT0}")
    flag_addr(sPWD, sPWD, WDF)
    P(f"s_lshl_b32 s{sT0}, s{sT0}, 2")
    P(f"s_add_u32 s{sWDB}, s{sT0}, s{sT1}")
    P(f"s_lshl_b32 s{sWDB}, s{sWDB}, 10")
    P(f"s_add_u32 s{sWDB}, s{sWDB}, {hex(WD)}")
    P(f"s_lshl2_add_u32 s{sHB}, s{sT64}, s3")
    P(f"s_mul_i32 s{sHB}, s{sHB}, {12*4096}")
    P(f"s_add_u32 s{sHB}, s{sHB}, {hex(HH)}")
    P(f"s_lshl2_add_u32 s{sT0}, s{sRB}, s{sCB4}")
    P(f"s_lshl2_add_u32 s{sT1}, s{sT0}, s3")
    P(f"s_lshl2_add_u32 s{sT1}, s{sT1}, s{sKS4}")
    P(f"s_mul_i32 s{sYPUB}, s{sT1}, 10240")
    P(f"s_add_u32 s{sYPUB}, s{sYPUB}, {hex(YP)}")
    P(f"s_cmp_eq_u32 s3, s{sKS4}")
    P(f"s_cselect_b32 s{sYPUB}, {hex(OOB)}, s{sYPUB}")
    P(f"s_cselect_b32 s{sRF}, 0, 10240")
    P(f"s_lshl2_add_u32 s{sT0}, s{sT0}, s{sKS4}")
    P(f"s_mul_i32 s{sYGA}, s{sT0}, 40960")
    P(f"s_lshl_b32 s{sT1}, s3, 11")
    P(f"s_add_u32 s{sYGA}, s{sYGA}, s{sT1}")
    P(f"s_add_u32 s{sYGA}, s{sYGA}, {hex(YP)}")
    for j, sg in enumerate((sG1, sG2, sG3)):
        P(f"s_xor_b32 s{sg}, s{sKS4}, {j+1}")
        P(f"s_mul_i32 s{sg}, s{sg}, 10240")
        P(f"s_add_u32 s{sg}, s{sg}, s{sYGA}")
    P(f"s_add_u32 s{sYGA}, s{sT1}, {OWQ}")
    P(f"s_lshl_b32 s{sT0}, s{w1}, 10")
    P(f"s_sub_u32 s{sT0}, s{sT0}, s{sT1}")
    P(f"s_add_u32 s{sT0}, s{sT0}, 8192")
    P(f"v_add_u32 v{V_G}, s{sT0}, v1")
    P(f"s_lshl1_add_u32 s{sXO}, s{sT64}, s{w1}")
    P(f"s_lshl3_add_u32 s{sXO}, s{sXO}, s{w0}")
    P(f"s_mul_i32 s{sXO}, s{sXO}, {4*1280}")
    P(f"s_mul_i32 s{sT0}, s{sEB8}, 160")
    P(f"s_add_u32 s{sXO}, s{sXO}, s{sT0}")
    P(f"s_or_b32 s{sT0}, s2, s3")
    P(f"s_cselect_b32 s{sLEAD}, {hex(OOB)}, 0")
    P(f"s_lshl1_add_u32 s{sSWS}, s{sCB4}, s{sRB}" if CFG["rotw"] else f"s_mov_b32 s{sSWS}, s{sRB}")
    P(f"s_lshl_b32 s{sSWS}, s{sSWS}, 8")
    P(f"s_and_b32 s{sSWS}, s{sSWS}, 0x7ff")
    P(f"s_add_u32 s{sPW1}, s{sSWS}, 256")
    P(f"s_and_b32 s{sPW1}, s{sPW1}, 0x7ff")
    P(f"s_lshl_b32 s{sT0}, s{sB32}, 17")
    P(f"s_and_b32 s{sT1}, s{sKS4}, 1")
    P(f"s_lshl_b32 s{sT1}, s{sT1}, 11")
    P(f"s_add_u32 s{sT0}, s{sT0}, s{sT1}")
    P(f"v_add_u32 v{V_WS}, s{sT0}, v{V_WS}")
    P(f"s_add_u32 s{sPW0}, s{sSWS}, s{sT0}")
    P(f"s_add_u32 s{sPW1}, s{sPW1}, s{sT0}")
    P(f"v_add_u32 v{V_WS+1}, {8*4096-1024}, v{V_WS}")
    P(f"v_xor_b32 v{V_WS+3}, 64, v{V_WS}")
    P(f"v_add_u32 v{V_WS+2}, {2*(8*4096-1024)}, v{V_WS+3}")
    P(f"v_add_u32 v{V_WS+3}, {3*(8*4096-1024)}, v{V_WS+3}")
    P(f"s_mul_i32 s{sT0}, s{sPA0}, {32*10240}")
    P(f"s_add_u32 s{sT0}, s{sT0}, s{sW5K}")
    P(f"s_add_u32 s{sT0}, s{sT0}, {hex(ABT)}")
    P(f"v_add_u32 v{V_AB}, s{sT0}, v1")
    P(f"v_add_u32 v{V_AB+1}, s{sT0}, v3")
    P(f"s_add_u32 s{sPA0}, s{sT0}, s{sW5K}")
    P(f"s_mul_i32 s{sT0}, s{sSWS}, 160")
    P(f"s_add_u32 s{sPA0}, s{sPA0}, s{sT0}")
    P(f"s_add_u32 s{sPA1}, s{sPA0}, 5120")
    P(f"s_mul_i32 s{sPD}, s{sPD}, 640")
    P(f"s_add_u32 s{sPD}, s{sPD}, s{sWDB}")
    P(f"s_lshl_b32 s{sPE}, s{sCB4}, 12")
    P(f"s_lshl1_add_u32 s{sPL}, s{sPE}, s{sHB}")
    P(f"s_add_u32 s{sPL}, s{sPL}, 16384")
    P(f"s_add_u32 s{sPE}, s{sPE}, s{sHB}")
    if CFG["rotd"]:
        assert not CFG["pw0"]
        P(f"s_xor_b32 s{sRE}, s{sRB}, s{sCB4}")
        P(f"s_and_b32 s{sRE}, s{sRE}, 3")
        P(f"s_lshl_b32 s{sRE}, s{sRE}, 12")
        P(f"s_lshl_b32 s{sRL}, s{sCB4}, 1")
        P(f"s_xor_b32 s{sRL}, s{sRL}, s{sRB}")
        P(f"s_and_b32 s{sRL}, s{sRL}, 7")
        P(f"s_lshl_b32 s{sRL}, s{sRL}, 12")
        P(f"s_sub_u32 s{sHB}, s{sHB}, 16384")
        P(f"s_sub_u32 s{sWDB}, s{sWDB}, 163840")
    P(f"s_mul_i32 s{sT0}, s{w0}, 5120")
    P(f"s_add_u32 s{sT0}, s{sT0}, 16384")
    P(f"v_add_u32 v{R_AB}, s{sT0}, v1")
    P(f"v_add_u32 v{R_AB+1}, {2*SLOT}, v{R_AB}")
    P(f"v_bfe_u32 v{T0}, v2, 3, 1")
    P(f"v_lshlrev_b32 v{T0}, 2, v{T0}")
    P(f"v_and_b32 v{TMP+4}, 2, v2")
    P(f"v_or_b32 v{T0}, v{T0}, v{TMP+4}")
    P(f"v_xor_b32 v{T0}, v{T0}, v{T1}")
    P(f"v_lshlrev_b32 v{T0}, 4, v{T0}")
    P(f"v_lshl_add_u32 v{V_ST}, v{T2}, 3, v{T3}")
    P(f"v_lshl_add_u32 v{R_WS}, v{V_ST}, 7, v{T0}")
    P(f"v_add_u32 v{R_X}, s{sW4K}, v{R_WS}")
    P(f"v_xor_b32 v{R_X}, s{sU0}, v{R_X}")
    P(f"v_xor_b32 v{R_X+1}, 64, v{R_X}")
    P(f"v_add_u32 v{R_X+2}, {2*SLOT}, v{R_X}")
    P(f"v_add_u32 v{R_X+3}, {2*SLOT}, v{R_X+1}")
    P(f"s_lshl_b32 s{sT0}, s{w1}, 13")
    P(f"v_add_u32 v{R_WS}, s{sT0}, v{R_WS}")
    P(f"v_xor_b32 v{R_WS+1}, 64, v{R_WS}")
    P(f"v_add_u32 v{R_WS+2}, {2*SLOT}, v{R_WS}")
    P(f"v_add_u32 v{R_WS+3}, {2*SLOT}, v{R_WS+1}")
    if typ:
        P(f"v_and_b32 v{R_WD}, 15, v2")
        P(f"v_lshl_add_u32 v{R_WD}, v{R_WD}, 7, v{T0}")
        P(f"v_add_u32 v{R_WD}, 16384, v{R_WD}")
        P(f"v_xor_b32 v{R_WD}, s{sU0}, v{R_WD}")
        P(f"v_xor_b32 v{R_WD+1}, 64, v{R_WD}")
        P(f"v_add_u32 v{R_WD+2}, {2*SLOT}, v{R_WD}")
        P(f"v_add_u32 v{R_WD+3}, {2*SLOT}, v{R_WD+1}")
    P(f"v_lshl_add_u32 v{R_GU}, v{T1}, 3, v{T2}")
    P(f"v_lshlrev_b32 v{R_GU}, 7, v{R_GU}")
    P(f"v_lshl_add_u32 v{R_GU}, v{T3}, 3, v{R_GU}")
    P(f"v_bfe_u32 v{R_GU+1}, v2, 3, 2")
    P(f"v_lshl_add_u32 v{R_GU}, v{R_GU+1}, 5, v{R_GU}")
    P(f"s_lshl_b32 s{sT0}, s{w1}, 6")
    P(f"s_lshl_b32 s{sT1}, s{w0}, 12")
    P(f"s_or_b32 s{sT0}, s{sT0}, s{sT1}")
    P(f"v_xor_b32 v{R_GU}, s{sT0}, v{R_GU}")
    for i in range(1, 8):
        P(f"v_xor_b32 v{R_GU+i}, {32*(i & 3) + 4096*(i >> 2)}, v{R_GU}")
    for i in range(8):
        P(f"v_add_u32 v{R_GU+8+i}, {2*SLOT}, v{R_GU+i}")
    if not typ:
        P(f"v_lshl_add_u32 v{VJ3R}, v{T1}, 2, v{T2}")
        P(f"v_lshlrev_b32 v{VJ3R}, 7, v{VJ3R}")
        P(f"v_lshl_add_u32 v{VJ3R}, v{T3}, 3, v{VJ3R}")
        P(f"v_bfe_u32 v{VJ3}, v2, 3, 1")
        P(f"v_lshl_add_u32 v{VJ3R}, v{VJ3}, 5, v{VJ3R}")
        P(f"v_add_u32 v{VJ3R}, s{sW4K}, v{VJ3R}")
        P(f"v_add_u32 v{VJ3R}, {SPARE}, v{VJ3R}")
        P(f"v_xor_b32 v{VJ3}, 32, v{VJ3R}")
    else:
        P(f"s_add_u32 s{sT0}, s{sW4K}, {SPARE + 1024}")
        P(f"v_lshl_add_u32 v{VK}, v{V_ST}, 2, s{sT0}")
        P(f"v_lshl_add_u32 v{VK+1}, v{T1}, 5, s{sT0}")
        P(f"v_and_b32 v{VK+2}, 15, v2")
        P(f"v_mul_u32_u24 v{SA+3}, 80, v{VK+2}")
        P(f"v_add_u32 v{SA+3}, s{sT0}, v{SA+3}")
        P(f"v_lshl_add_u32 v{SA+2}, v{T1}, 3, v{SA+3}")
        P(f"v_lshlrev_b32 v{VK+2}, 4, v{VK+2}")
    P(f"s_lshl_b32 s{sT0}, s{w1}, 8")
    P(f"s_add_u32 s{sT0}, s{sT0}, {SPARE}")
    P(f"v_and_b32 v{V_CR}, 15, v2")
    P(f"v_lshl_add_u32 v{V_CR}, v{V_CR}, 4, s{sT0}")
    P(f"v_xor_b32 v{V_CR+1}, 256, v{V_CR}")
    P(f"v_lshl_add_u32 v{V_CA}, s{w0}, 2, v{V_CR}")
    P(f"v_bfe_u32 v{TMP+4}, v2, 5, 1")
    P(f"v_lshl_add_u32 v{V_CA}, v{TMP+4}, 9, v{V_CA}")
    P(f"v_bfe_u32 v{TMP+4}, v2, 4, 1")
    P(f"v_lshl_add_u32 v{V_CA}, v{TMP+4}, 3, v{V_CA}")
    for i in range(4):
        P(f"v_mov_b32 v{ONES+i}, 0x3f803f80")
        P(f"v_mov_b32 v{INI+i}, -1")
    for j in range(4):
        P(f"v_cmp_eq_u32 vcc, {j}, v{T2}")
        P(f"v_cndmask_b32 v{TMP+4}, 0, v{ONES}, vcc")
        for i in range(4):
            P(f"v_accvgpr_write_b32 a{ACS + 4*j + i}, v{TMP+4}")
    P(f"v_mul_u32_u24 v{V_XO}, 1280, v{V_ST}")
    P(f"v_lshl_add_u32 v{V_XO}, v{T1}, 3, v{V_XO}")
    P(f"v_lshlrev_b32 v{V_ST}, 4, v{V_ST}")
    for t in range(4):
        P(f"s_add_u32 s{sT0}, s3, {t+1}")
        P(f"s_and_b32 s{sT0}, s{sT0}, 3")
        P(f"v_lshl_add_u32 v{V_H+t}, s{sT0}, 10, v1")
        P(f"s_mul_i32 s{sT0}, s{sT0}, 15360")
        P(f"v_add_u32 v{V_DW+t}, s{sT0}, v1")
    P(f"v_and_b32 v{V_FAB}, 31, v2")
    P(f"v_lshlrev_b32 v{V_FAB}, {FS}, v{V_FAB}")
    P(f"v_lshlrev_b32 v{V_FH}, {FS}, v{T3}")
    P(f"v_and_b32 v{V_FH2}, 7, v2")
    P(f"v_add_lshl_u32 v{V_FH2}, v{V_FH2}, 4, {FS}")
    P(f"v_lshrrev_b32 v{V_FWD}, 1, v2")
    P(f"v_min_u32 v{V_FWD}, 11, v{V_FWD}")
    P(f"v_mul_u32_u24 v{V_FWD}, 10, v{V_FWD}")
    P(f"v_and_b32 v{TMP+4}, 1, v2")
    P(f"v_add_lshl_u32 v{V_FWD}, v{TMP+4}, v{V_FWD}, {FS}")
    P(f"v_mov_b32 v{TMP+4}, {hex(OOB)}")
    P("v_cmp_eq_u32 vcc, 0, v2")
    P(f"v_cndmask_b32 v{V_L0}, v{TMP+4}, v2, vcc")
    P(f"v_mul_u32_u24 v{TMP+5}, 20, v{T1}")
    P(f"v_cmp_eq_u32 vcc, v{TMP+5}, v2")
    P(f"v_lshlrev_b32 v{SA+1}, 4, v{T1}")
    P(f"v_cndmask_b32 v{SA+1}, v{TMP+4}, v{SA+1}, vcc")
    P.ext(ST_("p_set"))
    P.ext(dma_stage(0))
    stok = [P(f"buffer_load_dwordx4 {vr(SF + 4*i, 4)}, v{SA}, s[{ssrd}:{ssrd+3}], s{sHT} offen offset:{256*i}") for i in range(5)]
    P.ext(dma_stage(1))
    P.ext(ST_("p_ld2"))
    P(f"v_readfirstlane_b32 s{sNON}, v{V_NON}", need=[w0tok])
    P(f"s_mul_i32 s{sNON}, s{sNON}, 1664525")
    P(f"s_add_u32 s{sNON}, s{sNON}, 1013904223")
    P(f"v_mov_b32 v{V_NON}, s{sNON}")

    S = Sched()
    CS = 20 if typ else 160
    ksteps = []
    xtok = {}

    def xreg(ks, T):
        return ar(4 * (2 * ks + T), 4)

    def gu_part(rd, m, sl, half, kap, buf, ks, acc):
        for f in (0, 1, 4, 5, 2, 3, 6, 7):
            mat, t = divmod(f, 4)
            tk = []
            for hh in range(2):
                off = (sl & 1) * SLOT + 16384 * half + 8192 * mat + 512 * hh
                i = I(f"ds_read_b64_tr_b16 {ar(buf + 4*f + 2*hh, 2)}, v{R_GU + 8*(sl >> 1) + 4*kap + t} offset:{off}")
                rd.append(i); tk.append(i.tok)
            for T in range(2):
                d = vr(acc + 4 * (2 * f + T), 4)
                m.append(I(f"{MF} {d}, {ar(buf + 4*f, 4)}, {xreg(ks, T)}, {'0' if ks == 0 else d}", need=tk + [xtok[ks, T]]))
            if kap == 0 and t < 2:
                d = vr(CS, 4)
                m.append(I(f"{MF} {d}, {ar(ACS + 4*(2*mat + t), 4)}, {ar(buf + 4*f, 4)}, {'0' if ks == 0 and f == 0 else d}", need=tk))

    def mk_passA(ks):
        s, kap = divmod(ks, 2)
        sl = s % 4
        buf = FB + 40 * (len(ksteps) % 2)
        rd, m = [], []
        for T in range(2):
            i = I(f"ds_read_b128 {xreg(ks, T)}, v{R_X + 2*(sl >> 1) + kap} offset:{(sl & 1)*SLOT + 512*T}")
            rd.append(i); xtok[ks, T] = i.tok
        if typ:
            for t in range(10):
                i = I(f"ds_read_b128 {ar(buf + 4*t, 4)}, v{R_WD + 2*(sl >> 1) + kap} offset:{(sl & 1)*SLOT + 2048*t}")
                rd.append(i)
                for T in range(2):
                    d = vr(ACCA + 4 * (2 * t + T), 4)
                    m.append(I(f"{MF} {d}, {xreg(ks, T)}, {ar(buf + 4*t, 4)}, {'0' if ks == 0 else d}", need=[i.tok, xtok[ks, T]]))
        else:
            gu_part(rd, m, sl, 1, kap, buf, ks, ACCA)
        ksteps.append(dict(rd=rd, m=m, stage=s, first=kap == 0))

    def mk_passB(ks):
        s = 10 + ks // 4
        q = ks % 4
        buf = FB + 40 * (len(ksteps) % 2)
        rd, m = [], []
        gu_part(rd, m, s % 4, q >> 1, q & 1, buf, ks, ACCB)
        ksteps.append(dict(rd=rd, m=m, stage=s, first=q == 0))

    def mk_y(k):
        s, kap = 15 + k // 2, k % 2
        sl = s % 4
        buf = FB + 40 * (len(ksteps) % 2)
        m, wt, ab = [], [], []
        for tt in range(4):
            wt.append(I(f"ds_read_b128 {ar(buf + 4*tt, 4)}, v{R_WS + 2*(sl >> 1) + kap} offset:{(sl & 1)*SLOT + 4096*(tt >> 1) + 512*(tt & 1)}"))
        for e in range(5):
            ab.append(I(f"ds_read_b128 {ar(buf + 16 + 4*e, 4)}, v{R_AB + (sl >> 1)} offset:{(sl & 1)*SLOT + 1024*(10*kap + e)}"))
        rd = [ab[0]] + wt + ab[1:]
        for e in range(5):
            for tt in range(4):
                d = vr(ACCA + 4 * (5 * tt + e), 4)
                m.append(I(f"{MF} {d}, {ar(buf + 16 + 4*e, 4)}, {ar(buf + 4*tt, 4)}, {'0' if k == 0 else d}", need=[ab[e].tok, wt[tt].tok]))
        ksteps.append(dict(rd=rd, m=m, stage=s, first=kap == 0))

    for ks in range(20): mk_passA(ks)
    for ks in range(20): mk_passB(ks)
    for k in range(32): mk_y(k)

    dmaL = {s: dma_stage(s) for s in range(2, 15)}
    wsL = {s: dma_ws(s) for s in range(15, 31)}
    abL = {s: dma_ab(s) for s in range(15, 31)}

    cspub, csrd = {}, {}
    for ps in (0, 1):
        if ps == 0 and typ:
            continue
        cspub[ps] = [I(f"v_cvt_pk_bf16_f32 v{CS+1}, v{CS}, v{CS}"), I(f"v_and_b32 v{CS+1}, 0xffff0000, v{CS+1}"),
                     I(f"v_sub_f32 v{CS+1}, v{CS}, v{CS+1}"), I(f"v_cvt_pk_bf16_f32 v{CS+1}, v{CS}, v{CS+1}"),
                     I(f"ds_write_b32 v{V_CA}, v{CS+1} offset:{4096*ps}")]
        csrd[ps] = {(p, mat): I(f"ds_read_b128 {vr(CSB + 8*p + 4*mat, 4)}, v{V_CR+p} offset:{4096*ps + 512*mat}")
                    for p in range(2) for mat in range(2)}
    ini = [I(f"s_add_u32 s{sYT}, s{sYPUB}, 8192")]
    for u in range(10):
        v, so, off = (1, sYPUB, 1024 * u) if u < 4 else ((3, sYPUB, 1024 * (u - 4)) if u < 8 else (1, sYT, 1024 * (u - 8)))
        ini.append(I(f"buffer_store_dwordx4 {vr(INI, 4)}, v{v}, s[8:11], s{so} offen offset:{off} sc1"))
    tag(ini, "ini")

    bar = {}
    kpos = []
    gC = {}
    pre = ST_("p_non") + [I("s_barrier", need=[dma_tok[0]])] + ST_("p_bar") + ksteps[0]["rd"]
    for K_, ks in enumerate(ksteps):
        g0 = S.n()
        kpos.append(g0)
        for m in ks["m"]:
            S.mfma(m)
        if K_ in (19, 39) and (K_ // 20) in cspub:
            acc = ACCB if K_ == 39 else ACCA
            gC[K_ // 20] = S.n()
            for p in range(2):
                for T in range(2):
                    for t2 in range(2):
                        for mat in range(2):
                            d = vr(acc + 4 * (2 * (4 * mat + 2 * p + t2) + T), 4)
                            S.mfma(I(f"{MF16} {d}, {vr(CSB + 8*p + 4*mat + 2*t2, 2)}, {vr(NMB + 2*T, 2)}, {d}",
                                     need=[csrd[K_ // 20][p, mat].tok]))
        if K_ == 1:
            for i in range(5):
                S.mfma(I(f"{MF} {vr(SD1, 4)}, {vr(ONES, 4)}, {vr(SF + 4*i, 4)}, {'0' if i == 0 else vr(SD1, 4)}", need=[stok[i]]))
                if not typ:
                    S.mfma(I(f"{MF} {vr(SD2, 4)}, {vr(SF + 4*i, 4)}, {vr(SF + 4*i, 4)}, {'0' if i == 0 else vr(SD2, 4)}", need=[stok[i]]))
        gend = S.n()
        nx = ksteps[K_ + 1] if K_ + 1 < len(ksteps) else None
        if nx is not None and nx["first"]:
            need = [dma_tok[nx["stage"]], ks["rd"][-1].tok]
            if K_ in (19, 39) and (K_ // 20) in cspub:
                need.append(cspub[K_ // 20][-1].tok)
            S.put(g0, [I("s_barrier", need=need)])
            bar[nx["stage"]] = g0
        else:
            S.put(g0, [wait_for(ks["rd"][-1].tok)])
            S.used[g0] += 4
        if nx is not None:
            rds = nx["rd"]
            if K_ in (19, 39) and (K_ // 20) in cspub:
                rds = list(csrd[K_ // 20].values()) + rds
            if CFG["rdsp"] and len(rds) > gend - 4 - g0 - 1:
                S.place(rds, g0 + 1, gend - 3, cap=8, spread=True)
            else:
                S.place(rds, g0 + 1, gend - (2 if nx["first"] else 4), cap=4)
        if K_ in (18, 38) and (K_ // 20) in cspub:
            S.place(cspub[K_ // 20], g0 + 14, gend - 2)
    kpos.append(S.n())

    ACCD = FB
    wdreg, hreg, wdtok, htok = {}, {}, {}, {}
    for kk in range(8):
        for e in range(5): wdreg[kk, e] = ar(20 * kk + 4 * e, 4)
    for kk in range(4):
        for t in range(4): hreg[kk, t] = vr(ACCB + 16 * kk + 4 * t, 4)
    for t in range(4):
        hreg[4, t] = vr(240 + 4 * t, 4)
        hreg[5, t] = ar(240 + 4 * t, 4)
        hreg[6, t] = hreg[0, t]
        hreg[7, t] = hreg[1, t]
    for e in range(5):
        wdreg[8, e] = ar(220 + 4 * e, 4)
        for j in range(3): wdreg[9 + j, e] = wdreg[j, e]
    for j in range(4):
        hreg[8 + j, 0] = hreg[2, j]
        hreg[8 + j, 1] = hreg[3, j]
        hreg[8 + j, 2] = wdreg[3, j]
        hreg[8 + j, 3] = wdreg[4, j]

    def kaddr(dst, base, kk, mul):
        if not CFG["rotd"]:
            return [I(f"s_add_u32 s{dst}, s{base}, {4096*mul*kk}")]
        L = [I(f"s_xor_b32 s{dst}, s{sRE if kk < 4 else sRL}, {4096*(kk+4)}")]
        if mul != 1:
            L.append(I(f"s_mul_i32 s{dst}, s{dst}, {mul}"))
        return L + [I(f"s_add_u32 s{dst}, s{dst}, s{base}")]

    def wd_load(kk):
        L = kaddr(sWDT, sWDB, kk, 10)
        for e in range(5):
            v, o = (1, 1024 * e) if e < 4 else (3, 0)
            L.append(I(f"buffer_load_dwordx4 {wdreg[kk, e]}, v{v}, s[8:11], s{sWDT} offen offset:{o} sc1"))
            wdtok[kk, e] = L[-1].tok
        return tag(L, f"wd{kk}")

    def h_load(kk):
        L = kaddr(sHT, sHB, kk, 1)
        for t in range(4):
            L.append(I(f"buffer_load_dwordx4 {hreg[kk, t]}, v{V_H+t}, s[8:11], s{sHT} offen sc1"))
            htok[kk, t] = L[-1].tok
        return tag(L, f"h{kk}")

    def h_load_t(t):
        L = []
        for j in range(4):
            L.append(I(f"buffer_load_dwordx4 {hreg[8+j, t]}, v{V_H+t}, s[8:11], s{sH8+j} offen sc1"))
            htok[8 + j, t] = L[-1].tok
        return L

    def wd_stage(kk):
        j = kk - 8
        L = kaddr(sWDT, sWDB, kk, 10) + [I(f"s_add_u32 m0, s{sW4K}, {STG[j]}")]
        for e in range(4):
            L.append(I(f"buffer_load_dwordx4 v1, s[8:11], s{sWDT} offen offset:{1024*e} sc1 lds"))
        L.append(I(f"s_add_u32 m0, s{sW4K}, {STG4 + 1024*j}"))
        L.append(I(f"buffer_load_dwordx4 v3, s[8:11], s{sWDT} offen sc1 lds"))
        R = []
        for e in range(5):
            a = STG[j] + 1024 * e if e < 4 else STG4 + 1024 * j
            v, o = (V_S0 + 1, a - 3 * SLOT) if a >= 3 * SLOT else (V_S0, a)
            R.append(I(f"ds_read_b128 {wdreg[kk, e]}, v{v} offset:{o}", need=[L[-1].tok]))
            wdtok[kk, e] = R[-1].tok
        return tag(L, f"wd{kk}"), R
    wdL = {kk: wd_load(kk) for kk in range(8)}
    wdS = {kk: wd_stage(kk) for kk in range(8, 12)}
    hL = {kk: h_load(kk) for kk in range(8)}
    htL = {t: h_load_t(t) for t in range(4)}

    def dacc(t, e):
        return ar(ACCD + 4 * (5 * t + e), 4) if t < 3 else vr(OWN + 4 * e, 4)

    def d_mfma(kk, t, e):
        d = dacc(t, e)
        S.mfma(I(f"{MF} {d}, {wdreg[kk, e]}, {hreg[kk, t]}, {'0' if kk == 0 else d}", need=[wdtok[kk, e], htok[kk, t]]))
    gD = S.n()
    for kk in range(8):
        for e in range(5):
            for t in range(4): d_mfma(kk, t, e)
    GA, Y, RED = ACCA, ACCA + 48, ACCB
    gtxt = []
    for s, sg in enumerate((sG1, sG2, sG3)):
        for u in range(3):
            v = 1 if u < 2 else V_G
            gtxt.append(f"buffer_load_dwordx4 {vr(GA + 12*s + 4*u, 4)}, v{v}, s[8:11], s{sg} offen offset:{1024*u if u < 2 else 0} sc1")

    def gat_check(need):
        L = [I(f"v_max3_u32 v{V_POLL}, v{GA}, v{GA+4}, v{GA+8}", need=need[:3])]
        for i in range(3, 9, 2):
            L.append(I(f"v_max3_u32 v{V_POLL}, v{V_POLL}, v{GA+4*i}, v{GA+4*i+4}", need=need[i:i+2]))
        L.append(I(f"v_cmp_eq_u32 vcc, -1, v{V_POLL}"))
        return L
    gown = [I(f"v_add_u32 v{TMP+4}, s{sYGA}, v1"), I(f"v_add_u32 v{TMP+5}, s{sYGA}, v{V_G}")]
    gown += [I(f"ds_read_b128 {vr(GA + 36 + 4*u, 4)}, v{TMP + 4 + u // 2} offset:{1024*(u & 1)}") for u in range(3)]
    gat, gck = poll(gtxt, gat_check)
    tag(gat, "gat")
    gT = {}
    for t in range(3):
        gT[t] = S.n()
        for kk in range(8, 12):
            for e in range(5): d_mfma(kk, t, e)
    gT[3] = S.n()
    for e in range(5):
        for kk in range(8, 12): d_mfma(kk, 3, e)
    gT["ysum"] = S.n()
    for e in range(5):
        for s in range(4):
            sel = vr(SEL + 6, 4) if e == 4 else (vr(SEL + 2, 4) if e % 2 == 0 else vr(SEL, 4))
            d = vr(Y + 4 * e, 4)
            S.mfma(I(f"{MF} {d}, {sel}, {vr(GA + 12*s + 4*(e // 2), 4)}, {'0' if s == 0 else d}", need=[gown[2 + e // 2].tok] if s == 3 else []))
    gEnd = S.n()
    k2 = kpos

    def kof(g):
        k = max(i for i in range(len(k2)) if k2[i] <= g)
        return round(k + (g - k2[k]) / 20, 2)

    C = CFG
    info = {}
    UN = []

    def kg(k):
        a = int(k)
        return k2[a] + int(round((k - a) * (k2[a + 1] - k2[a])))

    def U(name, items, early, prio, late=None, after=()):
        UN.append(Unit(name, items, early, prio, late, after))
        return UN[-1]

    def UA(name, items, at, **kw):
        at = at[typ] if isinstance(at, tuple) else at
        return U(name, items, kg(at) + 1, 0, **kw)
    DL = C["dl"]
    prevD = []
    for s_ in range(2, 15):
        L = dmaL[s_]
        h_ = [n for n, i_ in enumerate(L) if "m0" in i_.text.split(",")[0]][1]
        e_ = bar[s_ - 3] + 1 if s_ >= 4 else 0
        prevD = [U(f"D{s_}a", L[:h_], e_, bar[s_] - DL - 1, after=prevD)]
        prevD = [U(f"D{s_}b", L[h_:], e_, bar[s_] - DL, after=prevD)]
    sf = K()
    a0, a1, a2, a3 = SF, SF + 1, SF + 2, SF + 3
    dp = "row_mask:0xf bank_mask:0xf"
    if typ:
        sf(f"v_add_f32_dpp v{a0}, v{SD1}, v{SD1} quad_perm:[1,0,3,2] {dp}")
        sf(f"v_mov_b32 v{a1}, v{V_NON}")
        sf(f"v_add_f32_dpp v{a0}, v{a0}, v{a0} quad_perm:[2,3,0,1] {dp}")
        sf(f"buffer_store_dwordx2 {vr(a0, 2)}, v{SA+1}, s[8:11], s{sSO} offen sc1")
    else:
        sf(f"v_add_f32_dpp v{a0}, v{SD1}, v{SD1} quad_perm:[1,0,3,2] {dp}")
        sf(f"v_mov_b32_dpp v{a1}, v{SD2} quad_perm:[0,0,0,0] {dp}")
        sf(f"v_add_f32_dpp v{a1}, v{SD2+1}, v{a1} quad_perm:[1,1,1,1] {dp}")
        sf(f"v_add_f32_dpp v{a0}, v{a0}, v{a0} quad_perm:[2,3,0,1] {dp}")
        sf(f"v_add_f32_dpp v{a1}, v{SD2+2}, v{a1} quad_perm:[2,2,2,2] {dp}")
        sf(f"v_mul_f32 v{a0}, {f2h(-1.0/640)}, v{a0}")
        sf(f"v_add_f32_dpp v{a1}, v{SD2+3}, v{a1} quad_perm:[3,3,3,3] {dp}")
        sf(f"v_mul_f32 v{a1}, {f2h(1.0/640)}, v{a1}")
        sf(f"v_fma_f32 v{a1}, -v{a0}, v{a0}, v{a1}")
        sf(f"v_max_f32 v{a1}, 0, v{a1}")
        sf(f"v_cvt_pk_bf16_f32 v{a0}, v{a0}, v{a1}")
        sf(f"v_and_b32 v{a1}, 0xffff0000, v{a0}")
        sf(f"v_lshlrev_b32 v{a0}, 16, v{a0}")
        sf(f"v_add_f32 v{a1}, {f2h(1e-5)}, v{a1}")
        sf(f"v_cvt_pk_bf16_f32 v{a1}, v{a1}, v{a1}")
        sf(f"v_lshlrev_b32 v{a1}, 16, v{a1}")
        sf(f"v_sqrt_f32 v{a1}, v{a1}")
        sf(f"v_mov_b32 v{a3}, v{V_NON}")
        sf(f"v_cvt_pk_bf16_f32 v{a1}, v{a1}, v{a1}")
        sf(f"v_lshlrev_b32 v{a1}, 16, v{a1}")
        sf(f"v_mul_f32 v{a2}, v{a1}, v{a1}")
        sf(f"v_rcp_f32 v{a1}, v{a1}")
        sf("s_nop 0")
        sf(f"buffer_store_dwordx4 {vr(a0, 4)}, v{SA+1}, s[8:11], s{sSO} offen sc1")
    sfe = S.place(sf.L[:-1], k2[2] + 3, k2[3] + 8)
    ustat = U("stat", [M(sf.L[-1], "s", 1)], sfe + 1, 0)
    upf = UA("pgb", [PF(V_PF, S_GU, sPG, "c", 40, off=512 if typ else 256)], C["pgb"])
    M(ini, "s", 6)
    ia, ib = C["ini"][typ]
    prev = []
    for n in range(10):
        prev = [UA(f"ini{n}", ([ini[0]] if n == 8 else []) + [ini[1 + n]], ia + (ib - ia) * n / 9, after=prev, late=k2[39] - 1)]
    uini = prev
    if C["pw0"]:
        pws = [I(f"v_lshrrev_b32 v{V_PF}, 1, v2"), I(f"v_lshlrev_b32 v{V_PF}, 5, v{V_PF}"), I(f"v_and_or_b32 v{V_PF}, v2, 1, v{V_PF}"),
               I(f"v_lshlrev_b32 v{V_PF}, 7, v{V_PF}"), PF(V_PF, S_WSQ, sPW0, "c", 64)]
        upf = UA("pw0", pws, C["pw0"], after=[upf])
        upf = UA("pw1", [PF(V_PF, S_WSQ, sPW1, "c", 64)], C["pw1"], after=[upf])
    else:
        for s_ in range(15, 19 if C["rotw"] else 15): M(wsL[s_], "c", 8)
    ujf = []
    if not typ:
        jl = [I(f"s_add_u32 m0, s{sW4K}, {SPARE}")]
        jl += [I(f"buffer_load_dwordx4 v{V_X+p}, s[{S_AUX}:{S_AUX+3}], s{sPY} offen offset:{1024*p}{CFG['nt_j3']} lds") for p in range(4)]
        jt = jl[-1].tok
        ujl = UA("j3ld", tag(M(jl, "c", 8), "j3"), C["j3ld"])
        JF = 144
        jr, js = [], []
        for tI in range(4):
            for hh in range(2):
                off = 2048 * hh + (64 * ((tI >> 1) ^ hh))
                jr.append(I(f"ds_read_b64_tr_b16 {ar(JF + 4*tI + 2*hh, 2)}, v{VJ3 if tI & 1 else VJ3R} offset:{off}", need=[jt]))
        for tI in range(4):
            js.append(I(f"buffer_store_dwordx4 {ar(JF + 4*tI, 4)}, v1, s[8:11], s{sJ3D} offen offset:{1024*tI} sc1",
                        need=[jr[2*tI].tok, jr[2*tI+1].tok]))
        ujr = U("jr", jr, 0, 0, late=kg(C["j3st"]) - 12, after=[ujl])
        ujs = UA("j3st", M(js, "s", 8), C["j3st"], after=[ujr])
        ujf = [UA("j3fl", [M(flag_store(sFJ, [js[-1].tok]), "s", 1)], C["j3fl"], after=[ujs])]
    lds = [f"buffer_load_dwordx4 {vr(ST + 4*T, 4)}, v{V_ST}, s[8:11], s{sSTL} offen offset:{64*T} sc1" for T in range(2)]
    tags = [ST + 3, ST + 7]
    if typ:
        lds += [f"buffer_load_dwordx4 {vr(CSR, 4)}, v1, s[8:11], s{sCSL} offen sc1",
                f"buffer_load_dwordx4 {vr(CSR + 4, 4)}, v{VK+2}, s[8:11], s{sCSL} offen offset:1024 sc1"]
        tags += [CSR + 1, CSR + 3, CSR + 5, CSR + 7]
    sl_, sc_ = poll(lds, tag_check(tags))
    kc = K()
    RS = CSB
    if typ:
        wt_ = []
        for h in range(2):
            kc(f"ds_write2_b32 v{SA+2}, v{CSR+4*h}, v{CSR+4*h+2} offset0:{64 + 8*h} offset1:{65 + 8*h}")
        for T in range(2):
            kc(f"v_xor_b32 v{ST+4*T+3}, s{sSGN}, v{ST+4*T+1}")
            wt_.append(kc(f"ds_write2_b32 v{VK}, v{ST+4*T}, v{ST+4*T+3} offset0:{4*T} offset1:{32 + 4*T}"))
        cst = [kc(f"ds_read_b128 {vr(CSV + 4*h, 4)}, v{SA+3} offset:{256 + 16*h}") for h in range(2)]
        cst.append(kc(f"ds_read_b64 {vr(CSV + 8, 2)}, v{SA+3} offset:{256 + 32}"))
        nmt = [kc(f"ds_read_b128 {vr(NM + 4*h, 4)}, v{VK+1} offset:{16*h}") for h in range(2)]
        rst = [kc(f"ds_read_b128 {vr(RS + 4*h, 4)}, v{VK+1} offset:{128 + 16*h}") for h in range(2)]
    for T in range(2):
        r = ST + 4 * T
        kc(f"v_mul_f32 v{NMB+2*T}, 0.25, v{r}".replace("0.25", f2h(0.25)))
        kc(f"v_mul_f32 v{r+3}, v{r+1}, v{r+1}", need=wt_ if typ else [])
        kc(f"v_cvt_pk_bf16_f32 v{NMB+2*T}, v{NMB+2*T}, v{NMB+2*T}")
        kc(f"v_mul_f32 v{r+1}, {f2h(C1)}, v{r+1}")
        kc(f"v_mul_f32 v{r+3}, {f2h(0.044715)}, v{r+3}")
        kc(f"v_mov_b32 v{NMB+2*T+1}, v{NMB+2*T}")
        kc(f"v_mul_f32 v{r+3}, v{r+3}, v{r+1}")
    usl = UA("stl", M(sl_, "m", 4), C["stl"], after=[ustat])
    gk = kg(C["st_ck"][typ])
    ust = U("stck", sc_, gk - 12, 0, late=gk - 1, after=[usl])

    def epi_gu(acc, so):
        L, St = [], []
        for p in range(2):
            for T in range(2):
                o = acc + 4 * (2 * (2 * p) + T)
                c = ST + 4 * T
                for t2 in range(2):
                    g = acc + 4 * (2 * (2 * p + t2) + T)
                    u = g + 32
                    R = range(4)
                    for i in R:
                        L.append(I(f"v_mul_f32 v{TMP+i}, v{g+i}, v{g+i}"))
                        L.append(I(f"v_mul_f32 v{u+i}, v{g+i}, v{u+i}"))
                        L.append(I(f"v_fma_f32 v{TMP+i}, v{TMP+i}, v{c+3}, v{c+1}"))
                        L.append(I(f"v_mul_f32 v{g+i}, v{TMP+i}, v{g+i}"))
                    for i in R: L.append(I(f"v_exp_f32 v{g+i}, v{g+i}"))
                    for i in R: L.append(I(f"v_fma_f32 v{g+i}, v{g+i}, v{c+2}, v{c+2}"))
                    for i in R: L.append(I(f"v_rcp_f32 v{g+i}, v{g+i}"))
                    for i in R: L.append(I(f"v_mul_f32 v{u+i}, v{u+i}, v{g+i}"))
                    L.append(I(f"v_cvt_pk_bf16_f32 v{o+2*t2}, v{u}, v{u+1}"))
                    L.append(I(f"v_cvt_pk_bf16_f32 v{o+2*t2+1}, v{u+2}, v{u+3}"))
                St.append(I(f"buffer_store_dwordx4 {vr(o, 4)}, v1, s[8:11], s{so+p} offen offset:{1024*T} sc1"))
        return L, M(St, "s", 8)

    def epi_ab():
        L, St = [], []
        for t in range(10):
            o = ACCA + 8 * t
            for j in range(8):
                L.append(I(f"v_mul_f32 v{o+j}, v{o+j}, v{RS+j}", need=[rst[j // 4]]))
            for j in range(4):
                L.append(I(f"v_cvt_pk_bf16_f32 v{o+j}, v{o+2*j}, v{o+2*j+1}"))
            v, so, off = (1, sEA0, 1024 * t) if t < 4 else ((3, sEA0, 1024 * (t - 4)) if t < 8 else (1, sEA1, 1024 * (t - 8)))
            St.append(I(f"buffer_store_dwordx4 {vr(o, 4)}, v{v}, s[8:11], s{so} offen offset:{off} sc1"))
        return L, M(St, "s", 8)

    def epi_assert(g):
        for q in range(8):
            assert min(S.lastpos[34 * q:]) > g + 2 * q + 2
    xl = K()
    xt = [xl(f"buffer_load_dwordx2 {vr(XR[e], 2)}, v{V_XO}, s[{S_X}:{S_X+3}], s{sXO} offen offset:{32*e}", flags=["M:h16"]) for e in range(5)]
    U("xres", xl.L, kg(C["xres"]), kg(C["xres"] + 3))
    pl, pc = flag_poll(V_FWD, sPWD)
    pwd = [I(f"v_min_u32 v{V_PF}, 59, v2"), I(f"v_mul_u32_u24 v{V_POLL}, 205, v{V_PF}"), I(f"v_lshrrev_b32 v{V_POLL}, 10, v{V_POLL}"),
           I(f"v_mul_u32_u24 v{V_POLL}, {40960 // 128 - 5}, v{V_POLL}"), I(f"v_add_lshl_u32 v{V_PF}, v{V_PF}, v{V_POLL}, 7")]
    if C["pwd"]:
        u5 = UA("wdp", pwd + M(pl, "m", 4) + [PF(V_PF, S_WS, sPD, "m", 60)], C["wdp"], after=[upf, ust] + ujf)
    else:
        u5 = UA("wdp", M(pl, "m", 4), C["wdp"], after=[ust] + ujf)
    uwc = UA("wdck", pc, C["wdp"][typ] + C["ckd"], after=[u5])
    prev = [uwc]
    for kk in C["wdm"]: M(wdL[kk], "m", 8)
    for kk in C["hm"]: M(hL[kk], "m", 8)
    for kk in range(8):
        prev = [U(f"wd{kk}", wdL[kk], k2[20 + (20 * kk + 20 + 7) // 8], gD - 200 + kk, after=prev)]
    uwd7 = prev

    def chunks(name, L, St, a, b, n, late=None):
        out, prev = [], []
        for q in range(n):
            e_ = a + (b - a) * (q + 1) // n
            out.append((L[len(L) * q // n:len(L) * (q + 1) // n], a + (b - a) * q // n, e_))
            prev = [U(f"{name}{q}", St[len(St) * q // n:len(St) * (q + 1) // n], e_, 0, after=prev, late=late)]
        return out, prev
    if typ:
        LA, St = epi_ab()
        LA, ua = chunks("abst", LA, St, k2[19] + 5, k2[C["ab_end"]], 5)
        uaf = UA("abfl", [M(flag_store(sFA, [St[-1].tok]), "s", 1)], C["ab_flag"], after=ua)
    else:
        LA, St = epi_gu(ACCA, sEA0)
        LA, ua = chunks("hast", LA, St, gC[0] + 5, gC[1] + 2, 4, late=k2[40] - 3)
        uaf = UA("hafl", [M(flag_store(sFA, [St[-1].tok]), "s", 1)], C["ha_flag"], after=ua)
    pl, pc = flag_poll(V_FAB, sPAB)
    if C["pab"]:
        pl = pl + [PF(V_40, S_WS, sPA0, "m", 40), PF(V_40, S_WS, sPA1, "m", 40)]
    else:
        for s_ in (15, 16): M(abL[s_], "m", 8)
    u6 = UA("abp", [M(pl[0], "m", 1)] + pl[1:], C["abp"], after=[uwc] + ([uaf] if typ else []))
    uac = UA("abck", pc, C["abp"] + C["ckd"], after=[u6])
    pw_, pa_ = prevD, [uac]
    for s_ in range(15, 31):
        pw_ = [U(f"ws{s_}", wsL[s_], bar[s_ - 3] + 1, bar[s_] - DL - 1, after=pw_)]
        pa_ = [U(f"ab{s_}", abL[s_], bar[s_ - 3] + 1, bar[s_] - DL, after=pa_ + pw_)]
    e0 = C["epb_end"]
    LB, St = epi_gu(ACCB, sEB0)
    LB, ub = chunks("hbst", LB, St, gC[1] + 5, k2[e0], 4)
    ubf = UA("hbfl", [M(flag_store(sFB, [St[-1].tok]), "s", 1)], C["hb_flag"], after=ub + uini)
    pl, pc0 = flag_poll(V_FH, sPH)
    u8 = UA("hp0", M(pl, "m", 1) + ([PF(V_40, S_WS, sPE, "m", 40, late=True)] if C["ph0"] else []), C["hp0"], after=[uac, uaf])
    uh0 = [UA("h0ck", pc0, C["hp0"] + C["ckd"], after=[u8])]
    prev = uh0 + ub
    for kk in range(4):
        prev = [U(f"h{kk}", hL[kk], 0, gD - 100 + 20 * kk, after=prev)]
    mi = K()
    mi(f"v_and_b32 v{TMP+4}, 15, v2")
    mi(f"v_lshrrev_b32 v{TMP+5}, 4, v2")
    mi(f"v_lshlrev_b32 v{TMP+5}, 2, v{TMP+5}")
    mi(f"v_sub_u32 v{TMP+4}, v{TMP+4}, v{TMP+5}")
    mi(f"v_lshlrev_b32 v{TMP+5}, 4, v{TMP+4}")
    mi(f"v_mov_b32 v{TMP+6}, 0x3f80")
    mi(f"v_lshlrev_b32 v{TMP+5}, v{TMP+5}, v{TMP+6}")
    mi(f"v_lshrrev_b32 v{TMP+4}, 1, v{TMP+4}")
    for r in (0, 1, 4, 5):
        mi(f"v_mov_b32 v{SEL+r}, 0")
    for d in range(2):
        mi.L.append([I(f"v_cmp_eq_u32 vcc, {d}, v{TMP+4}"), I(f"v_cndmask_b32 v{SEL+2+d}, 0, v{TMP+5}, vcc")])
    mi.L.append([I("s_bitcmp1_b32 s3, 0"), I("s_cselect_b64 vcc, -1, 0")] +
                [I(f"v_cndmask_b32 v{SEL+6+i}, v{SEL+2+i}, v{SEL+i}, vcc") for i in range(4)])
    for j in range(4):
        mi.ext(kaddr(sH8 + j, sHB, 8 + j, 1))
    pl, pc = flag_poll(V_FH2, sPH)
    u9 = UA("hp", [I(f"v_lshlrev_b32 v{V_FAB}, 7, v2")] + M(pl, "m", 1) + ([PF(V_FAB, S_WS, sPL, "m", 64, late=True)] if C["ph1"] else []),
            C["hp"], after=uh0 + [ubf])
    uhc = UA("hck", pc, C["hp"] + C["ckd"], late=gD + 38, after=[u9])
    prev = prev + [uhc]
    for kk in range(4, 8):
        prev = [U(f"h{kk}", hL[kk], gD + 20 * (kk - 5) if kk >= 6 else 0, gD - DL + 20 * kk, after=prev)]
    for t in range(4):
        prev = [U(f"ht{t}", htL[t], gD + (60, 80, 80, 100)[t], gT[t] - DL, after=prev)]
    prev = uwd7
    for kk in range(8, 12):
        prev = [U(f"wd{kk}", wdS[kk][0], bar[28 + (kk - 8) // 2] + 1, gD + 10 + kk, after=prev)]
    xu = K()
    for e in range(5):
        b = XU + 4 * e
        xu(f"v_lshlrev_b32 v{b}, 16, v{XR[e]}", need=[xt[e]])
        xu(f"v_and_b32 v{b+1}, 0xffff0000, v{XR[e]}")
        xu(f"v_lshlrev_b32 v{b+2}, 16, v{XR[e]+1}")
        xu(f"v_and_b32 v{b+3}, 0xffff0000, v{XR[e]+1}")

    pub = K()
    units = [(ACCA + 4 * (5 * tt + 2 * h), ACCA + 4 * (5 * tt + 2 * h + 1)) for tt in range(4) for h in range(2)]
    units += [(ACCA + 4 * (10 * p + 4), ACCA + 4 * (10 * p + 9)) for p in range(2)]
    pub(f"s_add_u32 s{sYT}, s{sYPUB}, 8192")
    for u, (a, b) in enumerate(units):
        pub(f"v_cvt_pk_bf16_f32 v{a}, v{a}, v{a+1}")
        pub(f"v_cvt_pk_bf16_f32 v{a+1}, v{a+2}, v{a+3}")
        pub(f"v_cvt_pk_bf16_f32 v{a+2}, v{b}, v{b+1}")
        pub(f"v_cvt_pk_bf16_f32 v{a+3}, v{b+2}, v{b+3}")
        v, so, off = (1, sYPUB, 1024 * u) if u < 4 else ((3, sYPUB, 1024 * (u - 4)) if u < 8 else (1, sYT, 1024 * (u - 8)))
        pub(f"buffer_store_dwordx4 {vr(a, 4)}, v{v}, s[8:11], s{so} offen offset:{off} sc1", flags=["M:s6"])
        ow = pub(f"ds_write_b128 v{V_CR+1}, {vr(a, 4)} offset:{OWQ + 1024*u}")
    tag(pub.L, "pub")
    gB = gD + 40
    up = U("pub", pub.L, gD + 1, 0, late=gB - 1)
    S.put(gB, [I("s_barrier", need=[ow])])
    U("lead", [M(flag_store(sLEAD, []), "h", 1)], gB + 1, gEnd)
    U("gat", M(gat, "m", 8), gD + C["gat"], 0, after=[up])
    S.place(gown + wdS[8][1] + wdS[9][1], gD + 100, gD + 130, cap=4)
    S.place(wdS[10][1] + wdS[11][1], gD + 130, gD + 150, cap=4)
    wl = None
    for t in range(3):
        W = [I(f"ds_write_b128 v{V_DW+t}, {dacc(t, e)} offset:{XCH + 5120*t + 1024*e}") for e in range(5)]
        S.place(W, gT[t + 1] + 1, gT[t + 1] + 12, cap=4)
        wl = W[-1].tok
    rr = {}
    R = [I("s_barrier", need=[wl])]
    for e in range(5):
        for j in range(3):
            R.append(I(f"ds_read_b128 {vr(RED + 12*e + 4*j, 4)}, v{V_DW+3} offset:{XCH + 5120*j + 1024*e}"))
            rr[e, j] = R[-1].tok
    S.place(R, gT[3] + 12, gT["ysum"])
    fin = K()
    P2 = lambda r: vr(r, 2)
    fin(f"s_mov_b32 s{sT0}, {f2h(-L2E)}")
    fin(f"s_mov_b32 s{sT1}, {f2h(-L2E)}")
    fin(f"s_mov_b32 s{sT2}, 1.0")
    fin(f"s_mov_b32 s{sT3}, 1.0")
    S.place(fin.L, gT[3], gT[3] + 12)
    fin = K()
    for e in range(5):
        b, d = RED + 12 * e, OWN + 4 * e
        for i in (0, 2): fin(f"v_pk_add_f32 {P2(b+i)}, {P2(b+i)}, {P2(b+4+i)}", need=[rr[e, 0], rr[e, 1]])
        for i in (0, 2): fin(f"v_pk_add_f32 {P2(d+i)}, {P2(d+i)}, {P2(b+8+i)}", need=[rr[e, 2]])
        for i in (0, 2): fin(f"v_pk_add_f32 {P2(d+i)}, {P2(d+i)}, {P2(b+i)}")
        for i in (0, 2): fin(f"v_pk_mul_f32 {P2(b+i)}, {P2(d+i)}, s[{sT0}:{sT1}]")
        for i in range(4): fin(f"v_exp_f32 v{b+i}, v{b+i}")
    for e in range(5):
        b, d = RED + 12 * e, OWN + 4 * e
        for i in (0, 2): fin(f"v_pk_add_f32 {P2(b+i)}, {P2(b+i)}, s[{sT2}:{sT3}]")
        for i in range(4): fin(f"v_rcp_f32 v{b+i}, v{b+i}")
    for e in range(5):
        b, d = RED + 12 * e, OWN + 4 * e
        for i in (0, 2): fin(f"v_pk_mul_f32 {P2(d+i)}, {P2(d+i)}, {P2(b+i)}")
    S.put(gT["ysum"], fin.L + gck)
    pipe = Pipe(C["ch"], C["W"], C["Q"], C["lat"])
    t = 600.0
    for i_ in [PF(V_40, S_X, 0, "c", 40), PF(V_40, S_X, 0, "c", 40)] + P.L + pre:
        for k_ in i_.need:
            if k_.cls == "vm": t = max(t, pipe.done[id(k_)])
        t = pipe.issue(i_, t) + 5 if i_.kind == "vm" else t + 5
    times = place_units(S, pipe, t, UN, tm=C["tm"])
    if C["show"]:
        print(pf, "model", " ".join(f"k{k}:{times[k2[k]]/1e3:.2f}" for k in range(0, 73, 4)), f"end:{times[gEnd]/1e3:.2f}")
        print("  ", " ".join(f"{u.name}:{kof(u.pos[0])}-{kof(u.pos[-1])}" for u in sorted(UN, key=lambda u: u.pos[0])))
    un = {u.name: u for u in UN}
    S.place(kc.L, gk, gk + (20 if typ else 22))
    if typ:
        k0 = int(C["st_ck"][1]) + 1
        nk = 19 - k0
        tiles = list(range(20))
        for kq in range(nk):
            mine = tiles[kq::nk]
            for idx in mine:
                t, T = divmod(idx, 2)
                L = [I(f"v_fmac_f32 v{ACCA + 4*idx + i}, v{NM + 4*T + i}, v{CSV + t}", need=[nmt[T], cst[t // 4]]) for i in range(4)]
                g = k2[k0 + kq]
                if idx < 10:
                    S.place(L, g + idx + 5, g + min(idx + 14, 20))
                else:
                    S.place(L, g + max(idx - 13, 1), g + idx - 2)
        for q, (L, a, b) in enumerate(LA):
            info[f"A{q}"] = place_dag(S, L, a, b, window=6)
            for t in range(2):
                assert min(S.lastpos[12 * t:]) > k2[19] + 2 * (2 * q + t) + 2
    else:
        assert gk + 22 <= gC[0]
        for q, (L, a, b) in enumerate(LA):
            info[f"A{q}"] = place_dag(S, L, a, b, window=C["win"])
            assert min(S.lastpos[34:]) > gC[0] + 4
    for q, (L, a, b) in enumerate(LB):
        info[f"B{q}"] = place_dag(S, L, a, b, window=C["win"])
        assert min(S.lastpos[34:]) > gC[1] + 4
    S.place(mi.L + xu.L + [I(f"v_add_u32 v{V_CR+1}, s{sRF}, v1")], k2[e0], k2[e0 + 6])
    sg = [I(f"v_add_u32 v{V_S0}, s{sW4K}, v1"), I(f"v_add_u32 v{V_S0+1}, {3*SLOT}, v{V_S0}")]
    S.place(sg, un["ws30"].pos[-1] + 1, gD + 90)
    for e in range(5):
        fin2 = K()
        d, y, x = OWN + 4 * e, Y + 4 * e, XU + 4 * e
        for i in range(4): fin2(f"v_fma_f32 v{d+i}, v{d+i}, v{y+i}, v{x+i}")
        fin2(f"v_cvt_pk_bf16_f32 v{d}, v{d}, v{d+1}")
        fin2(f"v_cvt_pk_bf16_f32 v{d+1}, v{d+2}, v{d+3}")
        fin2(f"buffer_store_dwordx2 {vr(d, 2)}, v{V_XO}, s[{S_OUT}:{S_OUT+3}], s{sXO} offen offset:{32*e}")
        a = min(gT["ysum"] + 4 * e + 6, gEnd)
        S.place(fin2.L, a, min(a + 4, gEnd + 1))
    pts = [(k2[k], f"k{k}") for k in range(0, 72, CFG["tsk"])] + [(gD + 20 * i, f"d{i}") for i in range(13)] + [(gT["ysum"] + 1, "ys"), (gEnd, "end")]
    for g, nm in pts:
        n = 1 if g < gD else 0
        S.gap[g] = S.gap[g][:n] + ST_(nm) + S.gap[g][n:]
    info = {k: v[1] for k, v in info.items()}
    info.update(A=S.est_cycles(0, k2[20]), B=S.est_cycles(k2[20], k2[40]), y=S.est_cycles(k2[40], gD), d=S.est_cycles(gD, gEnd),
                tail=S.used[gEnd], nm=gEnd)
    body, names = expand_stamps(P.L + pre + S.flat(), 2)
    body += stamp_end(len(names) + 2) + [I("s_endpgm")]
    if CFG["TS"]:
        body.append(I(f"; NAMES{typ} start karg " + " ".join(names) + " fin"))
    fin_ = finalize(body)
    check(fin_)
    return fin_ + slow, info


def check(L):
    pend = {"vm": [], "lgkm": []}
    lastw = {}
    owner = {}
    for n, ins in enumerate(L):
        if ins.kind in ("label", "meta"):
            continue
        if ins.text.startswith("s_waitcnt"):
            for c, nm in (("vm", "vmcnt"), ("lgkm", "lgkmcnt")):
                m = re.search(nm + r"\((\d+)\)", ins.text)
                if m:
                    k = int(m.group(1))
                    pend[c] = pend[c][len(pend[c]) - k:] if k < len(pend[c]) else pend[c]
                    if k == 0: pend[c] = []
            continue
        touched = ins.rd | ins.wr
        for c in pend:
            for p in pend[c]:
                if p.wr & touched and not ("pf" in p.flags and "pf" in ins.flags):
                    raise SystemExit(f"PENDING hazard at {n}: {ins.text}  <- {p.text}")
        for t in ins.need:
            o = owner.get(id(t))
            if o is not None:
                for r in o.wr & ins.rd:
                    if lastw.get(r) is not o:
                        raise SystemExit(f"CLOBBER at {n}: {ins.text} expects {o.text} but last writer {lastw[r].text}")
        st = [f for f in ins.flags if f.startswith("S:")]
        if st and ins.kind == "vm":
            for r in ins.rd:
                if (r == ("x", "m0") or r in (("s", sWDT), ("s", sHT), ("s", sYT))) and r in lastw:
                    st2 = [f for f in lastw[r].flags if f.startswith("S:")]
                    if st2 != st:
                        raise SystemExit(f"STREAM clash at {n}: {ins.text} {st} vs {lastw[r].text} {st2}")
        if ins.tok is not None and ins.tok.cls in pend:
            pend[ins.tok.cls].append(ins)
            owner[id(ins.tok)] = ins
            assert len(pend["vm"]) <= 63, f"vm overflow at {n}"
        for r in ins.wr:
            lastw[r] = ins


def build(path, verbose=True):
    lab = NAME + "_kernel"
    s = f"; generated by work/gen5.py mix={int(CFG['mix'])}\n; @launch grid=(256,1,1) block=(256,1,1) lds=163840\n"
    s += '.amdgcn_target "amdgcn-amd-amdhsa--gfx950"\n.text\n'
    s += f".globl {lab}\n.p2align 8\n.type {lab},@function\n{lab}:\n" + text(gen_head())
    for typ in (0, 1):
        L, info = gen_prog(typ)
        if verbose:
            nn = sum(1 for i in L if i.text.startswith("s_nop"))
            nw = sum(1 for i in L if i.text.startswith("s_waitcnt"))
            print("EO"[typ], info, "instrs", len(L), "nops", nn, "waits", nw)
        s += text(L)
    s += "L_end:\n  s_endpgm\n"
    s = s.replace("CODE_MAX", f"(L_end-{lab}-256)")
    s += '.section .rodata,"a"\n.p2align 6\n'
    s += (f".amdhsa_kernel {lab}\n  .amdhsa_next_free_vgpr 512\n  .amdhsa_next_free_sgpr 102\n  .amdhsa_accum_offset 256\n"
          "  .amdhsa_group_segment_fixed_size 0\n  .amdhsa_kernarg_size 96\n  .amdhsa_user_sgpr_count 2\n"
          "  .amdhsa_user_sgpr_kernarg_segment_ptr 1\n  .amdhsa_system_sgpr_workgroup_id_x 1\n.end_amdhsa_kernel\n")
    open(path, "w").write(s)


if __name__ == "__main__":
    for a in sys.argv[2:]:
        if a == "ts":
            CFG["TS"] = True
        else:
            k, v = a.split("=", 1)
            CFG[k] = eval(v)
    build(sys.argv[1] if len(sys.argv) > 1 else "v5.s")
```

```python
import sys, struct, re
sys.path.insert(0, "work")
from asmlib import *

NAME = "recurrent_scan__spectral_fnet__glu_gated_geglu__prompt"
W0, RF, STAT, CSD = 0, 0x1000, 0x8000, 0x10000
ABF, HF, WDF = 0x40000, 0x60000, 0x50000
WD, ABT, HH, YP, TSB, WS_SIZE = 0x100000, 0x300000, 0x800000, 0xE00000, 0x1900000, 0x1A00000
OOB = 0x7ff00000
SLOT = 36864
SPARE = 4 * SLOT
C1 = -2.0 * 0.7978845608028654 * 1.4426950408889634
L2E = 1.4426950408889634
MF = "v_mfma_f32_16x16x32_bf16"

MF16 = "v_mfma_f32_16x16x16_bf16"
CFG = dict(TS=False, nt_x="", nt_w="", nt_ws="", FS=2, rdsp=True, win=60, tsk=1, show=False, mix=True,
           ch=9.0, W=64, Q=1, lat=dict(h=400, m=400, c=400, s=400), tm=20.0, dl=30,
           px=True, pgb=(4, 4), j3ld=0, j3st=4, j3fl=13, ini=((44, 56), (44, 56)), stl=(13.5, 8.5), st_ck=(18.5, 14),
           pw0=None, pw1=(24, 16), wdp=(19, 19), pwd=False, ckd=4, ab_end=24, ab_flag=27.5, abp=30, pab=False,
           ha_flag=43, epb_end=57, hp0=51, ph0=False, hb_flag=60, hp=64.5, ph1=False, gat=150, xres=19.5,
           rotd=False, ntf_ws=0, nt_pf=' sc1', nt_px=' sc1', nt_j3=' nt', wsoff=0, walk=1, rota=True, iniy=True, j3pro=False, rotw=True, pc=5, wdm=(), hm=())


def f2h(f):
    return hex(struct.unpack("<I", struct.pack("<f", f))[0])


S_AUX, S_WS, S_X, S_GU, S_WA, S_WSQ, S_OUT = 4, 8, 12, 40, 44, 48, 52
sXQ, sRB, sCG, sCB4, sT64, sEB8, sB32, sKS4 = 56, 57, 58, 59, 60, 61, 62, 63
sNON, sSPIN, sW4K, sW5K, sSX, sSW, sSWS, sSWB = 64, 65, 66, 67, 68, 69, 70, 71
sAB = 72
sHB, sWDB, sYPUB, sYGA, sXO, sWDT, sHT, sYT = 76, 77, 78, 79, 80, 81, 82, 83
sU0, sU1 = 100, 101
sT0, sT1, sT2, sT3 = 16, 17, 18, 19
sSO, sSTL, sCSL, sEA0, sEA1, sEB0, sEB1, sFA, sFB = 21, 22, 23, 24, 25, 26, 27, 28, 29
sPAB, sPH, sPWD, sPY, sFY, sJ3D, sFJ, sRF, sLEAD, sSGN = 30, 31, 32, 33, 34, 35, 36, 37, 38, 39
sPG, sPW0, sPW1, sPD, sPA0, sPA1, sPE, sPL, sG1, sG2, sG3 = 88, 89, 90, 91, 92, 93, 94, 95, 96, 97, 99
sRE, sRL = sPW0, sPW1
sRA, sSX0, sSW0, sSB0 = sPD, sPA1, sPE, sPG
sC1 = 76
sB0 = 98
sH8 = 4
STS = 84

V_G = 0
V_X, V_GU, V_WD, R_X, R_WD, R_GU = 4, 8, 12, 18, 22, 26
VJ3R, VJ3 = 12, 13
OWN, XU = 4, 24
V_WS, R_WS, R_AB, V_AB = 44, 48, 52, 54
ST, ONES, SEL = 56, 64, 56
V_CA, V_CR, V_NON, V_L0, V_POLL, V_XO, V_ST, V_H, TMP = 68, 69, 71, 72, 73, 74, 75, 76, 80
V_FAB, V_FH, V_FWD, V_FH2, V_DW = 88, 89, 90, 91, 92
V_PF, INI, NMB, V_S0 = 42, 252, 64, 44
V_40, V_D0, V_D1 = 17, 43, 69
XR = [4, 6, 12, 14, 18]
ACCA, ACCB, CSB = 96, 176, 240
FB = 160
ACS = 240
OWQ = SLOT
XCH = SLOT + 10240
STG = [3 * SLOT, 3 * SLOT + 16384, 0, 16384]
STG4 = 3 * SLOT + 32768


def srd(dst, lo, nbytes):
    return [I(f"s_mov_b32 s{dst}, s{lo}"), I(f"s_and_b32 s{dst+1}, s{lo+1}, 0xffff"),
            I(f"s_mov_b32 s{dst+2}, {hex(nbytes)}"), I(f"s_mov_b32 s{dst+3}, 0x20000")]


def srd_sel(dst, lo0, lo1, nbytes):
    return [I(f"s_cselect_b32 s{dst}, s{lo1}, s{lo0}"), I(f"s_cselect_b32 s{dst+1}, s{lo1+1}, s{lo0+1}"),
            I(f"s_and_b32 s{dst+1}, s{dst+1}, 0xffff"), I(f"s_mov_b32 s{dst+2}, {hex(nbytes)}"), I(f"s_mov_b32 s{dst+3}, 0x20000")]


class K:
    def __init__(self):
        self.L = []

    def __call__(self, t, need=(), **kw):
        i = I(t, need=need, **kw)
        self.L.append(i)
        return i.tok

    def ext(self, l):
        self.L.extend(l)


V_TS = 87
V_TS2 = 68


def stamp(i):
    if not CFG["TS"]:
        return []
    L = [I("s_waitcnt lgkmcnt(0)")]
    if i > 0:
        L.append(I(f"v_writelane_b32 v{V_TS if i - 1 < 64 else V_TS2}, s{STS + 2*((i-1) & 1)}, {(i-1) & 63}"))
    L.append(I(f"s_memrealtime s[{STS+2*(i & 1)}:{STS+2*(i & 1)+1}]"))
    return [L]


def ST_(name):
    return [I(f"; STAMP {name}")] if CFG["TS"] else []


def expand_stamps(L, n0):
    out, names = [], []
    for i in L:
        if i.text.startswith("; STAMP"):
            out += flat1(stamp(n0 + len(names)))
            names.append(i.text.split()[2])
        else:
            out.append(i)
    return out, names


def flat1(l):
    return [x for it in l for x in (it if isinstance(it, (list, tuple)) else [it])]


def stamp_end(n):
    if not CFG["TS"]:
        return []
    L = [I("s_waitcnt vmcnt(0)")] + flat1(stamp(n)) + flat1(stamp(n + 1))
    L += [I(f"v_writelane_b32 v{V_TS2}, s{sSPIN}, 63"), I(f"s_mov_b32 s16, {n + 1}"), I(f"v_writelane_b32 v{V_TS2}, s16, 62"),
          I("s_lshl_b32 s16, s2, 2"), I("s_add_u32 s16, s16, s3"), I("s_lshl_b32 s16, s16, 9"), I(f"s_add_u32 s16, s16, {hex(TSB)}"),
          I("v_lshlrev_b32 v1, 2, v2"),
          I(f"buffer_store_dword v{V_TS}, v1, s[8:11], s16 offen"),
          I(f"buffer_store_dword v{V_TS2}, v1, s[8:11], s16 offen offset:256"), I("s_waitcnt vmcnt(0) lgkmcnt(0)")]
    return L


T0, T1, T2, T3 = TMP, TMP + 1, TMP + 2, TMP + 3
SF, SD1, SD2, SA = ACCB, ACCB + 20, ACCB + 24, ACCB + 28
CSR, CSV, NM, VK = ACCB + 32, ACCB + 40, ACCB + 52, ACCB + 60


def gen_head():
    P = K()
    P.ext(flat1(stamp(0)))
    P("s_load_dwordx16 s[16:31], s[0:1], 0")
    P("s_load_dwordx8 s[32:39], s[0:1], 64")
    P("v_lshrrev_b32 v1, 6, v0")
    P("v_and_b32 v2, 63, v0")
    P("v_readfirstlane_b32 s3, v1")
    P("s_cmp_ge_u32 s2, 256")
    P("s_cbranch_scc1 L_end")
    if CFG["pc"]:
        n = CFG["pc"]
        P("s_getpc_b64 s[4:5]")
        P("s_lshr_b32 s6, s2, 3")
        P("s_lshl2_add_u32 s6, s6, s3")
        P(f"v_min_u32 v3, {n-1}, v2")
        P(f"s_mul_i32 s6, s6, {n}")
        P("v_add_lshl_u32 v3, v3, s6, 7")
        P("v_min_u32 v3, CODE_MAX, v3")
        P(f"global_load_dword v{V_D0}, v3, s[4:5]")
    P(f"s_bfe_u32 s{sXQ}, s2, 0x10002")
    P(f"s_bfe_u32 s{sRB}, s2, 0x30003")
    P(f"s_and_b32 s{sU0}, s2, 1")
    P(f"s_lshl3_add_u32 s{sRB}, s{sU0}, s{sRB}")
    P(f"s_lshr_b32 s{sCB4}, s2, 6")
    P(f"s_bfe_u32 s{sKS4}, s2, 0x20001")
    if CFG["mix"]:
        P(f"s_lshr_b32 s{sCG}, s2, 7")
        P(f"s_lshl1_add_u32 s{sCG}, s{sKS4}, s{sCG}")
    else:
        P(f"s_lshl2_add_u32 s{sCG}, s{sXQ}, s{sCB4}")
    P(f"s_and_b32 s{sC1}, s{sCG}, 3")
    P(f"s_lshr_b32 s{sB0}, s{sCG}, 1")
    P(f"s_lshl2_add_u32 s{sB0}, s{sB0}, s{sCG}")
    P(f"s_lshl1_add_u32 s{sT64}, s{sRB}, s{sXQ}")
    P(f"s_and_b32 s{sEB8}, s{sKS4}, 1")
    P(f"s_lshl1_add_u32 s{sEB8}, s{sCB4}, s{sEB8}")
    P(f"s_mov_b32 s{sSPIN}, 30000")
    P(f"s_lshl_b32 s{sW4K}, s3, 12")
    P(f"s_mul_i32 s{sW5K}, s3, 5120")
    P(f"s_lshl2_add_u32 s{sB32}, s{sRB}, s3")
    P(f"s_mul_i32 s{sSX}, s{sB32}, {32*1280}")
    P(f"s_and_b32 s{sU0}, s3, 1")
    P(f"s_mul_i32 s{sSWB}, s{sU0}, {32*3072}")
    P(f"s_lshl_b32 s{sU0}, s{sU0}, 6")
    P("v_lshlrev_b32 v1, 4, v2")
    P("v_add_u32 v3, 0x1000, v1")
    P(f"v_bfe_u32 v{T1}, v2, 4, 1")
    P(f"v_lshlrev_b32 v{T1}, 1, v{T1}")
    P(f"v_and_b32 v{T2}, 7, v2")
    P(f"v_xor_b32 v{T1}, v{T1}, v{T2}")
    P(f"v_lshlrev_b32 v{T1}, 4, v{T1}")
    P(f"v_lshrrev_b32 v{T0}, 3, v2")
    P(f"v_mul_u32_u24 v{V_X}, 1280, v{T0}")
    P(f"v_add_u32 v{V_X}, v{V_X}, v{T1}")
    P(f"v_add_u32 v{V_X+1}, {8*1280-1024}, v{V_X}")
    P(f"v_xor_b32 v{T2}, 64, v{V_X}")
    P(f"v_add_u32 v{V_X+2}, {2*(8*1280-1024)}, v{T2}")
    P(f"v_add_u32 v{V_X+3}, {3*(8*1280-1024)}, v{T2}")
    P(f"v_mul_u32_u24 v{V_GU}, 3072, v{T0}")
    P(f"v_add_u32 v{V_GU}, v{V_GU}, v{T1}")
    P(f"v_xor_b32 v{T3}, 64, v{V_GU}")
    P(f"v_add_u32 v{V_GU+1}, {8*3072-1024}, v{T3}")
    P(f"v_add_u32 v{V_GU+2}, {2*(8*3072-1024)}, v{V_GU}")
    P(f"v_add_u32 v{V_GU+3}, {3*(8*3072-1024)}, v{T3}")
    P(f"v_xor_b32 v{V_WD}, s{sU0}, v{V_X}")
    P(f"v_xor_b32 v{T3}, 64, v{V_WD}")
    P(f"v_add_u32 v{V_WD+1}, {8*1280-1024}, v{T3}")
    P(f"v_add_u32 v{V_WD+2}, {2*(8*1280-1024)}, v{V_WD}")
    P(f"v_add_u32 v{V_WD+3}, {3*(8*1280-1024)}, v{T3}")
    P(f"v_add_u32 v{V_WD+4}, {4*8*1280}, v{V_WD}")
    P(f"v_lshl_add_u32 v{V_WS}, v{T0}, 12, v{T1}")
    P(f"v_bfe_u32 v{T2}, v2, 2, 2")
    P(f"v_and_b32 v{T3}, 3, v2")
    P(f"v_lshrrev_b32 v{T1}, 4, v2")
    P(f"v_mul_u32_u24 v{SA}, 1280, v{T2}")
    P(f"v_lshl_add_u32 v{SA}, v{T3}, 6, v{SA}")
    P(f"v_lshl_add_u32 v{SA}, v{T1}, 4, v{SA}")
    P(f"v_min_u32 v{V_40}, 39, v2")
    P(f"v_lshlrev_b32 v{V_40}, 7, v{V_40}")
    P(f"s_lshl2_add_u32 s{sU1}, s{sRB}, s{sCB4}")
    P(f"s_lshl2_add_u32 s{sU1}, s{sU1}, s3")
    P(f"s_mul_i32 s{sU1}, s{sU1}, {8*1280}")
    P(f"s_add_u32 s{sHT}, s{sU1}, 5120")
    P(f"s_and_b32 s{sPD}, s{sRB}, 7")
    P(f"s_and_b32 s{sPG}, s3, 1")
    P(f"s_lshl1_add_u32 s{sPG}, s{sPD}, s{sPG}")
    P(f"s_mul_i32 s{sPG}, s{sPG}, 3072")
    P(f"s_lshl_b32 s{sYT}, s{sB0}, 7")
    P(f"s_add_u32 s{sPG}, s{sPG}, s{sYT}")
    P(f"s_lshl3_add_u32 s{sYT}, s{sC1}, s{sPD}")
    P(f"s_lshl2_add_u32 s{sYT}, s{sYT}, s3")
    P(f"s_mul_i32 s{sYT}, s{sYT}, {5*1280}")
    P(f"v_mul_u32_u24 v{V_PF}, 384, v{V_40}")
    P(f"v_min_u32 v{V_POLL}, 49, v2")
    P(f"v_lshlrev_b32 v{V_POLL}, 7, v{V_POLL}")
    P("s_waitcnt lgkmcnt(0)")
    P.ext(flat1(stamp(1)))
    P.ext(srd(S_X, 16, 2048 * 1280))
    if CFG["px"]:
        P(f"buffer_load_dword v{V_D0}, v{V_40}, s[{S_X}:{S_X+3}], s{sU1} offen{CFG['nt_px']}")
        P(f"buffer_load_dword v{V_D0}, v{V_40}, s[{S_X}:{S_X+3}], s{sHT} offen{CFG['nt_px']}")
    if CFG["wsoff"]:
        P(f"s_add_u32 s38, s38, {hex(CFG['wsoff'])}")
        P("s_addc_u32 s39, s39, 0")
    P.ext(srd(S_WS, 38, WS_SIZE))
    P(f"s_bitcmp1_b32 s2, {6 if CFG['mix'] else 1}")
    P("s_cbranch_scc1 O_prog")
    return finalize(P.L)


def gen_prog(typ):
    pf = "O" if typ else "E"
    INI = 8 if CFG["iniy"] else (252 if typ else 164)
    P = K()
    slow = []
    ntx, ntw, ntws = CFG["nt_x"], CFG["nt_w"], CFG["nt_ws"]

    def tag(L, name):
        for i in flat1(L):
            i.flags.add("S:" + name)
        return L

    dma_tok = {}

    def adv(reg, step, base, s):
        L = [I(f"s_add_u32 s{reg}, s{reg}, {step}")]
        if CFG["rota"] and s < 9:
            L.append([I(f"s_cmp_eq_u32 s{sRA}, {9 - s}"), I(f"s_cselect_b32 s{reg}, s{base}, s{reg}")])
        return L

    def dma_x(s):
        L = [I(f"s_add_u32 m0, s{sW4K}, {(s % 4)*SLOT}")]
        for p in range(4):
            L.append(I(f"buffer_load_dwordx4 v{V_X+p}, s[{S_X}:{S_X+3}], s{sSX} offen offset:{1024*p}{ntx} lds"))
        return L + adv(sSX, 128, sSX0, s)

    def dma_gu(lds, sreg, s):
        L = [I(f"s_add_u32 m0, s{sW4K}, {lds}")]
        for p in range(4):
            L.append(I(f"buffer_load_dwordx4 v{V_GU+p}, s[{S_GU}:{S_GU+3}], s{sreg} offen offset:{1024*p}{ntw} lds"))
        return L + adv(sreg, 64 * 3072, sSW0 if sreg == sSW else sSB0, s)

    def dma_wd(s):
        b = (s % 4) * SLOT + 16384
        L = [I(f"s_add_u32 m0, s{sW5K}, {b}")]
        for p in range(4):
            L.append(I(f"buffer_load_dwordx4 v{V_WD+p}, s[{S_WA}:{S_WA+3}], s{sSW} offen offset:{1024*p}{ntw} lds"))
        L.append(I(f"s_add_u32 m0, s{sW5K}, {b + 4096}"))
        L.append(I(f"buffer_load_dwordx4 v{V_WD+4}, s[{S_WA}:{S_WA+3}], s{sSW} offen{ntw} lds"))
        return L + adv(sSW, 128, sSW0, s)

    def last_vm(L):
        return [i for i in flat1(L) if i.kind == "vm"][-1].tok

    def dma_stage(s):
        if s < 10:
            L = dma_x(s) + (dma_wd(s) if typ else dma_gu((s % 4) * SLOT + 16384, sSW, s))
        else:
            L = dma_gu((s % 4) * SLOT, sSWB, 2 * (s - 10)) + dma_gu((s % 4) * SLOT + 16384, sSWB, 2 * (s - 10) + 1)
        dma_tok[s] = last_vm(L)
        return tag(L, f"dma{s}")

    def dma_ws(s):
        L = [I(f"s_add_u32 m0, s{sW4K}, {(s % 4)*SLOT}"), I(f"s_mul_i32 s{sAB + s % 4}, s{sSWS}, 160")]
        for p in range(4):
            L.append(I(f"buffer_load_dwordx4 v{V_WS+p}, s[{S_WSQ}:{S_WSQ+3}], s{sSWS} offen offset:{1024*p}{' nt' if s - 15 < CFG['ntf_ws'] else ntws} lds"))
        L.append(I(f"s_add_u32 s{sSWS}, s{sSWS}, 128"))
        L.append(I(f"s_and_b32 s{sSWS}, s{sSWS}, 0x7ff"))
        return tag(L, f"ws{s}")

    def dma_ab(s):
        b = (s % 4) * SLOT + 16384
        L = [I(f"s_add_u32 m0, s{sW5K}, {b}")]
        for p in range(4):
            L.append(I(f"buffer_load_dwordx4 v{V_AB}, s[8:11], s{sAB + s % 4} offen offset:{1024*p} sc1 lds"))
        L.append(I(f"s_add_u32 m0, s{sW5K}, {b + 4096}"))
        L.append(I(f"buffer_load_dwordx4 v{V_AB+1}, s[8:11], s{sAB + s % 4} offen sc1 lds"))
        dma_tok[s] = L[-1].tok
        return tag(L, f"ab{s}")

    npoll = [0]

    def poll(loads, check):
        k = npoll[0]; npoll[0] += 1
        li = [I(t) for t in loads]
        toks = [i.tok for i in li if i.tok is not None]
        chk = check(toks)
        grp = [chk[-1], I(f"s_cbranch_vccnz {pf}_slow{k}"), I(f"{pf}_ok{k}:")]
        S_ = [I(f"{pf}_slow{k}:")] + [I(t) for t in loads] + [I("s_waitcnt vmcnt(0)")] + check([])
        S_ += [I(f"s_cbranch_vccz {pf}_ok{k}"), I(f"s_sub_u32 s{sSPIN}, s{sSPIN}, 1"), I(f"s_cmp_gt_i32 s{sSPIN}, 0"),
               I(f"s_cbranch_scc1 {pf}_slow{k}"), I(f"s_branch {pf}_ok{k}")]
        slow.extend(finalize(S_))
        return li, chk[:-1] + [grp]

    def flag_poll(voff, soff):
        return poll([f"buffer_load_dword v{V_POLL}, v{voff}, s[8:11], s{soff} offen sc1"],
                    lambda need: [I(f"v_cmp_ne_u32 vcc, s{sNON}, v{V_POLL}", need=need)])

    def tag_check(regs):
        def chk(need):
            L = [I(f"v_xor_b32 v{V_POLL}, s{sNON}, v{regs[0]}", need=need)]
            for r in regs[1:]:
                L.append(I(f"v_xad_u32 v{V_POLL}, v{r}, s{sNON}, v{V_POLL}"))
            L.append(I(f"v_cmp_ne_u32 vcc, 0, v{V_POLL}"))
            return L
        return chk

    def flag_store(sreg, need):
        return I(f"buffer_store_dword v{V_NON}, v{V_L0}, s[8:11], s{sreg} offen sc1", need=need)

    def PF(voff, srd_, soff, kind, lines, off=0, late=False):
        return M(I(f"buffer_load_dword v{V_D1 if late else V_D0}, v{voff}, s[{srd_}:{srd_+3}], s{soff} offen offset:{off}{CFG['nt_pf'] if kind == 'c' else ' sc1'}",
                   flags=["pf"]), kind, lines)
    P(f"{pf}_prog:")
    if typ:
        P(f"s_cmp_eq_u32 s{sXQ}, 1")
        P.ext(srd_sel(S_WA, 22, 24, 640 * 1280))
        P.ext([PF(V_POLL, S_WA, sYT, "c", 50)])
        P(f"s_lshl2_add_u32 s{sSW}, s{sC1}, s3")
        P(f"s_mul_i32 s{sSW}, s{sSW}, {40*1280}")
    else:
        P("s_cmp_ge_u32 s3, 2")
        P.ext(srd_sel(S_GU, 28, 30, 640 * 3072))
        P.ext([PF(V_PF, S_GU, sPG, "c", 40)])
        P(f"s_lshl_b32 s{sSW}, s{sB0}, 7")
        P(f"s_add_u32 s{sSW}, s{sSW}, s{sSWB}")
    w0tok = P(f"buffer_load_dword v{V_NON}, off, s[8:11], 0 sc1", flags=["M:c1"])
    if typ:
        P("s_cmp_ge_u32 s3, 2")
        P.ext(srd_sel(S_GU, 28, 30, 640 * 3072))
    else:
        P.ext(srd(S_AUX, 32, 1536 * 1280))
    P(f"s_cmp_eq_u32 s{sXQ}, 1")
    P.ext(srd_sel(S_WSQ, 18, 20, 2048 * 4096))
    P.ext(srd(S_OUT, 34, 2048 * 1280))
    P.ext(ST_("p_ld"))
    if typ:
        P(f"s_mul_i32 s{sU1}, s{sC1}, 40")
        P(f"s_add_u32 s{sU1}, s{sU1}, s{sB32}")
        P(f"s_cmp_lt_u32 s{sB32}, 40")
        P(f"s_cselect_b32 s{sWDT}, 0, {hex(OOB)}")
        P(f"s_mul_i32 s{sHT}, s{sU1}, {4*1280}")
        P(f"s_add_u32 s{sHT}, s{sHT}, s{sWDT}")
        ssrd = S_WA
    else:
        P(f"s_lshl3_add_u32 s{sU1}, s{sRB}, s{sCG}")
        P(f"s_lshl2_add_u32 s{sU1}, s{sU1}, s3")
        P(f"s_mul_i32 s{sHT}, s{sU1}, {4*1280}")
        ssrd = S_X
        P(f"s_mov_b32 s{sYT}, s{sU1}")
        P(f"s_mul_i32 s{sPY}, s{sYT}, 205")
        P(f"s_lshr_b32 s{sPY}, s{sPY}, 11")
        P(f"s_mul_i32 s{sPY}, s{sPY}, {32*1280 - 1280}")
        P(f"s_lshl_b32 s{sWDT}, s{sYT}, 7")
        P(f"s_add_u32 s{sPY}, s{sPY}, s{sWDT}")
        P(f"s_cmp_lt_u32 s{sYT}, 480")
        P(f"s_cselect_b32 s{sWDT}, 0, {hex(OOB)}")
    FS = CFG["FS"]

    def flag_addr(dst, idx, base):
        P(f"s_lshl_b32 s{dst}, s{idx}, {FS}")
        P(f"s_add_u32 s{dst}, s{dst}, {hex(base)}")
    w1, w0 = sT2, sT3
    P(f"s_lshr_b32 s{w1}, s3, 1")
    P(f"s_and_b32 s{w0}, s3, 1")
    if typ:
        P(f"s_mul_i32 s{sCSL}, s{sCG}, 1280")
        P(f"s_add_u32 s{sCSL}, s{sCSL}, {hex(CSD)}")
        P(f"s_lshr_b32 s{sT0}, s{sRB}, 1")
        P(f"s_lshl2_add_u32 s{sT0}, s{sT0}, s3")
        P(f"s_and_b32 s{sT1}, s{sRB}, 1")
        P(f"s_lshl3_add_u32 s{sT0}, s{sT0}, s{sT1}")
        P(f"s_lshl3_add_u32 s{sSO}, s{sT0}, s{sCSL}")
        P(f"s_add_u32 s{sSO}, s{sSO}, s{sWDT}")
        P(f"s_lshl_b32 s{sT0}, s{sCG}, 6")
        P(f"s_add_u32 s{sT0}, s{sT0}, s{sB32}")
        P(f"s_mul_i32 s{sEA0}, s{sT0}, 10240")
        P(f"s_add_u32 s{sEA0}, s{sEA0}, {hex(ABT)}")
        P(f"s_add_u32 s{sEA1}, s{sEA0}, 8192")
        flag_addr(sFA, sT0, ABF)
        P(f"s_lshl_b32 s{sSGN}, s{sXQ}, 31")
        P(f"s_add_u32 s{sT1}, s{sB0}, 4")
    else:
        P(f"s_lshl_b32 s{sSO}, s{sU1}, 6")
        P(f"s_add_u32 s{sSO}, s{sSO}, {hex(STAT)}")
        P(f"s_lshl_b32 s{sJ3D}, s{sYT}, 12")
        P(f"s_add_u32 s{sJ3D}, s{sJ3D}, s{sWDT}")
        P(f"s_add_u32 s{sJ3D}, s{sJ3D}, {hex(WD)}")
        flag_addr(sFJ, sYT, WDF)
        P(f"s_add_u32 s{sFJ}, s{sFJ}, s{sWDT}")
        P(f"s_add_u32 s{sT1}, s{sB0}, 2")
    P(f"s_lshl_b32 s{sT0}, s{sT1}, 7")
    P(f"s_add_u32 s{sSWB}, s{sSWB}, s{sT0}")
    P(f"s_lshl_b32 s{sSTL}, s{sB32}, 9")
    P(f"s_add_u32 s{sSTL}, s{sSTL}, {hex(STAT)}")
    P(f"s_lshr_b32 s{sT0}, s{sB32}, 1")
    P(f"s_mul_i32 s{sEB0}, s{sT0}, 24")
    P(f"s_add_u32 s{sEB0}, s{sEB0}, s{sT1}")
    P(f"s_lshl2_add_u32 s{sEB0}, s{sEB0}, s3")
    P(f"s_lshl_b32 s{sEB0}, s{sEB0}, 11")
    P(f"s_add_u32 s{sEB0}, s{sEB0}, {hex(HH)}")
    P(f"s_xor_b32 s{sEB1}, s{sEB0}, 4096")
    P(f"s_lshl_b32 s{sFB}, s{sT0}, 5")
    P(f"s_add_u32 s{sFB}, s{sFB}, s{sT1}")
    P(f"s_lshl1_add_u32 s{sFB}, s{sFB}, s{w0}")
    flag_addr(sFB, sFB, HF)
    if not typ:
        P(f"s_sub_u32 s{sEA0}, s{sEB0}, 16384")
        P(f"s_sub_u32 s{sEA1}, s{sEB1}, 16384")
        P(f"s_sub_u32 s{sFA}, s{sFB}, {4 << FS}")
    P(f"s_lshl3_add_u32 s{sPA0}, s{sXQ}, s{sEB8}")
    P(f"s_lshl_b32 s{sPAB}, s{sPA0}, {5 + FS}")
    P(f"s_add_u32 s{sPAB}, s{sPAB}, {hex(ABF)}")
    P(f"s_lshl_b32 s{sPH}, s{sT64}, 6")
    P(f"s_mul_i32 s{sT0}, s3, 12")
    P(f"s_add_u32 s{sPH}, s{sPH}, s{sT0}")
    flag_addr(sPH, sPH, HF)
    P(f"s_mul_i32 s{sT1}, s{sEB8}, 5")
    P(f"s_lshr_b32 s{sPWD}, s{sT1}, 2")
    P(f"s_mul_i32 s{sT0}, s3, 120")
    P(f"s_add_u32 s{sPWD}, s{sPWD}, s{sT0}")
    flag_addr(sPWD, sPWD, WDF)
    P(f"s_lshl_b32 s{sT0}, s{sT0}, 2")
    P(f"s_add_u32 s{sWDB}, s{sT0}, s{sT1}")
    P(f"s_lshl_b32 s{sWDB}, s{sWDB}, 10")
    P(f"s_add_u32 s{sWDB}, s{sWDB}, {hex(WD)}")
    P(f"s_lshl2_add_u32 s{sHB}, s{sT64}, s3")
    P(f"s_mul_i32 s{sHB}, s{sHB}, {12*4096}")
    P(f"s_add_u32 s{sHB}, s{sHB}, {hex(HH)}")
    P(f"s_lshl2_add_u32 s{sT0}, s{sRB}, s{sCB4}")
    P(f"s_lshl2_add_u32 s{sT1}, s{sT0}, s3")
    P(f"s_lshl2_add_u32 s{sT1}, s{sT1}, s{sKS4}")
    P(f"s_mul_i32 s{sYPUB}, s{sT1}, 10240")
    P(f"s_add_u32 s{sYPUB}, s{sYPUB}, {hex(YP)}")
    P(f"s_cmp_eq_u32 s3, s{sKS4}")
    P(f"s_cselect_b32 s{sYPUB}, {hex(OOB)}, s{sYPUB}")
    P(f"s_cselect_b32 s{sRF}, 0, 10240")
    P(f"s_lshl2_add_u32 s{sT0}, s{sT0}, s{sKS4}")
    P(f"s_mul_i32 s{sYGA}, s{sT0}, 40960")
    P(f"s_lshl_b32 s{sT1}, s3, 11")
    P(f"s_add_u32 s{sYGA}, s{sYGA}, s{sT1}")
    P(f"s_add_u32 s{sYGA}, s{sYGA}, {hex(YP)}")
    for j, sg in enumerate((sG1, sG2, sG3)):
        P(f"s_xor_b32 s{sg}, s{sKS4}, {j+1}")
        P(f"s_mul_i32 s{sg}, s{sg}, 10240")
        P(f"s_add_u32 s{sg}, s{sg}, s{sYGA}")
    P(f"s_add_u32 s{sYGA}, s{sT1}, {OWQ}")
    P(f"s_lshl_b32 s{sT0}, s{w1}, 10")
    P(f"s_sub_u32 s{sT0}, s{sT0}, s{sT1}")
    P(f"s_add_u32 s{sT0}, s{sT0}, 8192")
    P(f"v_add_u32 v{V_G}, s{sT0}, v1")
    P(f"s_lshl1_add_u32 s{sXO}, s{sT64}, s{w1}")
    P(f"s_lshl3_add_u32 s{sXO}, s{sXO}, s{w0}")
    P(f"s_mul_i32 s{sXO}, s{sXO}, {4*1280}")
    P(f"s_mul_i32 s{sT0}, s{sEB8}, 160")
    P(f"s_add_u32 s{sXO}, s{sXO}, s{sT0}")
    P(f"s_or_b32 s{sT0}, s2, s3")
    P(f"s_cselect_b32 s{sLEAD}, {hex(OOB)}, 0")
    P(f"s_lshl1_add_u32 s{sSWS}, s{sCB4}, s{sRB}" if CFG["rotw"] else f"s_mov_b32 s{sSWS}, s{sRB}")
    P(f"s_lshl_b32 s{sSWS}, s{sSWS}, 8")
    P(f"s_and_b32 s{sSWS}, s{sSWS}, 0x7ff")
    P(f"s_add_u32 s{sPW1}, s{sSWS}, 256")
    P(f"s_and_b32 s{sPW1}, s{sPW1}, 0x7ff")
    P(f"s_lshl_b32 s{sT0}, s{sB32}, 17")
    P(f"s_and_b32 s{sT1}, s{sKS4}, 1")
    P(f"s_lshl_b32 s{sT1}, s{sT1}, 11")
    P(f"s_add_u32 s{sT0}, s{sT0}, s{sT1}")
    P(f"v_add_u32 v{V_WS}, s{sT0}, v{V_WS}")
    P(f"s_add_u32 s{sPW0}, s{sSWS}, s{sT0}")
    P(f"s_add_u32 s{sPW1}, s{sPW1}, s{sT0}")
    P(f"v_add_u32 v{V_WS+1}, {8*4096-1024}, v{V_WS}")
    P(f"v_xor_b32 v{V_WS+3}, 64, v{V_WS}")
    P(f"v_add_u32 v{V_WS+2}, {2*(8*4096-1024)}, v{V_WS+3}")
    P(f"v_add_u32 v{V_WS+3}, {3*(8*4096-1024)}, v{V_WS+3}")
    P(f"s_mul_i32 s{sT0}, s{sPA0}, {32*10240}")
    P(f"s_add_u32 s{sT0}, s{sT0}, s{sW5K}")
    P(f"s_add_u32 s{sT0}, s{sT0}, {hex(ABT)}")
    P(f"v_add_u32 v{V_AB}, s{sT0}, v1")
    P(f"v_add_u32 v{V_AB+1}, s{sT0}, v3")
    P(f"s_add_u32 s{sPA0}, s{sT0}, s{sW5K}")
    P(f"s_mul_i32 s{sT0}, s{sSWS}, 160")
    P(f"s_add_u32 s{sPA0}, s{sPA0}, s{sT0}")
    P(f"s_add_u32 s{sPA1}, s{sPA0}, 5120")
    P(f"s_mul_i32 s{sPD}, s{sPD}, 640")
    P(f"s_add_u32 s{sPD}, s{sPD}, s{sWDB}")
    P(f"s_lshl_b32 s{sPE}, s{sCB4}, 12")
    P(f"s_lshl1_add_u32 s{sPL}, s{sPE}, s{sHB}")
    P(f"s_add_u32 s{sPL}, s{sPL}, 16384")
    P(f"s_add_u32 s{sPE}, s{sPE}, s{sHB}")
    if CFG["rotd"]:
        assert not CFG["pw0"]
        P(f"s_xor_b32 s{sRE}, s{sRB}, s{sCB4}")
        P(f"s_and_b32 s{sRE}, s{sRE}, 3")
        P(f"s_lshl_b32 s{sRE}, s{sRE}, 12")
        P(f"s_lshl_b32 s{sRL}, s{sCB4}, 1")
        P(f"s_xor_b32 s{sRL}, s{sRL}, s{sRB}")
        P(f"s_and_b32 s{sRL}, s{sRL}, 7")
        P(f"s_lshl_b32 s{sRL}, s{sRL}, 12")
        P(f"s_sub_u32 s{sHB}, s{sHB}, 16384")
        P(f"s_sub_u32 s{sWDB}, s{sWDB}, 163840")
    P(f"s_mul_i32 s{sT0}, s{w0}, 5120")
    P(f"s_add_u32 s{sT0}, s{sT0}, 16384")
    P(f"v_add_u32 v{R_AB}, s{sT0}, v1")
    P(f"v_add_u32 v{R_AB+1}, {2*SLOT}, v{R_AB}")
    P(f"v_bfe_u32 v{T0}, v2, 3, 1")
    P(f"v_lshlrev_b32 v{T0}, 2, v{T0}")
    P(f"v_and_b32 v{TMP+4}, 2, v2")
    P(f"v_or_b32 v{T0}, v{T0}, v{TMP+4}")
    P(f"v_xor_b32 v{T0}, v{T0}, v{T1}")
    P(f"v_lshlrev_b32 v{T0}, 4, v{T0}")
    P(f"v_lshl_add_u32 v{V_ST}, v{T2}, 3, v{T3}")
    P(f"v_lshl_add_u32 v{R_WS}, v{V_ST}, 7, v{T0}")
    P(f"v_add_u32 v{R_X}, s{sW4K}, v{R_WS}")
    P(f"v_xor_b32 v{R_X}, s{sU0}, v{R_X}")
    P(f"v_xor_b32 v{R_X+1}, 64, v{R_X}")
    P(f"v_add_u32 v{R_X+2}, {2*SLOT}, v{R_X}")
    P(f"v_add_u32 v{R_X+3}, {2*SLOT}, v{R_X+1}")
    P(f"s_lshl_b32 s{sT0}, s{w1}, 13")
    P(f"v_add_u32 v{R_WS}, s{sT0}, v{R_WS}")
    P(f"v_xor_b32 v{R_WS+1}, 64, v{R_WS}")
    P(f"v_add_u32 v{R_WS+2}, {2*SLOT}, v{R_WS}")
    P(f"v_add_u32 v{R_WS+3}, {2*SLOT}, v{R_WS+1}")
    if typ:
        P(f"v_and_b32 v{R_WD}, 15, v2")
        P(f"v_lshl_add_u32 v{R_WD}, v{R_WD}, 7, v{T0}")
        P(f"v_add_u32 v{R_WD}, 16384, v{R_WD}")
        P(f"v_xor_b32 v{R_WD}, s{sU0}, v{R_WD}")
        P(f"v_xor_b32 v{R_WD+1}, 64, v{R_WD}")
        P(f"v_add_u32 v{R_WD+2}, {2*SLOT}, v{R_WD}")
        P(f"v_add_u32 v{R_WD+3}, {2*SLOT}, v{R_WD+1}")
    P(f"v_lshl_add_u32 v{R_GU}, v{T1}, 3, v{T2}")
    P(f"v_lshlrev_b32 v{R_GU}, 7, v{R_GU}")
    P(f"v_lshl_add_u32 v{R_GU}, v{T3}, 3, v{R_GU}")
    P(f"v_bfe_u32 v{R_GU+1}, v2, 3, 2")
    P(f"v_lshl_add_u32 v{R_GU}, v{R_GU+1}, 5, v{R_GU}")
    P(f"s_lshl_b32 s{sT0}, s{w1}, 6")
    P(f"s_lshl_b32 s{sT1}, s{w0}, 12")
    P(f"s_or_b32 s{sT0}, s{sT0}, s{sT1}")
    P(f"v_xor_b32 v{R_GU}, s{sT0}, v{R_GU}")
    for i in range(1, 8):
        P(f"v_xor_b32 v{R_GU+i}, {32*(i & 3) + 4096*(i >> 2)}, v{R_GU}")
    for i in range(8):
        P(f"v_add_u32 v{R_GU+8+i}, {2*SLOT}, v{R_GU+i}")
    if not typ:
        P(f"v_lshl_add_u32 v{VJ3R}, v{T1}, 2, v{T2}")
        P(f"v_lshlrev_b32 v{VJ3R}, 7, v{VJ3R}")
        P(f"v_lshl_add_u32 v{VJ3R}, v{T3}, 3, v{VJ3R}")
        P(f"v_bfe_u32 v{VJ3}, v2, 3, 1")
        P(f"v_lshl_add_u32 v{VJ3R}, v{VJ3}, 5, v{VJ3R}")
        P(f"v_add_u32 v{VJ3R}, s{sW4K}, v{VJ3R}")
        P(f"v_add_u32 v{VJ3R}, {SPARE}, v{VJ3R}")
        P(f"v_xor_b32 v{VJ3}, 32, v{VJ3R}")
    else:
        P(f"s_add_u32 s{sT0}, s{sW4K}, {SPARE + 1024}")
        P(f"v_lshl_add_u32 v{VK}, v{V_ST}, 2, s{sT0}")
        P(f"v_lshl_add_u32 v{VK+1}, v{T1}, 5, s{sT0}")
        P(f"v_and_b32 v{VK+2}, 15, v2")
        P(f"v_mul_u32_u24 v{SA+3}, 80, v{VK+2}")
        P(f"v_add_u32 v{SA+3}, s{sT0}, v{SA+3}")
        P(f"v_lshl_add_u32 v{SA+2}, v{T1}, 3, v{SA+3}")
        P(f"v_lshlrev_b32 v{VK+2}, 4, v{VK+2}")
    P(f"s_lshl_b32 s{sT0}, s{w1}, 8")
    P(f"s_add_u32 s{sT0}, s{sT0}, {SPARE}")
    P(f"v_and_b32 v{V_CR}, 15, v2")
    P(f"v_lshl_add_u32 v{V_CR}, v{V_CR}, 4, s{sT0}")
    P(f"v_xor_b32 v{V_CR+1}, 256, v{V_CR}")
    P(f"v_lshl_add_u32 v{V_CA}, s{w0}, 2, v{V_CR}")
    P(f"v_bfe_u32 v{TMP+4}, v2, 5, 1")
    P(f"v_lshl_add_u32 v{V_CA}, v{TMP+4}, 9, v{V_CA}")
    P(f"v_bfe_u32 v{TMP+4}, v2, 4, 1")
    P(f"v_lshl_add_u32 v{V_CA}, v{TMP+4}, 3, v{V_CA}")
    for i in range(4):
        P(f"v_mov_b32 v{ONES+i}, 0x3f803f80")
        if not CFG["iniy"]:
            P(f"v_mov_b32 v{INI+i}, -1")
    for j in range(4):
        P(f"v_cmp_eq_u32 vcc, {j}, v{T2}")
        P(f"v_cndmask_b32 v{TMP+4}, 0, v{ONES}, vcc")
        for i in range(4):
            P(f"v_accvgpr_write_b32 a{ACS + 4*j + i}, v{TMP+4}")
    P(f"v_mul_u32_u24 v{V_XO}, 1280, v{V_ST}")
    P(f"v_lshl_add_u32 v{V_XO}, v{T1}, 3, v{V_XO}")
    P(f"v_lshlrev_b32 v{V_ST}, 4, v{V_ST}")
    for t in range(4):
        P(f"s_add_u32 s{sT0}, s3, {t+1}")
        P(f"s_and_b32 s{sT0}, s{sT0}, 3")
        P(f"v_lshl_add_u32 v{V_H+t}, s{sT0}, 10, v1")
        P(f"s_mul_i32 s{sT0}, s{sT0}, 15360")
        P(f"v_add_u32 v{V_DW+t}, s{sT0}, v1")
    P(f"v_and_b32 v{V_FAB}, 31, v2")
    P(f"v_lshlrev_b32 v{V_FAB}, {FS}, v{V_FAB}")
    P(f"v_lshlrev_b32 v{V_FH}, {FS}, v{T3}")
    P(f"v_and_b32 v{V_FH2}, 7, v2")
    P(f"v_add_lshl_u32 v{V_FH2}, v{V_FH2}, 4, {FS}")
    P(f"v_lshrrev_b32 v{V_FWD}, 1, v2")
    P(f"v_min_u32 v{V_FWD}, 11, v{V_FWD}")
    P(f"v_mul_u32_u24 v{V_FWD}, 10, v{V_FWD}")
    P(f"v_and_b32 v{TMP+4}, 1, v2")
    P(f"v_add_lshl_u32 v{V_FWD}, v{TMP+4}, v{V_FWD}, {FS}")
    P(f"v_mov_b32 v{TMP+4}, {hex(OOB)}")
    P("v_cmp_eq_u32 vcc, 0, v2")
    P(f"v_cndmask_b32 v{V_L0}, v{TMP+4}, v2, vcc")
    P(f"v_mul_u32_u24 v{TMP+5}, 20, v{T1}")
    P(f"v_cmp_eq_u32 vcc, v{TMP+5}, v2")
    P(f"v_lshlrev_b32 v{SA+1}, 4, v{T1}")
    P(f"v_cndmask_b32 v{SA+1}, v{TMP+4}, v{SA+1}, vcc")
    if CFG["rota"]:
        assert not (CFG["pwd"] or CFG["pab"] or CFG["ph0"])
        P(f"s_and_b32 s{sRA}, s{sRB}, 7")
        P(f"s_mul_i32 s{sRA}, s{sRA}, 5")
        P(f"s_lshr_b32 s{sRA}, s{sRA}, 2")
        P(f"s_mov_b32 s{sSX0}, s{sSX}")
        P(f"s_mov_b32 s{sSW0}, s{sSW}")
        P(f"s_mov_b32 s{sSB0}, s{sSWB}")
        P(f"s_lshl_b32 s{sT0}, s{sRA}, 7")
        P(f"s_mul_i32 s{sT1}, s{sRA}, {64*3072}")
        P(f"s_add_u32 s{sSX}, s{sSX}, s{sT0}")
        P(f"s_add_u32 s{sSW}, s{sSW}, s{sT0 if typ else sT1}")
        P(f"s_add_u32 s{sSWB}, s{sSWB}, s{sT1}")
    P.ext(ST_("p_set"))
    if CFG["walk"]:
        P(f"; WALK {pf}")
        P.ext(ST_("p_walk"))
    P.ext(flat1(dma_stage(0)))
    stok = [P(f"buffer_load_dwordx4 {vr(SF + 4*i, 4)}, v{SA}, s[{ssrd}:{ssrd+3}], s{sHT} offen offset:{256*i}") for i in range(5)]
    P.ext(flat1(dma_stage(1)))
    P.ext(ST_("p_ld2"))
    P(f"v_readfirstlane_b32 s{sNON}, v{V_NON}", need=[w0tok])
    P(f"s_mul_i32 s{sNON}, s{sNON}, 1664525")
    P(f"s_add_u32 s{sNON}, s{sNON}, 1013904223")
    P(f"v_mov_b32 v{V_NON}, s{sNON}")

    S = Sched()
    CS = 20 if typ else 160
    ksteps = []
    xtok = {}

    def xreg(ks, T):
        return ar(4 * (2 * ks + T), 4)

    def gu_part(rd, m, sl, half, kap, buf, ks, acc):
        for f in (0, 1, 4, 5, 2, 3, 6, 7):
            mat, t = divmod(f, 4)
            tk = []
            for hh in range(2):
                off = (sl & 1) * SLOT + 16384 * half + 8192 * mat + 512 * hh
                i = I(f"ds_read_b64_tr_b16 {ar(buf + 4*f + 2*hh, 2)}, v{R_GU + 8*(sl >> 1) + 4*kap + t} offset:{off}")
                rd.append(i); tk.append(i.tok)
            for T in range(2):
                d = vr(acc + 4 * (2 * f + T), 4)
                m.append(I(f"{MF} {d}, {ar(buf + 4*f, 4)}, {xreg(ks, T)}, {'0' if ks == 0 else d}", need=tk + [xtok[ks, T]]))
            if kap == 0 and t < 2:
                d = vr(CS, 4)
                m.append(I(f"{MF} {d}, {ar(ACS + 4*(2*mat + t), 4)}, {ar(buf + 4*f, 4)}, {'0' if ks == 0 and f == 0 else d}", need=tk))

    def mk_passA(ks):
        s, kap = divmod(ks, 2)
        sl = s % 4
        buf = FB + 40 * (len(ksteps) % 2)
        rd, m = [], []
        for T in range(2):
            i = I(f"ds_read_b128 {xreg(ks, T)}, v{R_X + 2*(sl >> 1) + kap} offset:{(sl & 1)*SLOT + 512*T}")
            rd.append(i); xtok[ks, T] = i.tok
        if typ:
            for t in range(10):
                i = I(f"ds_read_b128 {ar(buf + 4*t, 4)}, v{R_WD + 2*(sl >> 1) + kap} offset:{(sl & 1)*SLOT + 2048*t}")
                rd.append(i)
                for T in range(2):
                    d = vr(ACCA + 4 * (2 * t + T), 4)
                    m.append(I(f"{MF} {d}, {xreg(ks, T)}, {ar(buf + 4*t, 4)}, {'0' if ks == 0 else d}", need=[i.tok, xtok[ks, T]]))
        else:
            gu_part(rd, m, sl, 1, kap, buf, ks, ACCA)
        ksteps.append(dict(rd=rd, m=m, stage=s, first=kap == 0))

    def mk_passB(ks):
        s = 10 + ks // 4
        q = ks % 4
        buf = FB + 40 * (len(ksteps) % 2)
        rd, m = [], []
        gu_part(rd, m, s % 4, q >> 1, q & 1, buf, ks, ACCB)
        ksteps.append(dict(rd=rd, m=m, stage=s, first=q == 0))

    def mk_y(k):
        s, kap = 15 + k // 2, k % 2
        sl = s % 4
        buf = FB + 40 * (len(ksteps) % 2)
        m, wt, ab = [], [], []
        for tt in range(4):
            wt.append(I(f"ds_read_b128 {ar(buf + 4*tt, 4)}, v{R_WS + 2*(sl >> 1) + kap} offset:{(sl & 1)*SLOT + 4096*(tt >> 1) + 512*(tt & 1)}"))
        for e in range(5):
            ab.append(I(f"ds_read_b128 {ar(buf + 16 + 4*e, 4)}, v{R_AB + (sl >> 1)} offset:{(sl & 1)*SLOT + 1024*(10*kap + e)}"))
        rd = [ab[0]] + wt + ab[1:]
        for e in range(5):
            for tt in range(4):
                d = vr(ACCA + 4 * (5 * tt + e), 4)
                m.append(I(f"{MF} {d}, {ar(buf + 16 + 4*e, 4)}, {ar(buf + 4*tt, 4)}, {'0' if k == 0 else d}", need=[ab[e].tok, wt[tt].tok]))
        ksteps.append(dict(rd=rd, m=m, stage=s, first=kap == 0))

    for ks in range(20): mk_passA(ks)
    for ks in range(20): mk_passB(ks)
    for k in range(32): mk_y(k)

    dmaL = {s: dma_stage(s) for s in range(2, 15)}
    wsL = {s: dma_ws(s) for s in range(15, 31)}
    abL = {s: dma_ab(s) for s in range(15, 31)}

    cspub, csrd = {}, {}
    for ps in (0, 1):
        if ps == 0 and typ:
            continue
        cspub[ps] = [I(f"v_cvt_pk_bf16_f32 v{CS+1}, v{CS}, v{CS}"), I(f"v_and_b32 v{CS+1}, 0xffff0000, v{CS+1}"),
                     I(f"v_sub_f32 v{CS+1}, v{CS}, v{CS+1}"), I(f"v_cvt_pk_bf16_f32 v{CS+1}, v{CS}, v{CS+1}"),
                     I(f"ds_write_b32 v{V_CA}, v{CS+1} offset:{4096*ps}")]
        csrd[ps] = {(p, mat): I(f"ds_read_b128 {vr(CSB + 8*p + 4*mat, 4)}, v{V_CR+p} offset:{4096*ps + 512*mat}")
                    for p in range(2) for mat in range(2)}
    ini = [I(f"s_add_u32 s{sYT}, s{sYPUB}, 8192")]
    for u in range(10):
        v, so, off = (1, sYPUB, 1024 * u) if u < 4 else ((3, sYPUB, 1024 * (u - 4)) if u < 8 else (1, sYT, 1024 * (u - 8)))
        ini.append(I(f"buffer_store_dwordx4 {vr(INI, 4)}, v{v}, s[8:11], s{so} offen offset:{off} sc1"))
    tag(ini, "ini")

    bar = {}
    kpos = []
    gC = {}
    pre = ST_("p_non") + [I("s_barrier", need=[dma_tok[0]])] + ST_("p_bar") + ksteps[0]["rd"]
    for K_, ks in enumerate(ksteps):
        g0 = S.n()
        kpos.append(g0)
        for m in ks["m"]:
            S.mfma(m)
        if K_ in (19, 39) and (K_ // 20) in cspub:
            acc = ACCB if K_ == 39 else ACCA
            gC[K_ // 20] = S.n()
            for p in range(2):
                for T in range(2):
                    for t2 in range(2):
                        for mat in range(2):
                            d = vr(acc + 4 * (2 * (4 * mat + 2 * p + t2) + T), 4)
                            S.mfma(I(f"{MF16} {d}, {vr(CSB + 8*p + 4*mat + 2*t2, 2)}, {vr(NMB + 2*T, 2)}, {d}",
                                     need=[csrd[K_ // 20][p, mat].tok]))
        if K_ == 1:
            for i in range(5):
                S.mfma(I(f"{MF} {vr(SD1, 4)}, {vr(ONES, 4)}, {vr(SF + 4*i, 4)}, {'0' if i == 0 else vr(SD1, 4)}", need=[stok[i]]))
                if not typ:
                    S.mfma(I(f"{MF} {vr(SD2, 4)}, {vr(SF + 4*i, 4)}, {vr(SF + 4*i, 4)}, {'0' if i == 0 else vr(SD2, 4)}", need=[stok[i]]))
        gend = S.n()
        nx = ksteps[K_ + 1] if K_ + 1 < len(ksteps) else None
        if nx is not None and nx["first"]:
            need = [dma_tok[nx["stage"]], ks["rd"][-1].tok]
            if K_ in (19, 39) and (K_ // 20) in cspub:
                need.append(cspub[K_ // 20][-1].tok)
            S.put(g0, [I("s_barrier", need=need)])
            bar[nx["stage"]] = g0
        else:
            S.put(g0, [wait_for(ks["rd"][-1].tok)])
            S.used[g0] += 4
        if nx is not None:
            rds = nx["rd"]
            if K_ in (19, 39) and (K_ // 20) in cspub:
                rds = list(csrd[K_ // 20].values()) + rds
            if CFG["rdsp"] and len(rds) > gend - 4 - g0 - 1:
                S.place(rds, g0 + 1, gend - 3, cap=8, spread=True)
            else:
                S.place(rds, g0 + 1, gend - (2 if nx["first"] else 4), cap=4)
        if K_ in (18, 38) and (K_ // 20) in cspub:
            S.place(cspub[K_ // 20], g0 + 14, gend - 2)
    kpos.append(S.n())

    ACCD = FB
    wdreg, hreg, wdtok, htok = {}, {}, {}, {}
    for kk in range(8):
        for e in range(5): wdreg[kk, e] = ar(20 * kk + 4 * e, 4)
    for kk in range(4):
        for t in range(4): hreg[kk, t] = vr(ACCB + 16 * kk + 4 * t, 4)
    for t in range(4):
        hreg[4, t] = vr(240 + 4 * t, 4)
        hreg[5, t] = ar(240 + 4 * t, 4)
        hreg[6, t] = hreg[0, t]
        hreg[7, t] = hreg[1, t]
    for e in range(5):
        wdreg[8, e] = ar(220 + 4 * e, 4)
        for j in range(3): wdreg[9 + j, e] = wdreg[j, e]
    for j in range(4):
        hreg[8 + j, 0] = hreg[2, j]
        hreg[8 + j, 1] = hreg[3, j]
        hreg[8 + j, 2] = wdreg[3, j]
        hreg[8 + j, 3] = wdreg[4, j]

    def kaddr(dst, base, kk, mul):
        if not CFG["rotd"]:
            return [I(f"s_add_u32 s{dst}, s{base}, {4096*mul*kk}")]
        L = [I(f"s_xor_b32 s{dst}, s{sRE if kk < 4 else sRL}, {4096*(kk+4)}")]
        if mul != 1:
            L.append(I(f"s_mul_i32 s{dst}, s{dst}, {mul}"))
        return L + [I(f"s_add_u32 s{dst}, s{dst}, s{base}")]

    def wd_load(kk):
        L = kaddr(sWDT, sWDB, kk, 10)
        for e in range(5):
            v, o = (1, 1024 * e) if e < 4 else (3, 0)
            L.append(I(f"buffer_load_dwordx4 {wdreg[kk, e]}, v{v}, s[8:11], s{sWDT} offen offset:{o} sc1"))
            wdtok[kk, e] = L[-1].tok
        return tag(L, f"wd{kk}")

    def h_load(kk):
        L = kaddr(sHT, sHB, kk, 1)
        for t in range(4):
            L.append(I(f"buffer_load_dwordx4 {hreg[kk, t]}, v{V_H+t}, s[8:11], s{sHT} offen sc1"))
            htok[kk, t] = L[-1].tok
        return tag(L, f"h{kk}")

    def h_load_t(t):
        L = []
        for j in range(4):
            L.append(I(f"buffer_load_dwordx4 {hreg[8+j, t]}, v{V_H+t}, s[8:11], s{sH8+j} offen sc1"))
            htok[8 + j, t] = L[-1].tok
        return L

    def wd_stage(kk):
        j = kk - 8
        L = kaddr(sWDT, sWDB, kk, 10) + [I(f"s_add_u32 m0, s{sW4K}, {STG[j]}")]
        for e in range(4):
            L.append(I(f"buffer_load_dwordx4 v1, s[8:11], s{sWDT} offen offset:{1024*e} sc1 lds"))
        L.append(I(f"s_add_u32 m0, s{sW4K}, {STG4 + 1024*j}"))
        L.append(I(f"buffer_load_dwordx4 v3, s[8:11], s{sWDT} offen sc1 lds"))
        R = []
        for e in range(5):
            a = STG[j] + 1024 * e if e < 4 else STG4 + 1024 * j
            v, o = (V_S0 + 1, a - 3 * SLOT) if a >= 3 * SLOT else (V_S0, a)
            R.append(I(f"ds_read_b128 {wdreg[kk, e]}, v{v} offset:{o}", need=[L[-1].tok]))
            wdtok[kk, e] = R[-1].tok
        return tag(L, f"wd{kk}"), R
    wdL = {kk: wd_load(kk) for kk in range(8)}
    wdS = {kk: wd_stage(kk) for kk in range(8, 12)}
    hL = {kk: h_load(kk) for kk in range(8)}
    htL = {t: h_load_t(t) for t in range(4)}

    def dacc(t, e):
        return ar(ACCD + 4 * (5 * t + e), 4) if t < 3 else vr(OWN + 4 * e, 4)

    def d_mfma(kk, t, e):
        d = dacc(t, e)
        S.mfma(I(f"{MF} {d}, {wdreg[kk, e]}, {hreg[kk, t]}, {'0' if kk == 0 else d}", need=[wdtok[kk, e], htok[kk, t]]))
    gD = S.n()
    for kk in range(8):
        for e in range(5):
            for t in range(4): d_mfma(kk, t, e)
    GA, Y, RED = ACCA, ACCA + 48, ACCB
    gtxt = []
    for s, sg in enumerate((sG1, sG2, sG3)):
        for u in range(3):
            v = 1 if u < 2 else V_G
            gtxt.append(f"buffer_load_dwordx4 {vr(GA + 12*s + 4*u, 4)}, v{v}, s[8:11], s{sg} offen offset:{1024*u if u < 2 else 0} sc1")

    def gat_check(need):
        L = [I(f"v_max3_u32 v{V_POLL}, v{GA}, v{GA+4}, v{GA+8}", need=need[:3])]
        for i in range(3, 9, 2):
            L.append(I(f"v_max3_u32 v{V_POLL}, v{V_POLL}, v{GA+4*i}, v{GA+4*i+4}", need=need[i:i+2]))
        L.append(I(f"v_cmp_eq_u32 vcc, -1, v{V_POLL}"))
        return L
    gown = [I(f"v_add_u32 v{TMP+4}, s{sYGA}, v1"), I(f"v_add_u32 v{TMP+5}, s{sYGA}, v{V_G}")]
    gown += [I(f"ds_read_b128 {vr(GA + 36 + 4*u, 4)}, v{TMP + 4 + u // 2} offset:{1024*(u & 1)}") for u in range(3)]
    gat, gck = poll(gtxt, gat_check)
    tag(gat, "gat")
    gT = {}
    for t in range(3):
        gT[t] = S.n()
        for kk in range(8, 12):
            for e in range(5): d_mfma(kk, t, e)
    gT[3] = S.n()
    for e in range(5):
        for kk in range(8, 12): d_mfma(kk, 3, e)
    gT["ysum"] = S.n()
    for e in range(5):
        for s in range(4):
            sel = vr(SEL + 6, 4) if e == 4 else (vr(SEL + 2, 4) if e % 2 == 0 else vr(SEL, 4))
            d = vr(Y + 4 * e, 4)
            S.mfma(I(f"{MF} {d}, {sel}, {vr(GA + 12*s + 4*(e // 2), 4)}, {'0' if s == 0 else d}", need=[gown[2 + e // 2].tok] if s == 3 else []))
    gEnd = S.n()
    k2 = kpos

    def kof(g):
        k = max(i for i in range(len(k2)) if k2[i] <= g)
        return round(k + (g - k2[k]) / 20, 2)

    C = CFG
    info = {}
    UN = []

    def kg(k):
        a = int(k)
        return k2[a] + int(round((k - a) * (k2[a + 1] - k2[a])))

    def U(name, items, early, prio, late=None, after=()):
        UN.append(Unit(name, items, early, prio, late, after))
        return UN[-1]

    def UA(name, items, at, **kw):
        at = at[typ] if isinstance(at, tuple) else at
        return U(name, items, kg(at) + 1, 0, **kw)
    DL = C["dl"]
    prevD = []
    for s_ in range(2, 15):
        L = dmaL[s_]
        h_ = [n for n, i_ in enumerate(L) if isinstance(i_, I) and "m0" in i_.text.split(",")[0]][1]
        e_ = bar[s_ - 3] + 1 if s_ >= 4 else 0
        prevD = [U(f"D{s_}a", L[:h_], e_, bar[s_] - DL - 1, after=prevD)]
        prevD = [U(f"D{s_}b", L[h_:], e_, bar[s_] - DL, after=prevD)]
    sf = K()
    a0, a1, a2, a3 = SF, SF + 1, SF + 2, SF + 3
    dp = "row_mask:0xf bank_mask:0xf"
    if typ:
        sf(f"v_add_f32_dpp v{a0}, v{SD1}, v{SD1} quad_perm:[1,0,3,2] {dp}")
        sf(f"v_mov_b32 v{a1}, v{V_NON}")
        sf(f"v_add_f32_dpp v{a0}, v{a0}, v{a0} quad_perm:[2,3,0,1] {dp}")
        sf(f"buffer_store_dwordx2 {vr(a0, 2)}, v{SA+1}, s[8:11], s{sSO} offen sc1")
    else:
        sf(f"v_add_f32_dpp v{a0}, v{SD1}, v{SD1} quad_perm:[1,0,3,2] {dp}")
        sf(f"v_mov_b32_dpp v{a1}, v{SD2} quad_perm:[0,0,0,0] {dp}")
        sf(f"v_add_f32_dpp v{a1}, v{SD2+1}, v{a1} quad_perm:[1,1,1,1] {dp}")
        sf(f"v_add_f32_dpp v{a0}, v{a0}, v{a0} quad_perm:[2,3,0,1] {dp}")
        sf(f"v_add_f32_dpp v{a1}, v{SD2+2}, v{a1} quad_perm:[2,2,2,2] {dp}")
        sf(f"v_mul_f32 v{a0}, {f2h(-1.0/640)}, v{a0}")
        sf(f"v_add_f32_dpp v{a1}, v{SD2+3}, v{a1} quad_perm:[3,3,3,3] {dp}")
        sf(f"v_mul_f32 v{a1}, {f2h(1.0/640)}, v{a1}")
        sf(f"v_fma_f32 v{a1}, -v{a0}, v{a0}, v{a1}")
        sf(f"v_max_f32 v{a1}, 0, v{a1}")
        sf(f"v_cvt_pk_bf16_f32 v{a0}, v{a0}, v{a1}")
        sf(f"v_and_b32 v{a1}, 0xffff0000, v{a0}")
        sf(f"v_lshlrev_b32 v{a0}, 16, v{a0}")
        sf(f"v_add_f32 v{a1}, {f2h(1e-5)}, v{a1}")
        sf(f"v_cvt_pk_bf16_f32 v{a1}, v{a1}, v{a1}")
        sf(f"v_lshlrev_b32 v{a1}, 16, v{a1}")
        sf(f"v_sqrt_f32 v{a1}, v{a1}")
        sf(f"v_mov_b32 v{a3}, v{V_NON}")
        sf(f"v_cvt_pk_bf16_f32 v{a1}, v{a1}, v{a1}")
        sf(f"v_lshlrev_b32 v{a1}, 16, v{a1}")
        sf(f"v_mul_f32 v{a2}, v{a1}, v{a1}")
        sf(f"v_rcp_f32 v{a1}, v{a1}")
        sf("s_nop 0")
        sf(f"buffer_store_dwordx4 {vr(a0, 4)}, v{SA+1}, s[8:11], s{sSO} offen sc1")
    sfe = S.place(sf.L[:-1], k2[2] + 3, k2[3] + 8)
    ustat = U("stat", [M(sf.L[-1], "s", 1)], sfe + 1, 0)
    if C["rota"]:
        M(dmaL[10], "c", 8)
    else:
        upf = UA("pgb", [PF(V_PF, S_GU, sPG, "c", 40, off=512 if typ else 256)], C["pgb"])
    M(ini, "s", 6)
    ia, ib = C["ini"][typ]
    prev = prevD if C["iniy"] else []
    for n in range(10):
        hd = [I(f"v_mov_b32 v{INI+i}, -1") for i in range(4)] if C["iniy"] and n == 0 else []
        prev = [UA(f"ini{n}", hd + ([ini[0]] if n == 8 else []) + [ini[1 + n]], ia + (ib - ia) * n / 9, after=prev,
                   late=None if C["iniy"] else k2[39] - 1)]
    uini = prev
    if C["pw0"]:
        pws = [I(f"v_lshrrev_b32 v{V_PF}, 1, v2"), I(f"v_lshlrev_b32 v{V_PF}, 5, v{V_PF}"), I(f"v_and_or_b32 v{V_PF}, v2, 1, v{V_PF}"),
               I(f"v_lshlrev_b32 v{V_PF}, 7, v{V_PF}"), PF(V_PF, S_WSQ, sPW0, "c", 64)]
        upf = UA("pw0", pws, C["pw0"], after=[upf])
        upf = UA("pw1", [PF(V_PF, S_WSQ, sPW1, "c", 64)], C["pw1"], after=[upf])
    else:
        for s_ in range(15, 19 if C["rotw"] else 15): M(wsL[s_], "c", 8)
    ujf = []
    if not typ:
        jl = [I(f"s_add_u32 m0, s{sW4K}, {SPARE}")]
        jl += [I(f"buffer_load_dwordx4 v{V_X+p}, s[{S_AUX}:{S_AUX+3}], s{sPY} offen offset:{1024*p}{CFG['nt_j3']} lds") for p in range(4)]
        jt = jl[-1].tok
        ujl = UA("j3ld", tag(M(jl, "c", 8), "j3"), C["j3ld"])
        JF = 144
        jr, js = [], []
        for tI in range(4):
            for hh in range(2):
                off = 2048 * hh + (64 * ((tI >> 1) ^ hh))
                jr.append(I(f"ds_read_b64_tr_b16 {ar(JF + 4*tI + 2*hh, 2)}, v{VJ3 if tI & 1 else VJ3R} offset:{off}", need=[jt]))
        for tI in range(4):
            js.append(I(f"buffer_store_dwordx4 {ar(JF + 4*tI, 4)}, v1, s[8:11], s{sJ3D} offen offset:{1024*tI} sc1",
                        need=[jr[2*tI].tok, jr[2*tI+1].tok]))
        ujr = U("jr", jr, 0, 0, late=kg(C["j3st"]) - 12, after=[ujl])
        ujs = UA("j3st", M(js, "s", 8), C["j3st"], after=[ujr])
        ujf = [UA("j3fl", [M(flag_store(sFJ, [js[-1].tok]), "s", 1)], C["j3fl"], after=[ujs])]
    lds = [f"buffer_load_dwordx4 {vr(ST + 4*T, 4)}, v{V_ST}, s[8:11], s{sSTL} offen offset:{64*T} sc1" for T in range(2)]
    tags = [ST + 3, ST + 7]
    if typ:
        lds += [f"buffer_load_dwordx4 {vr(CSR, 4)}, v1, s[8:11], s{sCSL} offen sc1",
                f"buffer_load_dwordx4 {vr(CSR + 4, 4)}, v{VK+2}, s[8:11], s{sCSL} offen offset:1024 sc1"]
        tags += [CSR + 1, CSR + 3, CSR + 5, CSR + 7]
    sl_, sc_ = poll(lds, tag_check(tags))
    kc = K()
    RS = CSB
    if typ:
        wt_ = []
        for h in range(2):
            kc(f"ds_write2_b32 v{SA+2}, v{CSR+4*h}, v{CSR+4*h+2} offset0:{64 + 8*h} offset1:{65 + 8*h}")
        for T in range(2):
            kc(f"v_xor_b32 v{ST+4*T+3}, s{sSGN}, v{ST+4*T+1}")
            wt_.append(kc(f"ds_write2_b32 v{VK}, v{ST+4*T}, v{ST+4*T+3} offset0:{4*T} offset1:{32 + 4*T}"))
        cst = [kc(f"ds_read_b128 {vr(CSV + 4*h, 4)}, v{SA+3} offset:{256 + 16*h}") for h in range(2)]
        cst.append(kc(f"ds_read_b64 {vr(CSV + 8, 2)}, v{SA+3} offset:{256 + 32}"))
        nmt = [kc(f"ds_read_b128 {vr(NM + 4*h, 4)}, v{VK+1} offset:{16*h}") for h in range(2)]
        rst = [kc(f"ds_read_b128 {vr(RS + 4*h, 4)}, v{VK+1} offset:{128 + 16*h}") for h in range(2)]
    for T in range(2):
        r = ST + 4 * T
        kc(f"v_mul_f32 v{NMB+2*T}, 0.25, v{r}".replace("0.25", f2h(0.25)))
        kc(f"v_mul_f32 v{r+3}, v{r+1}, v{r+1}", need=wt_ if typ else [])
        kc(f"v_cvt_pk_bf16_f32 v{NMB+2*T}, v{NMB+2*T}, v{NMB+2*T}")
        kc(f"v_mul_f32 v{r+1}, {f2h(C1)}, v{r+1}")
        kc(f"v_mul_f32 v{r+3}, {f2h(0.044715)}, v{r+3}")
        kc(f"v_mov_b32 v{NMB+2*T+1}, v{NMB+2*T}")
        kc(f"v_mul_f32 v{r+3}, v{r+3}, v{r+1}")
    usl = UA("stl", M(sl_, "m", 4), C["stl"], after=[ustat])
    gk = kg(C["st_ck"][typ])
    ust = U("stck", sc_, gk - 12, 0, late=gk - 1, after=[usl])

    def epi_gu(acc, so):
        L, St = [], []
        for p in range(2):
            for T in range(2):
                o = acc + 4 * (2 * (2 * p) + T)
                c = ST + 4 * T
                for t2 in range(2):
                    g = acc + 4 * (2 * (2 * p + t2) + T)
                    u = g + 32
                    R = range(4)
                    for i in R:
                        L.append(I(f"v_mul_f32 v{TMP+i}, v{g+i}, v{g+i}"))
                        L.append(I(f"v_mul_f32 v{u+i}, v{g+i}, v{u+i}"))
                        L.append(I(f"v_fma_f32 v{TMP+i}, v{TMP+i}, v{c+3}, v{c+1}"))
                        L.append(I(f"v_mul_f32 v{g+i}, v{TMP+i}, v{g+i}"))
                    for i in R: L.append(I(f"v_exp_f32 v{g+i}, v{g+i}"))
                    for i in R: L.append(I(f"v_fma_f32 v{g+i}, v{g+i}, v{c+2}, v{c+2}"))
                    for i in R: L.append(I(f"v_rcp_f32 v{g+i}, v{g+i}"))
                    for i in R: L.append(I(f"v_mul_f32 v{u+i}, v{u+i}, v{g+i}"))
                    L.append(I(f"v_cvt_pk_bf16_f32 v{o+2*t2}, v{u}, v{u+1}"))
                    L.append(I(f"v_cvt_pk_bf16_f32 v{o+2*t2+1}, v{u+2}, v{u+3}"))
                St.append(I(f"buffer_store_dwordx4 {vr(o, 4)}, v1, s[8:11], s{so+p} offen offset:{1024*T} sc1"))
        return L, M(St, "s", 8)

    def epi_ab():
        L, St = [], []
        for t in range(10):
            o = ACCA + 8 * t
            for j in range(8):
                L.append(I(f"v_mul_f32 v{o+j}, v{o+j}, v{RS+j}", need=[rst[j // 4]]))
            for j in range(4):
                L.append(I(f"v_cvt_pk_bf16_f32 v{o+j}, v{o+2*j}, v{o+2*j+1}"))
            v, so, off = (1, sEA0, 1024 * t) if t < 4 else ((3, sEA0, 1024 * (t - 4)) if t < 8 else (1, sEA1, 1024 * (t - 8)))
            St.append(I(f"buffer_store_dwordx4 {vr(o, 4)}, v{v}, s[8:11], s{so} offen offset:{off} sc1"))
        return L, M(St, "s", 8)

    def epi_assert(g):
        for q in range(8):
            assert min(S.lastpos[34 * q:]) > g + 2 * q + 2
    xl = K()
    xt = [xl(f"buffer_load_dwordx2 {vr(XR[e], 2)}, v{V_XO}, s[{S_X}:{S_X+3}], s{sXO} offen offset:{32*e}", flags=["M:h16"]) for e in range(5)]
    U("xres", xl.L, kg(C["xres"]), kg(C["xres"] + 3))
    pl, pc = flag_poll(V_FWD, sPWD)
    pwd = [I(f"v_min_u32 v{V_PF}, 59, v2"), I(f"v_mul_u32_u24 v{V_POLL}, 205, v{V_PF}"), I(f"v_lshrrev_b32 v{V_POLL}, 10, v{V_POLL}"),
           I(f"v_mul_u32_u24 v{V_POLL}, {40960 // 128 - 5}, v{V_POLL}"), I(f"v_add_lshl_u32 v{V_PF}, v{V_PF}, v{V_POLL}, 7")]
    if C["pwd"]:
        u5 = UA("wdp", pwd + M(pl, "m", 4) + [PF(V_PF, S_WS, sPD, "m", 60)], C["wdp"], after=[upf, ust] + ujf)
    else:
        u5 = UA("wdp", M(pl, "m", 4), C["wdp"], after=[ust] + ujf)
    uwc = UA("wdck", pc, C["wdp"][typ] + C["ckd"], after=[u5])
    prev = [uwc]
    for kk in C["wdm"]: M(wdL[kk], "m", 8)
    for kk in C["hm"]: M(hL[kk], "m", 8)
    for kk in range(8):
        prev = [U(f"wd{kk}", wdL[kk], k2[20 + (20 * kk + 20 + 7) // 8], gD - 200 + kk, after=prev)]
    uwd7 = prev

    def chunks(name, L, St, a, b, n, late=None):
        out, prev = [], []
        for q in range(n):
            e_ = a + (b - a) * (q + 1) // n
            out.append((L[len(L) * q // n:len(L) * (q + 1) // n], a + (b - a) * q // n, e_))
            prev = [U(f"{name}{q}", St[len(St) * q // n:len(St) * (q + 1) // n], e_, 0, after=prev, late=late)]
        return out, prev
    if typ:
        LA, St = epi_ab()
        LA, ua = chunks("abst", LA, St, k2[19] + 5, k2[C["ab_end"]], 5)
        uaf = UA("abfl", [M(flag_store(sFA, [St[-1].tok]), "s", 1)], C["ab_flag"], after=ua)
    else:
        LA, St = epi_gu(ACCA, sEA0)
        LA, ua = chunks("hast", LA, St, gC[0] + 5, gC[1] + 2, 4, late=k2[40] - 3)
        uaf = UA("hafl", [M(flag_store(sFA, [St[-1].tok]), "s", 1)], C["ha_flag"], after=ua)
    pl, pc = flag_poll(V_FAB, sPAB)
    if C["pab"]:
        pl = pl + [PF(V_40, S_WS, sPA0, "m", 40), PF(V_40, S_WS, sPA1, "m", 40)]
    else:
        for s_ in (15, 16): M(abL[s_], "m", 8)
    u6 = UA("abp", [M(pl[0], "m", 1)] + pl[1:], C["abp"], after=[uwc] + ([uaf] if typ else []))
    uac = UA("abck", pc, C["abp"] + C["ckd"], after=[u6])
    pw_, pa_ = prevD, [uac]
    for s_ in range(15, 31):
        pw_ = [U(f"ws{s_}", wsL[s_], bar[s_ - 3] + 1, bar[s_] - DL - 1, after=pw_)]
        pa_ = [U(f"ab{s_}", abL[s_], bar[s_ - 3] + 1, bar[s_] - DL, after=pa_ + pw_)]
    e0 = C["epb_end"]
    LB, St = epi_gu(ACCB, sEB0)
    LB, ub = chunks("hbst", LB, St, gC[1] + 5, k2[e0], 4)
    ubf = UA("hbfl", [M(flag_store(sFB, [St[-1].tok, ini[-1].tok]), "s", 1)], C["hb_flag"], after=ub + uini)
    pl, pc0 = flag_poll(V_FH, sPH)
    u8 = UA("hp0", M(pl, "m", 1) + ([PF(V_40, S_WS, sPE, "m", 40, late=True)] if C["ph0"] else []), C["hp0"], after=[uac, uaf])
    uh0 = [UA("h0ck", pc0, C["hp0"] + C["ckd"], after=[u8])]
    prev = uh0 + ub
    for kk in range(4):
        prev = [U(f"h{kk}", hL[kk], 0, gD - 100 + 20 * kk, after=prev)]
    mi = K()
    mi(f"v_and_b32 v{TMP+4}, 15, v2")
    mi(f"v_lshrrev_b32 v{TMP+5}, 4, v2")
    mi(f"v_lshlrev_b32 v{TMP+5}, 2, v{TMP+5}")
    mi(f"v_sub_u32 v{TMP+4}, v{TMP+4}, v{TMP+5}")
    mi(f"v_lshlrev_b32 v{TMP+5}, 4, v{TMP+4}")
    mi(f"v_mov_b32 v{TMP+6}, 0x3f80")
    mi(f"v_lshlrev_b32 v{TMP+5}, v{TMP+5}, v{TMP+6}")
    mi(f"v_lshrrev_b32 v{TMP+4}, 1, v{TMP+4}")
    for r in (0, 1, 4, 5):
        mi(f"v_mov_b32 v{SEL+r}, 0")
    for d in range(2):
        mi.L.append([I(f"v_cmp_eq_u32 vcc, {d}, v{TMP+4}"), I(f"v_cndmask_b32 v{SEL+2+d}, 0, v{TMP+5}, vcc")])
    mi.L.append([I("s_bitcmp1_b32 s3, 0"), I("s_cselect_b64 vcc, -1, 0")] +
                [I(f"v_cndmask_b32 v{SEL+6+i}, v{SEL+2+i}, v{SEL+i}, vcc") for i in range(4)])
    for j in range(4):
        mi.ext(kaddr(sH8 + j, sHB, 8 + j, 1))
    pl, pc = flag_poll(V_FH2, sPH)
    u9 = UA("hp", [I(f"v_lshlrev_b32 v{V_FAB}, 7, v2")] + M(pl, "m", 1) + ([PF(V_FAB, S_WS, sPL, "m", 64, late=True)] if C["ph1"] else []),
            C["hp"], after=uh0 + [ubf])
    uhc = UA("hck", pc, C["hp"] + C["ckd"], late=gD + 38, after=[u9])
    prev = prev + [uhc]
    for kk in range(4, 8):
        prev = [U(f"h{kk}", hL[kk], gD + 20 * (kk - 5) if kk >= 6 else 0, gD - DL + 20 * kk, after=prev)]
    for t in range(4):
        prev = [U(f"ht{t}", htL[t], gD + (60, 80, 80, 100)[t], gT[t] - DL, after=prev)]
    prev = uwd7
    for kk in range(8, 12):
        prev = [U(f"wd{kk}", wdS[kk][0], bar[28 + (kk - 8) // 2] + 1, gD + 10 + kk, after=prev)]
    xu = K()
    for e in range(5):
        b = XU + 4 * e
        xu(f"v_lshlrev_b32 v{b}, 16, v{XR[e]}", need=[xt[e]])
        xu(f"v_and_b32 v{b+1}, 0xffff0000, v{XR[e]}")
        xu(f"v_lshlrev_b32 v{b+2}, 16, v{XR[e]+1}")
        xu(f"v_and_b32 v{b+3}, 0xffff0000, v{XR[e]+1}")

    pub = K()
    units = [(ACCA + 4 * (5 * tt + 2 * h), ACCA + 4 * (5 * tt + 2 * h + 1)) for tt in range(4) for h in range(2)]
    units += [(ACCA + 4 * (10 * p + 4), ACCA + 4 * (10 * p + 9)) for p in range(2)]
    pub(f"s_add_u32 s{sYT}, s{sYPUB}, 8192")
    for u, (a, b) in enumerate(units):
        pub(f"v_cvt_pk_bf16_f32 v{a}, v{a}, v{a+1}")
        pub(f"v_cvt_pk_bf16_f32 v{a+1}, v{a+2}, v{a+3}")
        pub(f"v_cvt_pk_bf16_f32 v{a+2}, v{b}, v{b+1}")
        pub(f"v_cvt_pk_bf16_f32 v{a+3}, v{b+2}, v{b+3}")
        v, so, off = (1, sYPUB, 1024 * u) if u < 4 else ((3, sYPUB, 1024 * (u - 4)) if u < 8 else (1, sYT, 1024 * (u - 8)))
        pub(f"buffer_store_dwordx4 {vr(a, 4)}, v{v}, s[8:11], s{so} offen offset:{off} sc1", flags=["M:s6"])
        ow = pub(f"ds_write_b128 v{V_CR+1}, {vr(a, 4)} offset:{OWQ + 1024*u}")
    tag(pub.L, "pub")
    gB = gD + 40
    up = U("pub", pub.L, gD + 1, 0, late=gB - 1)
    S.put(gB, [I("s_barrier", need=[ow])])
    U("lead", [M(flag_store(sLEAD, []), "h", 1)], gB + 1, gEnd)
    U("gat", M(gat, "m", 8), gD + C["gat"], 0, after=[up])
    S.place(gown + wdS[8][1] + wdS[9][1], gD + 100, gD + 130, cap=4)
    S.place(wdS[10][1] + wdS[11][1], gD + 130, gD + 150, cap=4)
    wl = None
    for t in range(3):
        W = [I(f"ds_write_b128 v{V_DW+t}, {dacc(t, e)} offset:{XCH + 5120*t + 1024*e}") for e in range(5)]
        S.place(W, gT[t + 1] + 1, gT[t + 1] + 12, cap=4)
        wl = W[-1].tok
    rr = {}
    R = [I("s_barrier", need=[wl])]
    for e in range(5):
        for j in range(3):
            R.append(I(f"ds_read_b128 {vr(RED + 12*e + 4*j, 4)}, v{V_DW+3} offset:{XCH + 5120*j + 1024*e}"))
            rr[e, j] = R[-1].tok
    S.place(R, gT[3] + 12, gT["ysum"])
    fin = K()
    P2 = lambda r: vr(r, 2)
    fin(f"s_mov_b32 s{sT0}, {f2h(-L2E)}")
    fin(f"s_mov_b32 s{sT1}, {f2h(-L2E)}")
    fin(f"s_mov_b32 s{sT2}, 1.0")
    fin(f"s_mov_b32 s{sT3}, 1.0")
    S.place(fin.L, gT[3], gT[3] + 12)
    fin = K()
    for e in range(5):
        b, d = RED + 12 * e, OWN + 4 * e
        for i in (0, 2): fin(f"v_pk_add_f32 {P2(b+i)}, {P2(b+i)}, {P2(b+4+i)}", need=[rr[e, 0], rr[e, 1]])
        for i in (0, 2): fin(f"v_pk_add_f32 {P2(d+i)}, {P2(d+i)}, {P2(b+8+i)}", need=[rr[e, 2]])
        for i in (0, 2): fin(f"v_pk_add_f32 {P2(d+i)}, {P2(d+i)}, {P2(b+i)}")
        for i in (0, 2): fin(f"v_pk_mul_f32 {P2(b+i)}, {P2(d+i)}, s[{sT0}:{sT1}]")
        for i in range(4): fin(f"v_exp_f32 v{b+i}, v{b+i}")
    for e in range(5):
        b, d = RED + 12 * e, OWN + 4 * e
        for i in (0, 2): fin(f"v_pk_add_f32 {P2(b+i)}, {P2(b+i)}, s[{sT2}:{sT3}]")
        for i in range(4): fin(f"v_rcp_f32 v{b+i}, v{b+i}")
    for e in range(5):
        b, d = RED + 12 * e, OWN + 4 * e
        for i in (0, 2): fin(f"v_pk_mul_f32 {P2(d+i)}, {P2(d+i)}, {P2(b+i)}")
    S.put(gT["ysum"], fin.L + gck)
    pipe = Pipe(C["ch"], C["W"], C["Q"], C["lat"])
    t = 600.0
    for i_ in [PF(V_40, S_X, 0, "c", 40), PF(V_40, S_X, 0, "c", 40)] + P.L + pre:
        for k_ in i_.need:
            if k_.cls == "vm": t = max(t, pipe.done[id(k_)])
        t = pipe.issue(i_, t) + 5 if i_.kind == "vm" else t + 5
    times = place_units(S, pipe, t, UN, tm=C["tm"])
    if C["show"]:
        print(pf, "model", " ".join(f"k{k}:{times[k2[k]]/1e3:.2f}" for k in range(0, 73, 4)), f"end:{times[gEnd]/1e3:.2f}")
        print("  ", " ".join(f"{u.name}:{kof(u.pos[0])}-{kof(u.pos[-1])}" for u in sorted(UN, key=lambda u: u.pos[0])))
    un = {u.name: u for u in UN}
    S.place(kc.L, gk, gk + (20 if typ else 22))
    if typ:
        k0 = int(C["st_ck"][1]) + 1
        nk = 19 - k0
        tiles = list(range(20))
        for kq in range(nk):
            mine = tiles[kq::nk]
            for idx in mine:
                t, T = divmod(idx, 2)
                L = [I(f"v_fmac_f32 v{ACCA + 4*idx + i}, v{NM + 4*T + i}, v{CSV + t}", need=[nmt[T], cst[t // 4]]) for i in range(4)]
                g = k2[k0 + kq]
                if idx < 10:
                    S.place(L, g + idx + 5, g + min(idx + 14, 20))
                else:
                    S.place(L, g + max(idx - 13, 1), g + idx - 2)
        for q, (L, a, b) in enumerate(LA):
            info[f"A{q}"] = place_dag(S, L, a, b, window=6)
            for t in range(2):
                assert min(S.lastpos[12 * t:]) > k2[19] + 2 * (2 * q + t) + 2
    else:
        assert gk + 22 <= gC[0]
        for q, (L, a, b) in enumerate(LA):
            info[f"A{q}"] = place_dag(S, L, a, b, window=C["win"])
            assert min(S.lastpos[34:]) > gC[0] + 4
    for q, (L, a, b) in enumerate(LB):
        info[f"B{q}"] = place_dag(S, L, a, b, window=C["win"])
        assert min(S.lastpos[34:]) > gC[1] + 4
    S.place(mi.L + xu.L + [I(f"v_add_u32 v{V_CR+1}, s{sRF}, v1")], k2[e0], k2[e0 + 6])
    sg = [I(f"v_add_u32 v{V_S0}, s{sW4K}, v1"), I(f"v_add_u32 v{V_S0+1}, {3*SLOT}, v{V_S0}")]
    S.place(sg, un["ws30"].pos[-1] + 1, gD + 90)
    for e in range(5):
        fin2 = K()
        d, y, x = OWN + 4 * e, Y + 4 * e, XU + 4 * e
        for i in range(4): fin2(f"v_fma_f32 v{d+i}, v{d+i}, v{y+i}, v{x+i}")
        fin2(f"v_cvt_pk_bf16_f32 v{d}, v{d}, v{d+1}")
        fin2(f"v_cvt_pk_bf16_f32 v{d+1}, v{d+2}, v{d+3}")
        fin2(f"buffer_store_dwordx2 {vr(d, 2)}, v{V_XO}, s[{S_OUT}:{S_OUT+3}], s{sXO} offen offset:{32*e}")
        a = min(gT["ysum"] + 4 * e + 6, gEnd)
        S.place(fin2.L, a, min(a + 4, gEnd + 1))
    pts = [(k2[k], f"k{k}") for k in range(0, 72, CFG["tsk"])] + [(gD + 20 * i, f"d{i}") for i in range(13)] + [(gT["ysum"] + 1, "ys"), (gEnd, "end")]
    for g, nm in pts:
        n = 1 if g < gD else 0
        S.gap[g] = S.gap[g][:n] + ST_(nm) + S.gap[g][n:]
    info = {k: v[1] for k, v in info.items()}
    info.update(A=S.est_cycles(0, k2[20]), B=S.est_cycles(k2[20], k2[40]), y=S.est_cycles(k2[40], gD), d=S.est_cycles(gD, gEnd),
                tail=S.used[gEnd], nm=gEnd)
    body, names = expand_stamps(P.L + pre + S.flat(), 2)
    body += stamp_end(len(names) + 2) + [I("s_endpgm")]
    if CFG["TS"]:
        body.append(I(f"; NAMES{typ} start karg " + " ".join(names) + " fin"))
    fin_ = finalize(body)
    check(fin_)
    return fin_ + slow, info


def check(L):
    pend = {"vm": [], "lgkm": []}
    lastw = {}
    owner = {}
    for n, ins in enumerate(L):
        if ins.kind in ("label", "meta"):
            continue
        if ins.text.startswith("s_waitcnt"):
            for c, nm in (("vm", "vmcnt"), ("lgkm", "lgkmcnt")):
                m = re.search(nm + r"\((\d+)\)", ins.text)
                if m:
                    k = int(m.group(1))
                    pend[c] = pend[c][len(pend[c]) - k:] if k < len(pend[c]) else pend[c]
                    if k == 0: pend[c] = []
            continue
        touched = ins.rd | ins.wr
        for c in pend:
            for p in pend[c]:
                if p.wr & touched and not ("pf" in p.flags and "pf" in ins.flags):
                    raise SystemExit(f"PENDING hazard at {n}: {ins.text}  <- {p.text}")
        for t in ins.need:
            o = owner.get(id(t))
            if o is not None:
                for r in o.wr & ins.rd:
                    if lastw.get(r) is not o:
                        raise SystemExit(f"CLOBBER at {n}: {ins.text} expects {o.text} but last writer {lastw[r].text}")
        st = [f for f in ins.flags if f.startswith("S:")]
        if st and ins.kind == "vm":
            for r in ins.rd:
                if (r == ("x", "m0") or r in (("s", sWDT), ("s", sHT), ("s", sYT))) and r in lastw:
                    st2 = [f for f in lastw[r].flags if f.startswith("S:")]
                    if st2 != st:
                        raise SystemExit(f"STREAM clash at {n}: {ins.text} {st} vs {lastw[r].text} {st2}")
        if ins.tok is not None and ins.tok.cls in pend:
            pend[ins.tok.cls].append(ins)
            owner[id(ins.tok)] = ins
            assert len(pend["vm"]) <= 63, f"vm overflow at {n}"
        for r in ins.wr:
            lastw[r] = ins


def build(path, verbose=True):
    lab = NAME + "_kernel"
    s = f"; generated by work/gen5.py mix={int(CFG['mix'])}\n; @launch grid=(256,1,1) block=(256,1,1) lds=163840\n"
    s += '.amdgcn_target "amdgcn-amd-amdhsa--gfx950"\n.text\n'
    s += f".globl {lab}\n.p2align 8\n.type {lab},@function\n{lab}:\n" + text(gen_head())
    for typ in (0, 1):
        L, info = gen_prog(typ)
        if verbose:
            nn = sum(1 for i in L if i.text.startswith("s_nop"))
            nw = sum(1 for i in L if i.text.startswith("s_waitcnt"))
            print("EO"[typ], info, "instrs", len(L), "nops", nn, "waits", nw)
        s += text(L)
    s += "L_end:\n  s_endpgm\n"
    s = s.replace("CODE_MAX", f"(L_end-{lab}-256)")
    s += '.section .rodata,"a"\n.p2align 6\n'
    s += (f".amdhsa_kernel {lab}\n  .amdhsa_next_free_vgpr 512\n  .amdhsa_next_free_sgpr 102\n  .amdhsa_accum_offset 256\n"
          "  .amdhsa_group_segment_fixed_size 0\n  .amdhsa_kernarg_size 96\n  .amdhsa_user_sgpr_count 2\n"
          "  .amdhsa_user_sgpr_kernarg_segment_ptr 1\n  .amdhsa_system_sgpr_workgroup_id_x 1\n.end_amdhsa_kernel\n")
    if CFG["walk"]:
        s = add_walk(s.replace(".p2align 8", ".p2align 12"), CFG["walk"])
    open(path, "w").write(s)


def add_walk(s, nl):
    import subprocess
    ent = {pf: ["s_mov_b64 exec, 0"] + [x for w in range(3) for x in (f"s_cmp_eq_u32 s3, {w}", f"s_cbranch_scc1 {pf}_pg{w}")] +
           [f"s_branch {pf}_pg3", f"{pf}_pgret:", "s_mov_b64 exec, -1"] for pf in "EO"}
    L = []
    for l in s.split("\n"):
        if l.strip().startswith("; WALK"):
            L += ent[l.split()[2]]
        else:
            L.append(l)
    tmp = "\n".join(L) + "\n.text\n" + "".join(f"{pf}_pg{w}:\n" for pf in "EO" for w in range(4))
    open("walk.s", "w").write(tmp)
    subprocess.run(["clang", "-c", "-x", "assembler", "-target", "amdgcn-amd-amdhsa", "-mcpu=gfx950", "walk.s", "-o", "walk.o"], check=True)
    d = subprocess.run(["llvm-objdump", "-d", "walk.o"], capture_output=True, text=True).stdout
    sz = [4 * len(m.group(1).split()) for m in re.finditer(r"// [0-9A-F]+: ([0-9A-F ]+)", d)]
    out, pos, k, pf, marks = [], 0, 0, None, {"E": [], "O": []}
    nxt = None
    for l in L:
        t = l.strip()
        isins = bool(t) and not t.startswith((";", ".")) and not t.endswith(":")
        if t.endswith("_pgret:"):
            pf = t[0]
            nxt = ((pos >> 12) + 1) << 12
        if t == "s_endpgm":
            pf = None
        if isins:
            if pf and pos >= nxt:
                marks[pf].append(len(out))
                out.append(None)
                pos += 4
                nxt = nxt + 64 if (nxt & 0xfff) < 64 * (nl - 1) else ((nxt >> 12) + 1) << 12
            pos += sz[k]
            k += 1
        out.append(l)
    assert k == len(sz), (k, len(sz))
    for pf in "EO":
        m = marks[pf]
        ch = [[i for i in range(len(m)) if (i // nl) % 4 == w] for w in range(4)]
        for w in range(4):
            for j, i in enumerate(ch[w]):
                tgt = f"{pf}_pm{ch[w][j+1]}" if j + 1 < len(ch[w]) else f"{pf}_pgret"
                out[m[i]] = (f"{pf}_pg{w}:\n" if j == 0 else "") + f"{pf}_pm{i}:\n  s_cbranch_execz {tgt}"
    return "\n".join(out)


if __name__ == "__main__":
    for a in sys.argv[2:]:
        if a == "ts":
            CFG["TS"] = True
        else:
            k, v = a.split("=", 1)
            CFG[k] = eval(v)
    build(sys.argv[1] if len(sys.argv) > 1 else "v5.s")
```
